```python
import torch

def _softmax(x, axis=-1):
    return torch.softmax(x, dim=axis)
def _gelu(x):
    return torch.nn.functional.gelu(x, approximate="tanh")
def _silu(x):
    return torch.nn.functional.silu(x)
def _sigmoid(x):
    return torch.sigmoid(x)
def _layernorm(x, axis=-1, eps=1e-5):
    m = x.mean(dim=axis, keepdim=True)
    v = x.var(dim=axis, keepdim=True, unbiased=False)
    return (x - m) / torch.sqrt(v + eps)
def _scatter_add(tgt, idx, src, axis=0):
    return tgt.clone().index_add_(axis, idx, src)
def _segment_sum(src, seg, n):
    out = torch.zeros((n,) + src.shape[1:], dtype=src.dtype)
    return out.index_add_(0, seg, src)
def _pad(x, pw):
    flat = tuple(v for pair in reversed(pw) for v in pair)
    return torch.nn.functional.pad(x, flat)

kernel_name = 'interleave_layers__linear_kernel_hedgehog__mha_block__prompt'

def setup_inputs():

    _w = (lambda a: (lambda t: t.to(torch.bfloat16) if t.is_floating_point() else t)(torch.as_tensor(a)))
    def _A_setup():
        B, S, D, H = 1, 2048, 448, 16
        Dh = D // H
        return {
            "x": _w((lambda *s: torch.randn(*s, dtype=torch.bfloat16) * 0.05)(B, S, D)),
            "wqkv": _w((lambda *s: torch.randn(*s, dtype=torch.bfloat16) * 0.4)(D, 3 * D)),
            "w_phi": _w((lambda *s: torch.randn(*s, dtype=torch.bfloat16) * 0.4)(H, Dh, Dh) * (Dh ** -0.5)),
            "wo": _w((lambda *s: torch.randn(*s, dtype=torch.bfloat16) * 0.05)(D, D)),
        }
    _A_in = _A_setup()

    def _B_setup():
        B, S, D, H = 1, 2048, 448, 16
        return {
            "x": _w((lambda *s: torch.randn(*s, dtype=torch.bfloat16) * 0.05)(B, S, D)),
            "wqkv": _w((lambda *s: torch.randn(*s, dtype=torch.bfloat16) * 0.1)(D, 3 * D)),
            "wo": _w((lambda *s: torch.randn(*s, dtype=torch.bfloat16) * 0.05)(D, D)),
        }
    _B_in = _B_setup()

    return {
        "A_x": _A_in["x"],
        "A_wqkv": _A_in["wqkv"],
        "A_w_phi": _A_in["w_phi"],
        "A_wo": _A_in["wo"],
        "B_x": _B_in["x"],
        "B_wqkv": _B_in["wqkv"],
        "B_wo": _B_in["wo"],
    }

def reference(A_x, A_wqkv, A_w_phi, A_wo, B_x, B_wqkv, B_wo):
    def _A_ref(x, wqkv, w_phi, wo):
        B, S, D = x.shape
        H = 16; Dh = D // H
        qkv = (lambda x, *d: x.permute(*d))((x @ wqkv).reshape(B, S, 3, H, Dh), 2, 0, 3, 1, 4)
        q, k, v = qkv[0], qkv[1], qkv[2]
        pq = torch.einsum("bhsd,hdf->bhsf", q, w_phi)
        pk = torch.einsum("bhsd,hdf->bhsf", k, w_phi)
        phi_q = torch.concatenate([_softmax(pq, axis=-1), _softmax(-pq, axis=-1)], axis=-1)
        phi_k = torch.concatenate([_softmax(pk, axis=-1), _softmax(-pk, axis=-1)], axis=-1)
        kv = torch.einsum("bhsf,bhsd->bhfd", phi_k, v)
        z  = torch.einsum("bhsf->bhf", phi_k)
        num = torch.einsum("bhqf,bhfd->bhqd", phi_q, kv)
        den = torch.einsum("bhqf,bhf->bhq", phi_q, z)[..., None] + 1e-6
        o = num / den
        return (lambda x, *d: x.permute(*d))(o, 0, 2, 1, 3).reshape(B, S, D) @ wo

    def _B_ref(x, wqkv, wo):
        B, S, D = x.shape
        H = 16
        Dh = D // H
        qkv = (lambda x, *d: x.permute(*d))((x @ wqkv).reshape(B, S, 3, H, Dh), 2, 0, 3, 1, 4)
        q, k, v = qkv[0], qkv[1], qkv[2]
        scores = torch.einsum("bhqd,bhkd->bhqk", q, k) * (Dh ** -0.5)
        p = _softmax(scores, axis=-1)
        o = torch.einsum("bhqk,bhkd->bhqd", p, v)
        return (lambda x, *d: x.permute(*d))(o, 0, 2, 1, 3).reshape(B, S, D) @ wo

    x = A_x
    x = x + _A_ref(_layernorm(x, axis=-1), A_wqkv, A_w_phi, A_wo)
    x = x + _B_ref(_layernorm(x, axis=-1), B_wqkv, B_wo)
    x = x + _A_ref(_layernorm(x, axis=-1), A_wqkv, A_w_phi, A_wo)
    x = x + _B_ref(_layernorm(x, axis=-1), B_wqkv, B_wo)
    return x
```

```python
import re

REG_RE = re.compile(r'^(-?\|?)([vas])(\d+)\|?$')
RNG_RE = re.compile(r'^(-?\|?)([vas])\[(\d+):(\d+)\]\|?$')

TRANS = ("v_exp_f32", "v_log_f32", "v_rcp_f32", "v_rsq_f32", "v_sqrt_f32", "v_sin_f32", "v_cos_f32")


def regs_of(op):
    op = op.strip()
    m = REG_RE.match(op)
    if m:
        return [(m.group(2), int(m.group(3)))]
    m = RNG_RE.match(op)
    if m:
        return [(m.group(2), i) for i in range(int(m.group(3)), int(m.group(4)) + 1)]
    if op == "vcc":
        return [("s", "vcc_lo"), ("s", "vcc_hi")]
    if op in ("vcc_lo", "vcc_hi", "exec_lo", "exec_hi", "m0"):
        return [("s", op)]
    if op == "exec":
        return [("s", "exec_lo"), ("s", "exec_hi")]
    return []


def split_ops(s):
    out, depth, cur = [], 0, ""
    for ch in s:
        if ch in "[(":
            depth += 1
        if ch in "])":
            depth -= 1
        if ch == "," and depth == 0:
            out.append(cur.strip())
            cur = ""
        else:
            cur += ch
    if cur.strip():
        out.append(cur.strip())
    return out


class Ins:
    __slots__ = ("text", "mn", "ops", "mods", "rd", "wr", "cls", "passes", "srcc", "srcab", "states", "stdata")

    def __init__(self, text):
        self.text = text
        t = text.split(";")[0].strip()
        parts = t.split(None, 1)
        self.mn = mn = parts[0]
        rest = parts[1] if len(parts) > 1 else ""
        ops = split_ops(rest)
        mods = []
        if ops:
            last = ops[-1].split()
            ops[-1] = last[0]
            mods = last[1:]
        self.ops, self.mods = ops, mods
        self.passes = 0
        self.srcc, self.srcab, self.stdata = [], [], []
        self.states = 1
        R = lambda i: regs_of(ops[i]) if i < len(ops) else []
        allfrom = lambda i: [r for o in ops[i:] for r in regs_of(o)]
        rd, wr = [], []
        if mn.startswith("v_mfma"):
            cls = "mfma"
            wr = R(0)
            self.srcab = R(1) + R(2)
            self.srcc = R(3)
            rd = self.srcab + self.srcc
            self.passes = 8 if "32x32" in mn else 4
        elif mn.startswith("v_cmp"):
            cls = "valu"
            wr, rd = R(0), allfrom(1)
        elif mn.startswith("v_permlane"):
            cls = "permlane"
            wr = rd = R(0) + R(1)
        elif mn.startswith("v_readfirstlane") or mn.startswith("v_readlane"):
            cls = "readlane"
            wr, rd = R(0), allfrom(1)
        elif mn.startswith("v_dot2"):
            cls = "dot"
            wr, rd = R(0), allfrom(1)
            if mn.startswith("v_dot2c"):
                rd = rd + R(0)
                self.srcc = R(0)
            else:
                self.srcc = R(3)
            self.srcab = R(1) + R(2)
        elif mn.startswith("v_"):
            cls = "trans" if mn.split("_e")[0] in TRANS or mn in TRANS else "valu"
            wr, rd = R(0), allfrom(1)
            if mn.startswith("v_fmac") or mn.startswith("v_pk_fmac") or mn.startswith("v_writelane"):
                rd = rd + R(0)
            if mn.startswith("v_swap"):
                wr = rd = R(0) + R(1)
            if mn.endswith("_dpp"):
                cls = "dpp"
                rd = rd + R(0)
            if mn in ("v_nop",):
                wr, rd = [], []
        elif mn.startswith("ds_read"):
            cls = "ds"
            wr, rd = R(0), allfrom(1)
        elif mn.startswith("ds_"):
            cls = "ds"
            rd = allfrom(0)
        elif mn.startswith("buffer_load") or mn.startswith("global_load"):
            cls = "vmem"
            if "lds" in mods:
                rd = allfrom(0) + [("s", "m0")]
                cls = "dma"
            else:
                wr, rd = R(0), allfrom(1)
        elif mn.startswith("buffer_store"):
            cls = "vmem"
            rd = allfrom(0)
            if mn.endswith("x3") or mn.endswith("x4"):
                self.stdata = R(0)
        elif mn.startswith("buffer_atomic") or mn.startswith("global_atomic"):
            cls = "vmem"
            rd = allfrom(0)
            if "sc0" in mods:
                wr = R(0)
        elif mn.startswith("s_load") or mn in ("s_memtime", "s_memrealtime"):
            cls = "smem"
            wr, rd = R(0), allfrom(1)
        elif mn.startswith("s_atomic"):
            cls = "smem"
            rd = allfrom(0)
            wr = R(0)
        elif mn == "s_nop":
            cls = "nop"
            self.states = int(ops[0], 0) + 1
        elif mn in ("s_waitcnt", "s_barrier", "s_sleep", "s_setprio", "s_endpgm", "s_branch") or mn.startswith("s_cbranch"):
            cls = "ctl"
        elif mn.startswith("s_cmp") or mn.startswith("s_bitcmp"):
            cls = "salu"
            rd = allfrom(0)
        elif mn.startswith("s_"):
            cls = "salu"
            wr, rd = R(0), allfrom(1)
            if mn.endswith("saveexec_b64"):
                wr = wr + regs_of("exec")
        else:
            raise ValueError("unknown instruction: " + text)
        self.cls, self.rd, self.wr = cls, rd, wr


VALU_LIKE = ("valu", "trans", "permlane", "readlane", "dot", "dpp")


def need_states(p, c):
    n = 0
    pw = set(p.wr)
    crd, cwr = set(c.rd), set(c.wr)
    pv = {r for r in pw if r[0] in "va"}
    ps = {r for r in pw if r[0] == "s"}
    if p.cls == "mfma":
        big = p.passes + 4
        if c.cls == "mfma":
            if pv & set(c.srcab):
                n = max(n, big)
            if pv & set(c.srcc):
                if not (set(c.srcc) == pv and c.passes == p.passes):
                    n = max(n, p.passes + 2)
            elif pv & cwr:
                n = max(n, p.passes + 2)
        elif c.cls in VALU_LIKE or c.cls in ("vmem", "ds", "dma"):
            if pv & (crd | cwr):
                n = max(n, big)
        if c.cls in VALU_LIKE and set(p.srcc) & cwr:
            n = max(n, p.passes - 1)
    if p.cls in VALU_LIKE:
        if c.cls == "mfma" and pv & crd:
            n = max(n, 3 if p.cls == "dot" else 2)
        if c.cls == "permlane" and pv & crd:
            n = max(n, 2)
        if c.cls == "dpp" and pv & crd:
            n = max(n, 2)
        if c.cls == "readlane" and pv & crd:
            n = max(n, 1)
        if p.cls == "trans" and c.cls in VALU_LIKE and c.cls != "trans" and pv & crd:
            n = max(n, 1)
        if p.cls == "dot" and pv & (crd | cwr):
            if c.cls == "dot" and c.mn == p.mn and not (pv & set(c.srcab)):
                pass
            else:
                n = max(n, 3)
        if ps:
            if c.cls in VALU_LIKE and ps & crd:
                n = max(n, 4 if c.cls == "readlane" else 2)
            if c.cls in ("vmem", "dma") and ps & crd:
                n = max(n, 5)
            if c.cls in ("salu", "smem") and ps & crd:
                n = max(n, 2)
    if p.cls == "salu" and ("s", "m0") in pw and c.cls == "dma":
        n = max(n, 1)
    if p.stdata and set(p.stdata) & cwr:
        n = max(n, 2)
    return n


class Asm:
    def __init__(self):
        self.out = []
        self.hist = []
        self.vm = []
        self.lg = []
        self.sm = []
        self.nins = 0
        self.nnop = 0

    def raw(self, s):
        self.out.append(s)

    def comment(self, s):
        self.out.append("    ; " + s)

    def _push(self, ins):
        self.out.append("    " + ins.text)
        self.hist.append(ins)
        if len(self.hist) > 24:
            self.hist.pop(0)
        self.nins += 1

    def _apply_wait(self, ins):
        t = ins.text
        m = re.search(r"vmcnt\((\d+)\)", t)
        if m:
            n = int(m.group(1))
            if len(self.vm) > n:
                self.vm = self.vm[len(self.vm) - n:] if n else []
        m = re.search(r"lgkmcnt\((\d+)\)", t)
        if m:
            n = int(m.group(1))
            if len(self.lg) > n:
                self.lg = self.lg[len(self.lg) - n:] if n else []
            if n == 0:
                self.sm = []

    def _needed(self, regs):
        regs = set(regs)
        vmn = lgn = None
        for i, d in enumerate(self.vm):
            if d & regs:
                vmn = len(self.vm) - 1 - i
        for i, d in enumerate(self.lg):
            if d & regs:
                lgn = len(self.lg) - 1 - i
        for d in self.sm:
            if d & regs:
                lgn = 0
        return vmn, lgn

    def wait_regs(self, *ops):
        regs = [r for o in ops for r in regs_of(o)]
        vmn, lgn = self._needed(regs)
        w = []
        if vmn is not None:
            w.append("vmcnt(%d)" % min(vmn, 63))
        if lgn is not None:
            w.append("lgkmcnt(%d)" % min(lgn, 15))
        if w:
            ins = Ins("s_waitcnt " + " ".join(w))
            self._apply_wait(ins)
            self._push(ins)
            return True
        return False

    def __call__(self, text):
        for line in text.split("\n"):
            line = line.strip()
            if not line:
                continue
            if line.startswith(";"):
                self.out.append("    " + line)
                continue
            self.emit(line)

    def emit(self, text):
        ins = Ins(text)
        if ins.mn == "s_waitcnt":
            self._apply_wait(ins)
            self._push(ins)
            return
        vmn, lgn = self._needed(ins.rd + ins.wr)
        w = []
        if vmn is not None:
            w.append("vmcnt(%d)" % min(vmn, 63))
        if lgn is not None:
            w.append("lgkmcnt(%d)" % min(lgn, 15))
        if w:
            wi = Ins("s_waitcnt " + " ".join(w))
            self._apply_wait(wi)
            self._push(wi)
        dist, need = 0, 0
        for p in reversed(self.hist):
            n = need_states(p, ins)
            if n - dist > need:
                need = n - dist
            dist += p.states
            if dist >= 20:
                break
        while need > 0:
            k = min(need, 16)
            self._push(Ins("s_nop %d" % (k - 1)))
            self.nnop += k
            need -= k
        self._push(ins)
        if ins.cls in ("vmem", "dma"):
            self.vm.append(set(ins.wr))
            assert len(self.vm) <= 63, "more than 63 vmem ops outstanding"
        elif ins.cls == "ds":
            self.lg.append(set(ins.wr))
        elif ins.cls == "smem":
            self.sm.append(set(ins.wr))

    def settle(self, n=12):
        dist, need = 0, 0
        for p in reversed(self.hist):
            worst = 0
            if p.cls == "mfma":
                worst = p.passes + 4
            elif p.cls in VALU_LIKE:
                worst = 5 if any(r[0] == "s" for r in p.wr) else 3
            elif p.stdata:
                worst = 2
            elif p.cls == "salu":
                worst = 1
            if worst - dist > need:
                need = worst - dist
            dist += p.states
            if dist >= 20:
                break
        if need > 0:
            self._push(Ins("s_nop %d" % (need - 1)))

    def label(self, name):
        self.out.append(name + ":")

    def text(self):
        return "\n".join(self.out) + "\n"
```

```python
import sys, struct, math
sys.path.insert(0, "work")
from asmgen import Asm

NAME = "interleave_layers__linear_kernel_hedgehog__mha_block__prompt"
STAMPS = "--stamps" in sys.argv
OUTF = [a for a in sys.argv[1:] if not a.startswith("--")]
OPT = {a.split("=")[0][2:]: (a.split("=") + ["1"])[1] for a in sys.argv[1:] if a.startswith("--")}

def fbits(x): return "0x%08x" % struct.unpack("<I", struct.pack("<f", x))[0]
LOG2E = math.log2(math.e)

WS_CTR = 0
WS_ACT = 1 << 20
WS_KV = WS_ACT + 7 * (2 << 20)
WS_KVP = WS_KV + 2 * (4 << 20)
WS_DBG = WS_KVP + 2 * (1 << 20)
WS_END = WS_DBG + (1 << 20)
L_K, L_V, L_Q, L_WO, L_SC = 0, 28672, 57344, 86016, 114688
L_PHI = L_SC
L_KVI = L_SC + 28672
L_CS = L_SC + 32768
L_RS = L_SC + 34816
L_QX = L_SC + 36864
L_MX = L_SC + 45056
L_RED = L_SC
LDS_BYTES = 163840
HIB = 57344
X, WA, WPHI, WOA, WB, WOB, OUT, WS, CODE = ("s[%d:%d]" % (i, i + 3) for i in range(24, 60, 4))
sR, sH, sW = "s60", "s61", "s62"
sBUD = "s63"
sROWC, sCOLC = "s[64:65]", "s[66:67]"
sACT, sPUB, sKV, sKVP = "s68", "s69", "s70", "s71"
sG = ["s%d" % i for i in range(72, 80)]
sHI, sLO, sONE28, sEVEN = "s[80:81]", "s[82:83]", "s[84:85]", "s[86:87]"
sONE, sT0, sT1, sT2, sT3 = "s88", "s89", "s90", "s91", "s92"
sC10, sC01 = "s93", "s94"
sPASS = "s95"
sST = "s[96:97]"
sM = "s[98:99]"
vLANE, vL16 = "v0", "v1"
vA = ["v2", "v3", "v4"]; vAH = ["v5", "v6", "v7"]
vN, vNH = "v8", "v9"
vGX, vGM, vWD, vWOD, vXO = "v10", "v11", "v12", "v13", "v14"
vMX = "v15"
Y, AK, AV, AQ = 16, 32, 48, 64
ACT = 128
vRSTD, vMB0 = "v124", 126
vSTAMP = "a250"
RING = 0
WR = 128
CSA, CSB = 160, 166
WP = 172
QA = 180

def v(i, n=1): return "v%d" % i if n == 1 else "v[%d:%d]" % (i, i + n - 1)
def a(i, n=1): return "a%d" % i if n == 1 else "a[%d:%d]" % (i, i + n - 1)

A = Asm()
nstamp = [0]
stamp_names = []
def stamp(name):
    if not STAMPS: return
    i = nstamp[0]; nstamp[0] += 1
    stamp_names.append(name)
    A(f"s_memrealtime {sST}")
    A("s_waitcnt lgkmcnt(0)")
    A(f"v_writelane_b32 v125, s96, {i}")

uid = [0]
def lab(p):
    uid[0] += 1
    return f"L_{p}_{uid[0]}"

def mfma(d, x, y, c, k16=True):
    A(f"v_mfma_f32_32x32x16_bf16 {d}, {x}, {y}, {c}")

def exec_set(m): A(f"s_mov_b64 exec, {m}")

def arrive(ctr):
    A("s_waitcnt vmcnt(0)")
    A(f"s_atomic_add {sONE}, {ctr}, 0")

def wait_ctr(ctr, target):
    L, Lo = lab("poll"), lab("go")
    A("s_waitcnt lgkmcnt(0)")
    A.label(L)
    A(f"s_mov_b32 {sT0}, 0")
    A(f"s_atomic_add {sT0}, {ctr}, 0 glc")
    A(f"s_sub_u32 {sBUD}, {sBUD}, 1")
    A(f"s_cbranch_scc1 {Lo}_to")
    A("s_waitcnt lgkmcnt(0)")
    A(f"s_cmp_lt_u32 {sT0}, {target}")
    A(f"s_cbranch_scc1 {L}")
    A(f"s_branch {Lo}")
    A.label(Lo + "_to")
    A(f"s_mov_b32 {sBUD}, 0")
    A("s_waitcnt lgkmcnt(0)")
    A.label(Lo)

def ksteps_act():
    out = []
    for Q in range(4):
        out.append((ACT + 32 * Q + 26, 2, 7 * (4 * Q) + 5, 7 * (4 * Q + 1) + 5))
    for Q in range(4):
        for i in range(4):
            out.append((ACT + 32 * Q + 4 * i, 0, 7 * (4 * Q + i), 7 * (4 * Q + i) + 2))
        for j in range(2):
            out.append((ACT + 32 * Q + 16 + 4 * j, 1, 7 * (4 * Q + 2 * j) + 4, 7 * (4 * Q + 2 * j) + 6))
    return out
def ksteps_nat():
    return [(ACT + 4 * s, None, 4 * s, 4 * s + 1) for s in range(28)]

def tr_read(dst, ks, tile_off):
    _, b, g0, g1 = ks
    hi = tile_off >= HIB
    base = (vNH if hi else vN) if b is None else (vAH[b] if hi else vA[b])
    off = tile_off - (HIB if hi else 0)
    A(f"ds_read_b64_tr_b16 {a(dst,2)}, {base} offset:{off + g0*256}")
    A(f"ds_read_b64_tr_b16 {a(dst+2,2)}, {base} offset:{off + g1*256}")

class Gemm:
    def __init__(self, ks, tiles):
        self.ks, self.tiles = ks, tiles
        self.nt = len(tiles)
        self.depth = min(8 // self.nt, 15 // (2 * self.nt) + 1, 4 if self.nt > 1 else 6)
        self.issued = 0
    def slot(self, s, t): return WR + 4 * ((s % (8 // self.nt)) * self.nt + t)
    def prefetch(self):
        while self.issued < self.depth - 1:
            self.issue()
    def issue(self):
        s = self.issued
        if s < len(self.ks):
            for t, (acc, off, tr, c0) in enumerate(self.tiles):
                tr_read(self.slot(s, t), self.ks[s], off)
        self.issued += 1
    def run(self, fill=None):
        fill = fill or {}
        self.prefetch()
        for s, k in enumerate(self.ks):
            for t, (acc, off, tr, c0) in enumerate(self.tiles):
                wf, af = a(self.slot(s, t), 4), v(k[0], 4)
                c = c0 if s == 0 else v(acc, 16)
                if tr: mfma(v(acc, 16), wf, af, c)
                else: mfma(v(acc, 16), af, wf, c)
                if t == 0: self.issue()
                f = fill.get((s, t))
                if f: f()

def rank1(acc, cs, tr):
    if tr: A(f"v_mfma_f32_32x32x8_bf16 {v(acc,16)}, {a(cs,2)}, {v(vMB0,2)}, {v(acc,16)}")
    else: A(f"v_mfma_f32_32x32x8_bf16 {v(acc,16)}, {v(vMB0,2)}, {a(cs,2)}, {v(acc,16)}")

def gather_setup(buf):
    A(f"s_add_u32 {sG[0]}, {sACT}, {WS_ACT + buf * (2 << 20)}")
    for i in range(1, 8): A(f"s_add_u32 {sG[i]}, {sG[0]}, {4096 * i}")

def gather(stats):
    for Q in range(4):
        R = ACT + 32 * Q
        if stats:
            A(f"buffer_load_dwordx4 {v(R+24,4)}, {vGM}, {WS}, {sG[2*Q]} offen offset:1536 sc1")
            A(f"buffer_load_dwordx4 {v(R+28,4)}, {vGM}, {WS}, {sG[2*Q]} offen offset:3584 sc1")
        else:
            A(f"buffer_load_dwordx2 {v(R+26,2)}, {vGM}, {WS}, {sG[2*Q]} offen offset:1544 sc1")
            A(f"buffer_load_dwordx2 {v(R+28,2)}, {vGM}, {WS}, {sG[2*Q]} offen offset:3584 sc1")
    for Q in range(4):
        R = ACT + 32 * Q
        for i in range(4):
            A(f"buffer_load_dwordx4 {v(R+4*i,4)}, {vL16}, {WS}, {sG[2*Q+(i>>1)]} offen offset:{2048*(i&1)} sc1")
        for j in range(2):
            A(f"buffer_load_dwordx4 {v(R+16+4*j,4)}, {vGX}, {WS}, {sG[2*Q+j]} offen offset:1024 sc1")

def dma_list(srd, tiles):
    out = []
    for (lo, col, wo) in tiles:
        stride = 896 if wo else 2688
        for i in range(7):
            def f(lo=lo, col=col, wo=wo, i=i, stride=stride):
                A(f"s_mul_i32 {sT1}, {sW}, {7 * 1024}")
                A(f"s_add_u32 m0, {sT1}, {lo + i * 1024}")
                A(f"s_mul_i32 {sT1}, {sW}, {7 * 16 * stride}")
                A(f"s_add_u32 {sT1}, {sT1}, {i * 16 * stride + col}")
                A(f"buffer_load_dwordx4 {vWOD if wo else vWD}, {srd}, {sT1} offen lds")
            out.append(f)
    return out
T_K, T_V, T_Q, T_WO = (L_K, 896, False), (L_V, 1792, False), (L_Q, 0, False), (L_WO, 0, True)

def both_halves_sum(x, t):
    A(f"v_mov_b32 {t}, {x}")
    A(f"v_permlane32_swap_b32 {t}, {x}")
    A(f"v_add_f32 {x}, {x}, {t}")

def stats_finish_ops(s, q, t):
    ops = []
    P = lambda txt: ops.append(lambda: A(txt))
    P(f"v_mov_b32 {t}, {s}")
    P(f"v_permlane32_swap_b32 {t}, {s}")
    P(f"v_add_f32 {s}, {s}, {t}")
    P(f"v_mov_b32 {t}, {q}")
    P(f"v_permlane32_swap_b32 {t}, {q}")
    P(f"v_add_f32 {q}, {q}, {t}")
    P(f"v_mul_f32 {s}, {fbits(-1.0/448)}, {s}")
    P(f"v_mul_f32 {q}, {fbits(1.0/448)}, {q}")
    P(f"v_fma_f32 {q}, -{s}, {s}, {q}")
    P(f"v_max_f32 {q}, 0, {q}")
    P(f"v_add_f32 {q}, {fbits(1e-5)}, {q}")
    P(f"v_rsq_f32 {vRSTD}, {q}")
    P(f"v_cndmask_b32 {s}, {s}, 0, {sHI}")
    P(f"v_cvt_pk_bf16_f32 {v(vMB0+1)}, {s}, 0")
    P(f"v_lshlrev_b32 {t}, 16, {v(vMB0+1)}")
    P(f"v_sub_f32 {t}, {s}, {t}")
    P(f"v_cvt_pk_bf16_f32 {v(vMB0)}, {s}, {t}")
    return ops

def stats_gather_ops(s, q):
    ops = []
    P = lambda txt: ops.append(lambda: A(txt))
    P(f"v_add_f32 {s}, {v(ACT+24)}, {v(ACT+30)}")
    P(f"v_add_f32 {q}, {v(ACT+25)}, {v(ACT+31)}")
    for Q in range(1, 4):
        R = ACT + 32 * Q
        P(f"v_add_f32 {s}, {s}, {v(R+24)}")
        P(f"v_add_f32 {q}, {q}, {v(R+25)}")
        P(f"v_add_f32 {s}, {s}, {v(R+30)}")
        P(f"v_add_f32 {q}, {q}, {v(R+31)}")
    return ops

def spread(ops, slots, per):
    fill = {}
    i = 0
    for sl in slots:
        chunk = ops[i:i + per]; i += per
        if chunk: fill[sl] = (lambda ch=chunk: [f() for f in ch])
    assert i >= len(ops), (i, len(ops))
    return fill

def scale_cvt(dst, acc, sc, n=8):
    reg, sel = sc
    for i in range(n):
        A(f"v_pk_mul_f32 {v(acc+2*i,2)}, {v(acc+2*i,2)}, {v(reg,2)} op_sel:[0,{sel}] op_sel_hi:[1,{sel}]")
    for i in range(n):
        A(f"v_cvt_pk_bf16_f32 {v(dst+i)}, {v(acc+2*i)}, {v(acc+2*i+1)}")

def colsum_mfma():
    ones = 80
    for i in range(4): A(f"v_mov_b32 {v(ones+i)}, 0x3f803f80")
    A(f"s_mul_i32 {sT1}, {sW}, {7*1024}")
    A(f"v_add_u32 v84, {sT1}, {vN}")
    A(f"v_add_u32 v85, {HIB}, v84")
    seq = [(i, t) for i in range(7) for t in range(3)]
    offs = (L_K, L_V, L_Q); accs = (AK, AV, AQ)
    def rd(n):
        if n >= len(seq): return
        i, t = seq[n]
        base, off = ("v85", offs[t] - HIB) if offs[t] >= HIB else ("v84", offs[t])
        A(f"ds_read_b64_tr_b16 {a(WR+4*(n%8),2)}, {base} offset:{off + i*1024}")
        A(f"ds_read_b64_tr_b16 {a(WR+4*(n%8)+2,2)}, {base} offset:{off + i*1024 + 256}")
    for n in range(5): rd(n)
    for n, (i, t) in enumerate(seq):
        mfma(v(accs[t], 16), v(ones, 4), a(WR + 4 * (n % 8), 4), "0" if i == 0 else v(accs[t], 16))
        rd(n + 5)
    A(f"v_and_b32 v84, 31, {vLANE}")
    A(f"s_mul_i32 {sT1}, {sW}, 384")
    A(f"s_add_u32 {sT1}, {sT1}, {L_CS}")
    A(f"v_lshl_add_u32 v85, v84, 2, {sT1}")
    for t in range(3): A(f"ds_write_b32 v85, {v(accs[t])} offset:{128*t}")

def colsum_finish_ops(cs):
    ops = []
    P = lambda txt: ops.append(lambda: A(txt))
    P(f"v_and_b32 v84, 31, {vLANE}")
    P(f"v_lshlrev_b32 v84, 2, v84")
    P(f"v_add_u32 v84, {L_CS}, v84")
    for t in range(3):
        for w in range(4): P(f"ds_read_b32 {v(88+4*t+w)}, v84 offset:{384*w+128*t}")
    for t in range(3):
        r = 88 + 4 * t
        P(f"v_add_f32 {v(r)}, {v(r)}, {v(r+1)}")
        P(f"v_add_f32 {v(r+2)}, {v(r+2)}, {v(r+3)}")
        P(f"v_add_f32 {v(r)}, {v(r)}, {v(r+2)}")
        P(f"v_cvt_pk_bf16_f32 {v(r+1)}, {v(r)}, {v(r)}")
        P(f"v_and_b32 {v(r+2)}, 0xffff0000, {v(r+1)}")
        P(f"v_sub_f32 {v(r+2)}, {v(r)}, {v(r+2)}")
        P(f"v_cvt_pk_bf16_f32 {v(r+2)}, {v(r+2)}, 0")
        P(f"v_accvgpr_write_b32 {a(cs+2*t)}, {v(r+1)}")
        P(f"v_accvgpr_write_b32 {a(cs+2*t+1)}, {v(r+2)}")
    return ops

def phi(P, E, dp, dm, T):
    mx, nm, t0, t1 = v(T), v(T + 1), v(T + 2), v(T + 3)
    A(f"v_max3_f32 {mx}, {v(P)}, {v(P+1)}, {v(P+2)}")
    A(f"v_max3_f32 {nm}, -{v(P)}, -{v(P+1)}, -{v(P+2)}")
    for i in range(3, 13, 2):
        A(f"v_max3_f32 {mx}, {mx}, {v(P+i)}, {v(P+i+1)}")
        A(f"v_max3_f32 {nm}, {nm}, -{v(P+i)}, -{v(P+i+1)}")
    A(f"v_max_f32 {mx}, {mx}, {v(P+13)}")
    A(f"v_max_f32_e64 {nm}, {nm}, -{v(P+13)}")
    A(f"v_permlane32_swap_b32 {mx}, {nm}")
    A(f"v_max_f32 {nm}, {mx}, {nm}")
    A(f"v_mov_b32 {mx}, {nm}")
    A(f"v_permlane32_swap_b32 {mx}, {nm}")
    for i in range(7):
        A(f"v_pk_add_f32 {v(E+2*i,2)}, {v(P+2*i,2)}, {v(T,2)} op_sel:[0,0] op_sel_hi:[1,0] neg_lo:[0,1] neg_hi:[0,1]")
        A(f"v_pk_add_f32 {v(P+2*i,2)}, {v(P+2*i,2)}, {v(T,2)} op_sel:[0,1] op_sel_hi:[1,1] neg_lo:[1,1] neg_hi:[1,1]")
    for i in range(14):
        A(f"v_exp_f32 {v(E+i)}, {v(E+i)}")
        A(f"v_exp_f32 {v(P+i)}, {v(P+i)}")
    A(f"v_pk_add_f32 {v(T,2)}, {v(E,2)}, {v(E+2,2)}")
    A(f"v_pk_add_f32 {v(T+2,2)}, {v(P,2)}, {v(P+2,2)}")
    for i in range(2, 7):
        A(f"v_pk_add_f32 {v(T,2)}, {v(T,2)}, {v(E+2*i,2)}")
        A(f"v_pk_add_f32 {v(T+2,2)}, {v(T+2,2)}, {v(P+2*i,2)}")
    A(f"v_add_f32 {mx}, {mx}, {nm}")
    A(f"v_add_f32 {nm}, {t0}, {t1}")
    A(f"v_mov_b32 {v(dp+7)}, 0")
    A(f"v_permlane32_swap_b32 {mx}, {nm}")
    A(f"v_add_f32 {nm}, {mx}, {nm}")
    A(f"v_rcp_f32 {nm}, {nm}")
    A(f"v_mov_b32 {v(dm+7)}, 0")
    A(f"v_mov_b32 {mx}, {nm}")
    A(f"v_permlane32_swap_b32 {mx}, {nm}")
    scale_cvt(dp, E, (T, 0), 7)
    scale_cvt(dm, P, (T, 1), 7)

def publish_act(F, buf):
    A(f"s_add_u32 {sT1}, {sPUB}, {WS_ACT + buf * (2 << 20)}")
    A(f"buffer_store_dwordx4 {v(F,4)}, {vL16}, {WS}, {sT1} offen sc1")
    A(f"buffer_store_dwordx4 {v(F+4,4)}, {vL16}, {WS}, {sT1} offen offset:1024 sc1")

def normalize_publish(D, buf, eps, pre=None, T=104, F=96):
    A(f"v_mov_b32 {v(T)}, {v(D+12)}")
    A(f"v_mov_b32 {v(T+1)}, {v(D+12)}")
    A(f"v_permlane32_swap_b32 {v(T)}, {v(T+1)}")
    if eps: A(f"v_add_f32 {v(T+1)}, {fbits(eps)}, {v(T+1)}")
    if pre: pre(v(T + 1))
    A(f"v_rcp_f32 {v(T)}, {v(T+1)}")
    scale_cvt(F, D, (T, 0), 8)
    exec_set(sEVEN)
    A(f"v_mov_b32 {v(F+6)}, {v(F+4)}")
    A(f"v_mov_b32 {v(F+7)}, {v(F+5)}")
    exec_set("-1")
    publish_act(F, buf)

rowc, colc = [0], [0]
def arrive_row(): arrive(sROWC); rowc[0] += 16
def arrive_col(): arrive(sCOLC); colc[0] += 16
def wait_row(): wait_ctr(sROWC, rowc[0])
def wait_col(): wait_ctr(sCOLC, colc[0])

def prologue():
    A.raw(f"""; @launch grid=(256,1,1) block=(256,1,1) lds={LDS_BYTES}
.amdgcn_target "amdgcn-amd-amdhsa--gfx950"
.text
.globl {NAME}_kernel
.p2align 8
.type {NAME}_kernel,@function
{NAME}_kernel:""")
    A("s_cmp_ge_u32 s2, 256")
    A("s_cbranch_scc1 L_end")
    A("s_load_dwordx16 s[4:19], s[0:1], 0")
    A("s_load_dwordx4 s[20:23], s[0:1], 64")
    A("s_getpc_b64 s[56:57]")
    A("s_and_b32 s56, s56, 0xffffff00")
    A("s_and_b32 s57, s57, 0xffff")
    A(f"s_mov_b32 s58, L_code_end-{NAME}_kernel")
    A("s_mov_b32 s59, 0x20000")
    A("v_lshlrev_b32 v2, 7, v0")
    A(f"buffer_load_dword v250, v2, {CODE}, 0 offen")
    A("v_add_u32 v2, 0x8000, v2")
    A(f"buffer_load_dword v251, v2, {CODE}, 0 offen")
    A("v_lshrrev_b32 v1, 6, v0")
    A(f"v_readfirstlane_b32 {sW}, v1")
    A("v_and_b32 v0, 63, v0")
    if STAMPS: A("v_mov_b32 v125, 0")
    stamp("start")
    A("s_and_b32 s89, s2, 7")
    A("s_lshl_b32 s89, s89, 1")
    A("s_bfe_u32 s90, s2, 0x10003")
    A(f"s_add_u32 {sR}, s89, s90")
    A(f"s_lshr_b32 {sH}, s2, 4")
    A(f"s_mov_b32 {sBUD}, 0x40000")
    A(f"s_mov_b32 {sONE}, 1")
    A(f"s_mov_b32 {sC10}, 0x00003f80")
    A(f"s_mov_b32 {sC01}, 0x3f800000")
    A("s_mov_b32 s80, 0\n s_mov_b32 s81, -1\n s_mov_b32 s82, -1\n s_mov_b32 s83, 0")
    A("s_mov_b32 s84, 0x10000000\n s_mov_b32 s85, 0x10000000")
    A(f"s_bitcmp1_b32 {sH}, 0")
    A(f"s_cselect_b64 {sEVEN}, 0, {sHI}")
    A(f"s_lshl_b32 s89, {sR}, 2\n s_add_u32 s89, s89, {sW}")
    A(f"s_lshl_b32 s90, {sH}, 2\n s_add_u32 s90, s90, {sW}")
    A(f"s_lshl_b32 {sACT}, s89, 15")
    A(f"s_lshl_b32 s91, {sH}, 11\n s_add_u32 {sPUB}, {sACT}, s91")
    A(f"s_lshl_b32 {sKV}, s90, 16")
    A(f"s_lshl_b32 {sKVP}, s90, 14")
    A(f"v_lshlrev_b32 {vL16}, 4, {vLANE}")
    A(f"v_and_b32 v80, 31, {vLANE}")
    A(f"v_lshrrev_b32 v81, 5, {vLANE}")
    A(f"s_lshl_b32 s91, s89, 5")
    A(f"v_add_u32 v82, s91, v80")
    A(f"v_mul_u32_u24 v82, 896, v82")
    A(f"v_lshl_add_u32 v15, v81, 4, v82")
    A(f"s_mul_i32 s92, {sH}, 56")
    A(f"v_lshl_add_u32 {vXO}, v81, 3, v82")
    A(f"v_add_u32 {vXO}, s92, {vXO}")
    A(f"v_lshrrev_b32 v83, 2, {vLANE}")
    A(f"v_and_b32 v84, 3, {vLANE}")
    A(f"v_lshl_add_u32 v84, v84, 4, s92")
    A(f"v_mul_u32_u24 {vWD}, 2688, v83")
    A(f"v_add_u32 {vWD}, {vWD}, v84")
    A(f"v_mul_u32_u24 {vWOD}, 896, v83")
    A(f"v_add_u32 {vWOD}, {vWOD}, v84")
    A("s_waitcnt lgkmcnt(0)")
    for srd, p, size in ((24, 4, 1835008), (28, 6, 1204224), (32, 8, 25088), (36, 10, 401408), (40, 14, 1204224),
                         (44, 16, 401408), (48, 18, 1835008), (52, 22, WS_END)):
        A(f"s_mov_b32 s{srd}, s{p}\n s_and_b32 s{srd+1}, s{p+1}, 0xffff\n s_mov_b32 s{srd+2}, {size}\n s_mov_b32 s{srd+3}, 0x20000")
    A(f"s_lshl_b32 s91, s89, 7\n s_add_u32 s64, s22, s91\n s_addc_u32 s65, s23, 0")
    A(f"s_lshl_b32 s91, s90, 7\n s_add_u32 s91, s91, 8192\n s_add_u32 s66, s22, s91\n s_addc_u32 s67, s23, 0")
    A(f"s_or_b32 s91, s2, {sW}")
    A("s_cmp_lg_u32 s91, 0")
    A("s_cbranch_scc1 L_noinit")
    vm_save = list(A.vm)
    A(f"v_lshlrev_b32 v84, 7, {vLANE}")
    A("v_mov_b32 v85, 0")
    A(f"buffer_store_dword v85, v84, {WS}, 0 offen sc1")
    A("v_add_u32 v84, 8192, v84")
    A(f"buffer_store_dword v85, v84, {WS}, 0 offen sc1")
    A("s_waitcnt vmcnt(0)")
    A(f"s_atomic_add {sONE}, s[20:21], 0")
    A.settle()
    A.label("L_noinit")
    A.vm = vm_save
    for s in range(28):
        A(f"buffer_load_dwordx4 {v(ACT+4*s,4)}, v15, {X}, 0 offen offset:{32*s}")
    for f in dma_list(WA, (T_K, T_V, T_Q)): f()
    A(f"v_and_b32 v83, 15, {vLANE}")
    A(f"v_lshrrev_b32 v84, 2, v83")
    A(f"v_lshlrev_b32 v84, 6, v84")
    A(f"v_and_b32 v83, 3, v83")
    A(f"v_lshl_add_u32 v84, v83, 3, v84")
    A(f"v_bfe_u32 v83, {vLANE}, 4, 1")
    A(f"v_lshl_add_u32 v84, v83, 5, v84")
    A(f"v_lshl_add_u32 {vA[0]}, v81, 8, v84")
    A(f"v_mul_u32_u24 v83, 1792, v81")
    A(f"v_add_u32 {vA[1]}, v83, v84")
    A(f"v_lshl_add_u32 {vA[2]}, v83, 1, v84")
    for i in range(3): A(f"v_add_u32 {vAH[i]}, {HIB}, {vA[i]}")
    A(f"v_lshl_add_u32 {vN}, v81, 9, v84")
    A(f"v_add_u32 {vNH}, {HIB}, {vN}")
    A(f"v_lshlrev_b32 v83, 4, v80")
    A(f"v_lshl_add_u32 {vGX}, v81, 11, v83")
    A(f"v_lshl_add_u32 {vGM}, v81, 12, v83")
    for g in range(4): A(f"buffer_load_dwordx2 {v(96+2*g,2)}, {vXO}, {X}, 0 offen offset:{16*g}")
    A(f"v_lshrrev_b32 v83, 3, v80")
    A(f"v_and_b32 v84, 3, v80")
    A(f"v_lshl_add_u32 v83, v83, 2, v84")
    A(f"v_bfe_u32 v84, v80, 2, 1")
    A(f"v_mad_u32_u24 v84, v84, 14, v83")
    A(f"s_mul_i32 s91, {sH}, 1568")
    A(f"v_lshl_add_u32 v84, v84, 1, s91")
    A(f"v_mul_u32_u24 v85, 224, v81")
    A(f"v_add_u32 v84, v84, v85")
    A(f"v_mov_b32 v86, 0x40000000")
    A(f"v_cmp_gt_u32 {sM}, 14, v83")
    A(f"v_cndmask_b32 v84, v86, v84, {sM}")
    A(f"v_cndmask_b32 v85, v84, v86, {sHI}")

def wphi_loads():
    for u in range(2):
        for e in range(8):
            d0 = 16 * u + 8 * (e >> 2) + (e & 3)
            ad = "v85" if (u == 1 and e >= 4) else "v84"
            op = "buffer_load_short_d16_hi" if e & 1 else "buffer_load_ushort"
            A(f"{op} {v(104+8*u+e)}, {ad}, {WPHI}, 0 offen offset:{56*d0}")

def p1():
    A(f"s_mov_b32 {sT1}, 0x3f803f80")
    for i in range(112):
        r = ACT + i
        if i == 64: wphi_loads()
        A(f"v_dot2_f32_bf16 {v(64+(i&1))}, {v(r)}, {v(r)}, {'0' if i < 2 else v(64+(i&1))}")
        A(f"v_dot2_f32_bf16 {v(66+(i&1))}, {v(r)}, {sT1}, {'0' if i < 2 else v(66+(i&1))}")
    A("v_add_f32 v120, v66, v67")
    A("v_add_f32 v121, v64, v65")
    stamp("x stats")
    for f in stats_finish_ops("v120", "v121", "v122"): f()
    for g in range(4):
        for j in range(2):
            A(f"v_lshlrev_b32 {v(Y+4*g+2*j)}, 16, {v(96+2*g+j)}")
            A(f"v_and_b32 {v(Y+4*g+2*j+1)}, 0xffff0000, {v(96+2*g+j)}")
    for i in range(8):
        A(f"v_or_b32 {v(104+2*i)}, {v(104+2*i)}, {v(105+2*i)}")
        A(f"v_accvgpr_write_b32 {a(WP+i)}, {v(104+2*i)}")
    A("s_waitcnt vmcnt(0)")
    A("s_barrier")
    stamp("W landed")
    colsum_mfma()
    g = Gemm(ksteps_nat(), [(AK, L_K, True, "0"), (AV, L_V, True, "0")])
    ops = [lambda: A("s_waitcnt lgkmcnt(0)\n s_barrier")] + colsum_finish_ops(CSA)
    fill = spread(ops, [(s, t) for s in range(4, 28) for t in range(2)], 1)
    g.run(fill)
    rank1(AK, CSA, True); rank1(AV, CSA + 2, True)
    L = lab("init")
    A.label(L)
    A(f"s_load_dword {sT0}, s[20:21], 0 glc")
    A(f"s_sub_u32 {sBUD}, {sBUD}, 1")
    A(f"s_cbranch_scc1 {L}_to")
    A("s_waitcnt lgkmcnt(0)")
    A(f"s_cmp_eq_u32 {sT0}, 0")
    A(f"s_cbranch_scc1 {L}")
    A(f"s_branch {L}_go")
    A.label(L + "_to")
    A(f"s_mov_b32 {sBUD}, 0")
    A("s_waitcnt lgkmcnt(0)")
    A.label(L + "_go")

def qkv_act(buf, cs, v_tr):
    g = Gemm(ksteps_act(), [(AK, L_K, True, "0"), (AV, L_V, v_tr, "0")])
    gather_setup(buf)
    g.prefetch()
    wait_row()
    stamp("y ready")
    gather(True)
    ops = stats_gather_ops("v120", "v121") + stats_finish_ops("v120", "v121", "v122")
    if not v_tr:
        ops.append(lambda: A(f"v_and_b32 v122, 31, {vLANE}"))
        ops.append(lambda: A(f"s_lshl_b32 {sT1}, {sW}, 7\n s_add_u32 {sT1}, {sT1}, {L_RS}"))
        ops.append(lambda: A(f"v_lshl_add_u32 v122, v122, 2, {sT1}"))
        ops.append(lambda: A(f"ds_write_b32 v122, {vRSTD}"))
        ops.append(lambda: A(f"v_lshrrev_b32 v122, 5, {vLANE}"))
        ops.append(lambda: A(f"v_lshl_add_u32 v122, v122, 4, {sT1}"))
        for gi in range(4):
            ops.append(lambda gi=gi: A(f"ds_read_b128 {v(96+4*gi,4)}, v122 offset:{32*gi}"))
    fill = spread(ops, [(s, t) for s in range(3, 27) for t in range(2)], 2)
    g.run(fill)
    rank1(AK, cs, True); rank1(AV, cs + 2, v_tr)

def a_rest(it, nat):
    stamp("A gemm done")
    A(f"v_mul_f32 v122, {fbits(LOG2E)}, {vRSTD}")
    scale_cvt(80, AK, (122, 0), 8)
    mfma(v(AQ, 16), a(WP, 4), v(80, 4), "0")
    mfma(v(AQ, 16), a(WP + 4, 4), v(84, 4), v(AQ, 16))
    scale_cvt(104, AV, (124, 0), 8)
    exec_set(sHI)
    A("v_mov_b32 v110, 0x00003f80\n v_mov_b32 v111, 0")
    exec_set("-1")
    A(f"v_and_b32 v32, 31, {vLANE}")
    A(f"s_lshl_b32 {sT1}, {sW}, 5")
    A(f"v_add_u32 v32, {sT1}, v32")
    A(f"v_mul_u32_u24 v32, 200, v32")
    A(f"v_lshrrev_b32 v33, 5, {vLANE}")
    A(f"v_lshl_add_u32 v32, v33, 3, v32")
    A(f"v_add_u32 v32, {L_PHI}, v32")
    for gi in range(4): A(f"ds_write_b64 v32, {v(104+2*gi,2)} offset:{128+16*gi}")
    phi(AQ, 88, 104, 112, 120)
    for sg in range(2):
        for gi in range(4): A(f"ds_write_b64 v32, {v(104+8*sg+2*gi,2)} offset:{64*sg+16*gi}")
    A(f"v_and_b32 v33, 15, {vLANE}")
    A(f"v_lshrrev_b32 v34, 2, v33")
    A(f"v_lshrrev_b32 v35, 4, {vLANE}")
    A(f"v_lshl_add_u32 v34, v35, 3, v34")
    A(f"v_mul_u32_u24 v34, 200, v34")
    A(f"v_and_b32 v33, 3, v33")
    A(f"v_lshl_add_u32 v34, v33, 3, v34")
    A(f"v_add_u32 v34, {L_PHI}, v34")
    A(f"s_lshl_b32 {sT1}, {sW}, 5")
    A(f"v_add_u32 v33, {sT1}, v34")
    A("s_waitcnt lgkmcnt(0)")
    A("s_barrier")
    def rd(tb):
        R = WR + 12 * (tb & 1)
        for q in range(2): A(f"ds_read_b64_tr_b16 {a(R+2*q,2)}, v33 offset:{(tb*32+4*q)*200}")
        for dt in range(2):
            for q in range(2): A(f"ds_read_b64_tr_b16 {a(R+4+4*dt+2*q,2)}, v34 offset:{(tb*32+4*q)*200+128+32*dt}")
    rd(0); rd(1)
    for tb in range(4):
        R = WR + 12 * (tb & 1)
        for dt in range(2):
            A(f"v_mfma_f32_16x16x32_bf16 {v(36+4*dt,4)}, {a(R,4)}, {a(R+4+4*dt,4)}, {'0' if tb == 0 else v(36+4*dt,4)}")
        if tb + 2 < 4: rd(tb + 2)
    A(f"s_lshl_b32 {sT1}, {sR}, 10")
    A(f"s_add_u32 {sT1}, {sT1}, {sKVP}")
    A(f"s_add_u32 {sT1}, {sT1}, {WS_KVP + it * (1 << 20)}")
    for i in range(4): A(f"v_cvt_pk_bf16_f32 {v(44+i)}, {v(36+2*i)}, {v(37+2*i)}")
    A(f"buffer_store_dwordx4 {v(44,4)}, {vL16}, {WS}, {sT1} offen sc1")
    g = Gemm(ksteps_nat() if nat else ksteps_act(), [(AQ, L_Q, True, "0")])
    arrive_col()
    stamp("kvp published")
    dm = dma_list(WOA, (T_WO,)) + dma_list(WB, (T_K, T_V))
    g.run(spread(dm, [(s, 0) for s in range(28)], 1))
    rank1(AQ, CSA + 4, True)
    A(f"v_mul_f32 v122, {fbits(LOG2E)}, {vRSTD}")
    scale_cvt(80, AQ, (122, 0), 8)
    mfma(v(AQ, 16), a(WP, 4), v(80, 4), "0")
    mfma(v(AQ, 16), a(WP + 4, 4), v(84, 4), v(AQ, 16))
    A(f"s_add_u32 {sG[0]}, {sKVP}, {WS_KVP + it * (1 << 20)}")
    for i in range(1, 4): A(f"s_add_u32 {sG[i]}, {sG[0]}, {4096*i}")
    A(f"v_lshrrev_b32 v33, 4, {vLANE}")
    A(f"v_and_b32 v34, 1, v33")
    A(f"v_lshlrev_b32 v34, 9, v34")
    A(f"v_lshrrev_b32 v33, 1, v33")
    A(f"v_lshl_add_u32 v34, v33, 3, v34")
    A(f"v_and_b32 v33, 15, {vLANE}")
    A(f"v_lshl_add_u32 v34, v33, 4, v34")
    A(f"s_lshl_b32 {sT1}, {sW}, 10")
    A(f"s_add_u32 {sT1}, {sT1}, {L_KVI}")
    A(f"v_add_u32 v34, {sT1}, v34")
    A(f"v_add_u32 v35, {L_KVI}, {vL16}")
    phi(AQ, 88, 104, 112, 120)
    stamp("phi_q done")
    wait_col()
    stamp("kvp ready")
    for r in range(16):
        A(f"buffer_load_dwordx4 {v(ACT+4*r,4)}, {vL16}, {WS}, {sG[r>>2]} offen offset:{1024*(r&3)} sc1")
    for r in range(16):
        for i in range(4):
            A(f"v_dot2_f32_bf16 {v(80+2*i)}, {v(ACT+4*r+i)}, {sC10}, {'0' if r == 0 else v(80+2*i)}")
            A(f"v_dot2_f32_bf16 {v(81+2*i)}, {v(ACT+4*r+i)}, {sC01}, {'0' if r == 0 else v(81+2*i)}")
    for i in range(4): A(f"v_cvt_pk_bf16_f32 {v(88+i)}, {v(80+2*i)}, {v(81+2*i)}")
    for dt in range(2): A(f"ds_write_b64 v34, {v(88+2*dt,2)} offset:{256*dt}")
    A("s_waitcnt lgkmcnt(0)")
    A("s_barrier")
    for u in range(4): A(f"ds_read_b128 {a(WR+4*u,4)}, v35 offset:{1024*u}")
    for u in range(4): mfma(v(AK, 16), a(WR + 4 * u, 4), v(104 + 4 * u, 4), "0" if u == 0 else v(AK, 16))
    normalize_publish(AK, 4 * it + 0, 1e-6)
    arrive_row()
    stamp("o published")
    for f in dma_list(WB, (T_Q,)): f()

def outproj(buf, last):
    g = Gemm(ksteps_act(), [(Y, L_WO, True, v(Y, 16))])
    gather_setup(buf)
    g.prefetch()
    wait_row()
    stamp("o ready")
    gather(False)
    g.run()
    F = 96
    if last:
        for i in range(8): A(f"v_cvt_pk_bf16_f32 {v(F+i)}, {v(Y+2*i)}, {v(Y+2*i+1)}")
        for gi in range(3): A(f"buffer_store_dwordx2 {v(F+2*gi,2)}, {vXO}, {OUT}, 0 offen offset:{16*gi}")
        exec_set(sLO)
        A(f"buffer_store_dwordx2 {v(F+6,2)}, {vXO}, {OUT}, 0 offen offset:48")
        exec_set("-1")
        return
    A(f"s_add_u32 {sT1}, {sPUB}, {WS_ACT + (buf + 1) * (2 << 20)}")
    for i in range(4): A(f"v_cvt_pk_bf16_f32 {v(F+i)}, {v(Y+2*i)}, {v(Y+2*i+1)}")
    A(f"buffer_store_dwordx4 {v(F,4)}, {vL16}, {WS}, {sT1} offen sc1")
    A(f"v_pk_add_f32 v[104:105], {v(Y,2)}, {v(Y+2,2)}")
    A(f"v_pk_mul_f32 v[106:107], {v(Y,2)}, {v(Y,2)}")
    A(f"v_pk_fma_f32 v[106:107], {v(Y+2,2)}, {v(Y+2,2)}, v[106:107]")
    for i in range(2, 8):
        if i == 6: exec_set(sLO)
        A(f"v_pk_add_f32 v[104:105], v[104:105], {v(Y+2*i,2)}")
        A(f"v_pk_fma_f32 v[106:107], {v(Y+2*i,2)}, {v(Y+2*i,2)}, v[106:107]")
    exec_set("-1")
    A("v_add_f32 v104, v104, v105")
    A("v_add_f32 v106, v106, v107")
    for i in range(4, 8): A(f"v_cvt_pk_bf16_f32 {v(F+i)}, {v(Y+2*i)}, {v(Y+2*i+1)}")
    A("v_permlane32_swap_b32 v105, v104")
    A("v_permlane32_swap_b32 v107, v106")
    exec_set(sHI)
    A(f"v_add_f32 {v(F+6)}, v104, v105")
    A(f"v_add_f32 {v(F+7)}, v106, v107")
    exec_set(sEVEN)
    A(f"v_swap_b32 {v(F+4)}, {v(F+6)}")
    A(f"v_swap_b32 {v(F+5)}, {v(F+7)}")
    exec_set("-1")
    A(f"buffer_store_dwordx4 {v(F+4,4)}, {vL16}, {WS}, {sT1} offen offset:1024 sc1")
    arrive_row()
    stamp("y published")
    A("s_barrier")

KF, VF, QF, O, S0, S1, P = 80, 88, 96, 128, 32, 48, 64
def qreg(j, i): return v(QF + 4 * i, 4) if j == 0 else a(QA + 8 * (j - 1) + 4 * i, 4)

def attention(it):
    last = it == 1
    stamp("B gemm done")
    scale_cvt(KF, AK, (124, 0), 8)
    exec_set(sHI)
    A(f"v_mov_b32 {v(KF+6)}, 0x3f803f80\n v_mov_b32 {v(KF+7)}, 0x00003f80")
    exec_set("-1")
    A(f"s_lshl_b32 {sT1}, {sR}, 12")
    A(f"s_add_u32 {sT1}, {sT1}, {sKV}")
    A(f"s_add_u32 {sT1}, {sT1}, {WS_KV + it * (4 << 20)}")
    A(f"buffer_store_dwordx4 {v(KF,4)}, {vL16}, {WS}, {sT1} offen sc1")
    A(f"buffer_store_dwordx4 {v(KF+4,4)}, {vL16}, {WS}, {sT1} offen offset:1024 sc1")
    for i in range(8): A(f"v_pk_mul_f32 {v(AV+2*i,2)}, {v(AV+2*i,2)}, {v(96+2*i,2)}")
    for i in range(8): A(f"v_cvt_pk_bf16_f32 {v(VF+i)}, {v(AV+2*i)}, {v(AV+2*i+1)}")
    exec_set(sONE28)
    for i in range(8): A(f"v_mov_b32 {v(VF+i)}, 0x3f803f80")
    exec_set("-1")
    A(f"buffer_store_dwordx4 {v(VF,4)}, {vL16}, {WS}, {sT1} offen offset:2048 sc1")
    A(f"buffer_store_dwordx4 {v(VF+4,4)}, {vL16}, {WS}, {sT1} offen offset:3072 sc1")
    g = Gemm(ksteps_act(), [(AQ, L_Q, True, "0")])
    g.prefetch()
    arrive_col()
    stamp("kv published")
    g.run()
    rank1(AQ, CSB + 4, True)
    A(f"v_mul_f32 v122, {fbits(28 ** -0.5 * LOG2E)}, {vRSTD}")
    scale_cvt(QF, AQ, (122, 0), 8)
    exec_set(sHI)
    A(f"v_mov_b32 {v(QF+6)}, 0\n v_mov_b32 {v(QF+7)}, 0")
    exec_set("-1")
    mfma(v(S0, 16), v(KF, 4), v(QF, 4), "0")
    mfma(v(S0, 16), v(KF + 4, 4), v(QF + 4, 4), v(S0, 16))
    A(f"s_mov_b32 {sPASS}, 0")
    A(f"v_max3_f32 {vMX}, {v(S0)}, {v(S0+1)}, {v(S0+2)}")
    for i in range(3, 15, 2): A(f"v_max3_f32 {vMX}, {vMX}, {v(S0+i)}, {v(S0+i+1)}")
    A(f"v_max_f32 {vMX}, {vMX}, {v(S0+15)}")
    A(f"v_mov_b32 v72, {vMX}")
    A(f"v_permlane32_swap_b32 v72, {vMX}")
    A(f"v_max_f32 {vMX}, {vMX}, v72")
    A("s_waitcnt lgkmcnt(0)")
    A.settle()
    Lre = lab("attn")
    A.label(Lre)
    A(f"v_cvt_pk_bf16_f32 v72, -{vMX}, 0")
    A(f"v_lshlrev_b32 v73, 16, v72")
    A(f"v_sub_f32_e64 v73, -{vMX}, v73")
    A(f"v_cvt_pk_bf16_f32 v72, -{vMX}, v73")
    A(f"v_and_b32 v74, 0xffff0000, v72")
    A(f"v_sub_f32 v73, v73, v74")
    exec_set(sHI)
    A(f"v_mov_b32 {v(QF+6)}, v72")
    A(f"v_cvt_pk_bf16_f32 {v(QF+7)}, v73, 0")
    exec_set("-1")
    A(f"s_lshl_b32 {sT1}, {sW}, 11\n s_add_u32 {sT1}, {sT1}, {L_QX}")
    A(f"v_add_u32 v72, {sT1}, {vL16}")
    A(f"ds_write_b128 v72, {v(QF,4)}")
    A(f"ds_write_b128 v72, {v(QF+4,4)} offset:1024")
    for j in range(1, 4):
        A(f"s_add_u32 {sT1}, {sW}, {j}\n s_and_b32 {sT1}, {sT1}, 3\n s_lshl_b32 {sT2}, {sT1}, 11\n s_add_u32 {sT2}, {sT2}, {L_QX}")
        A(f"v_add_u32 {v(72+j)}, {sT2}, {vL16}")
        A(f"s_mul_i32 {sT2}, {sT1}, 12288\n s_add_u32 {sT2}, {sT2}, {L_RED + 4096*(j-1)}")
        A(f"v_add_u32 {v(76+j)}, {sT2}, {vL16}")
    A(f"s_mul_i32 {sT2}, {sW}, 12288\n s_add_u32 {sT2}, {sT2}, {L_RED}")
    A(f"v_add_u32 v76, {sT2}, {vL16}")
    A("s_waitcnt lgkmcnt(0)")
    A("s_barrier")
    for j in range(1, 4):
        A(f"ds_read_b128 {qreg(j,0)}, {v(72+j)}")
        A(f"ds_read_b128 {qreg(j,1)}, {v(72+j)} offset:1024")
    A("s_waitcnt lgkmcnt(0)")
    A("s_barrier")
    stamp("q ready")
    wait_col()
    stamp("kv ready")
    def kreg(kt, i): return v(KF + 4 * i, 4) if kt == 0 else a(RING + 16 * ((kt - 1) % 8) + 4 * i, 4)
    def vreg(kt, i): return v(VF + 4 * i, 4) if kt == 0 else a(RING + 16 * ((kt - 1) % 8) + 8 + 4 * i, 4)
    loads = []
    for kt in range(1, 16):
        for i in range(4):
            def f(kt=kt, i=i):
                if i == 0:
                    A(f"s_add_u32 {sT2}, {sR}, {kt}\n s_and_b32 {sT2}, {sT2}, 15\n s_lshl_b32 {sT2}, {sT2}, 12\n s_add_u32 {sT2}, {sT2}, {sT3}")
                A(f"buffer_load_dwordx4 {a(RING+16*((kt-1)%8)+4*i,4)}, {vL16}, {WS}, {sT2} offen offset:{1024*i} sc1")
            loads.append(f)
    dm = dma_list(WOB, (T_WO,)) + ([] if last else dma_list(WA, (T_K, T_V, T_Q)))
    A(f"s_add_u32 {sT3}, {sKV}, {WS_KV + it * (4 << 20)}")
    PRE = int(OPT.get("pre", 8))
    for f in loads[:PRE]: f()
    li = [PRE]; di = [0]
    def next_load(n):
        if li[0] < len(loads):
            kt = li[0] // 4 + 1
            if kt < 9 or n > 4 * (kt - 8) + 5:
                loads[li[0]](); li[0] += 1; return True
        return False
    def next_dma():
        if di[0] < len(dm): dm[di[0]](); di[0] += 1
    Sb = (S0, S1)
    def S_(n, i):
        kt, j = n >> 2, n & 3
        mfma(v(Sb[n & 1], 16), kreg(kt, i), qreg(j, i), "0" if i == 0 else v(Sb[n & 1], 16))
    def PV(n, i):
        kt, j = n >> 2, n & 3
        mfma(v(O + 16 * j, 16), vreg(kt, i), v(P + 4 * i, 4), "0" if (kt == 0 and i == 0) else v(O + 16 * j, 16))
    S_(0, 0); S_(0, 1)
    for n in range(64):
        s = Sb[n & 1]
        e = lambda i: A(f"v_exp_f32 {v(s+i)}, {v(s+i)}")
        c = lambda i: A(f"v_cvt_pk_bf16_f32 {v(P+i)}, {v(s+2*i)}, {v(s+2*i+1)}")
        if n + 1 < 64: S_(n + 1, 0)
        next_load(n)
        e(0); e(1); e(2); c(0); e(3)
        if n > 0: PV(n - 1, 1)
        if n < 12: next_load(n)
        elif n >= 16: next_dma()
        c(1); e(4); e(5); e(6); c(2); e(7)
        if n + 1 < 64: S_(n + 1, 1)
        A.wait_regs(vreg(n >> 2, 0), vreg(n >> 2, 1))
        c(3); e(8); e(9); e(10); c(4); e(11)
        PV(n, 0)
        if n + 2 < 64: A.wait_regs(kreg((n + 2) >> 2, 0), kreg((n + 2) >> 2, 1))
        c(5); e(12); e(13); e(14); e(15); c(6); c(7)
    PV(63, 1)
    assert li[0] == len(loads) and di[0] == len(dm)
    stamp("attn loop done")
    for j in range(1, 4):
        for i in range(4): A(f"ds_write_b128 {v(76+j)}, {v(O+16*j+4*i,4)} offset:{1024*i}")
    A("s_waitcnt vmcnt(0) lgkmcnt(0)")
    A("s_barrier")
    for j in range(3):
        for i in range(4): A(f"ds_read_b128 {v(192+16*j+4*i,4)}, v76 offset:{4096*j+1024*i}")
    for j in range(3):
        for i in range(8): A(f"v_pk_add_f32 {v(O+2*i,2)}, {v(O+2*i,2)}, {v(192+16*j+2*i,2)}")
    def check(den):
        A(f"v_pk_mul_f32 v[72:73], {v(O,2)}, 0")
        for i in range(1, 8): A(f"v_pk_fma_f32 v[72:73], {v(O+2*i,2)}, 0, v[72:73]")
        A(f"v_add_f32 v72, v72, v73")
        A(f"v_add_f32 v72, v72, {den}")
        A(f"s_mov_b32 {sT1}, {fbits(2.0**60)}")
        A(f"v_cmp_nle_f32 {sM}, v72, {sT1}")
        A(f"s_mov_b32 {sT1}, {fbits(2.0**-60)}")
        A(f"v_cmp_nge_f32 vcc, v72, {sT1}")
        A(f"s_or_b64 {sM}, {sM}, vcc")
        A(f"s_or_b32 {sT1}, s98, s99")
        A(f"v_mov_b32 v72, {sT1}")
        A(f"s_mul_i32 {sT2}, {sW}, 12288\n s_add_u32 {sT2}, {sT2}, {L_RED}")
        A(f"v_mov_b32 v73, {sT2}")
        A("ds_write_b32 v73, v72")
    normalize_publish(O, 4 * it + 2, None, check, T=200, F=192)
    A(f"v_mov_b32 v73, {L_RED}")
    A("s_waitcnt lgkmcnt(0)")
    A("s_barrier")
    for w in range(4): A(f"ds_read_b32 {v(72+w) if w != 1 else 'v71'}, v73 offset:{12288*w}")
    A("v_or_b32 v72, v72, v71")
    A("v_or3_b32 v72, v72, v74, v75")
    A(f"v_readfirstlane_b32 {sT1}, v72")
    A(f"s_andn2_b32 {sT1}, {sT1}, {sPASS}")
    A(f"s_cmp_lg_u32 {sT1}, 0")
    Lslow = lab("slow")
    A(f"s_cbranch_scc1 {Lslow}")
    slow.append((Lslow, Lre, it))
    arrive_row()
    stamp("o published")

slow = []
def slow_path(L, Lre, it):
    A.hist = []; A.vm = []; A.lg = []; A.sm = []
    A.label(L)
    A("s_waitcnt vmcnt(0) lgkmcnt(0)")
    A(f"s_mov_b32 {sPASS}, -1")
    A(f"s_add_u32 {sT3}, {sKV}, {WS_KV + it * (4 << 20)}")
    A(f"s_mov_b32 {sT2}, 16")
    for j in range(4): A(f"v_mov_b32 {v(72+j)}, 0xff800000")
    Ll = lab("mx")
    A.label(Ll)
    A(f"buffer_load_dwordx4 {a(RING,4)}, {vL16}, {WS}, {sT3} offen sc1")
    A(f"buffer_load_dwordx4 {a(RING+4,4)}, {vL16}, {WS}, {sT3} offen offset:1024 sc1")
    for j in range(4):
        mfma(v(S0, 16), a(RING, 4), qreg(j, 0), "0")
        mfma(v(S0, 16), a(RING + 4, 4), qreg(j, 1), v(S0, 16))
        for i in range(0, 16, 2): A(f"v_max3_f32 {v(72+j)}, {v(72+j)}, {v(S0+i)}, {v(S0+i+1)}")
    A(f"s_add_u32 {sT3}, {sT3}, 4096")
    A(f"s_sub_u32 {sT2}, {sT2}, 1")
    A(f"s_cmp_lg_u32 {sT2}, 0")
    A.settle()
    A(f"s_cbranch_scc1 {Ll}")
    A("s_barrier")
    for j in range(4):
        A(f"s_add_u32 {sT1}, {sW}, {j}\n s_and_b32 {sT1}, {sT1}, 3\n s_lshl_b32 {sT1}, {sT1}, 10\n s_add_u32 {sT1}, {sT1}, {L_RED + 256*j}")
        A(f"v_lshl_add_u32 v71, {vLANE}, 2, {sT1}")
        A(f"ds_write_b32 v71, {v(72+j)}")
    A(f"s_lshl_b32 {sT1}, {sW}, 10\n s_add_u32 {sT1}, {sT1}, {L_RED}")
    A(f"v_lshl_add_u32 v71, {vLANE}, 2, {sT1}")
    A("s_waitcnt lgkmcnt(0)")
    A("s_barrier")
    for j in range(4): A(f"ds_read_b32 {v(72+j)}, v71 offset:{256*j}")
    A("v_max3_f32 v72, v72, v73, v74")
    A("v_max_f32 v72, v72, v75")
    A("v_mov_b32 v73, v72")
    A("v_permlane32_swap_b32 v73, v72")
    A("v_max_f32 v72, v72, v73")
    A(f"v_add_f32 {vMX}, {vMX}, v72")
    A("s_waitcnt lgkmcnt(0)")
    A("s_barrier")
    A.settle()
    A(f"s_branch {Lre}")

def epilogue():
    if STAMPS:
        stamp("end")
        A(f"s_lshl_b32 {sT1}, s2, 2\n s_add_u32 {sT1}, {sT1}, {sW}\n s_lshl_b32 {sT1}, {sT1}, 8\n s_add_u32 {sT1}, {sT1}, {WS_DBG}")
        A(f"v_lshlrev_b32 v72, 2, {vLANE}")
        A(f"buffer_store_dword v125, v72, {WS}, {sT1} offen")
    A("s_waitcnt vmcnt(0)")
    A.label("L_end")
    A("s_endpgm")
    for args in slow: slow_path(*args)
    A.label("L_code_end")
    A.raw(f""".section .rodata,"a"
.p2align 6
.amdhsa_kernel {NAME}_kernel
  .amdhsa_next_free_vgpr 464
  .amdhsa_next_free_sgpr 102
  .amdhsa_accum_offset 256
  .amdhsa_group_segment_fixed_size 0
  .amdhsa_kernarg_size 80
  .amdhsa_user_sgpr_count 2
  .amdhsa_user_sgpr_kernarg_segment_ptr 1
  .amdhsa_system_sgpr_workgroup_id_x 1
  .amdhsa_float_denorm_mode_32 3
.end_amdhsa_kernel""")

prologue()
p1()
for it in range(2):
    a_rest(it, nat=(it == 0))
    outproj(4 * it + 0, False)
    if it == 0:
        colsum_mfma()
        A("s_waitcnt lgkmcnt(0)\n s_barrier")
        for f in colsum_finish_ops(CSB): f()
    qkv_act(4 * it + 1, CSB, False)
    attention(it)
    outproj(4 * it + 2, it == 1)
    if it == 0: qkv_act(3, CSA, True)
epilogue()

out = OUTF[0] if OUTF else f"cdna_kernels/{NAME}.s"
open(out, "w").write(A.text())
if STAMPS: open(out + ".stamps", "w").write("\n".join(stamp_names))
print(f"wrote {out}: {A.nins} instructions, {A.nnop} nop states")
```

```python
import sys, struct, math
sys.path.insert(0, "work")
from asmgen import Asm

NAME = "interleave_layers__linear_kernel_hedgehog__mha_block__prompt"
STAMPS = "--stamps" in sys.argv
OUTF = [a for a in sys.argv[1:] if not a.startswith("--")]
OPT = {a.split("=")[0][2:]: (a.split("=") + ["1"])[1] for a in sys.argv[1:] if a.startswith("--")}

def fbits(x): return "0x%08x" % struct.unpack("<I", struct.pack("<f", x))[0]
LOG2E = math.log2(math.e)

WS_CTR = 0
WS_ACT = 1 << 20
WS_KV = WS_ACT + 7 * (2 << 20)
WS_KVP = WS_KV + 2 * (4 << 20)
WS_DBG = WS_KVP + 2 * (1 << 20)
WS_END = WS_DBG + (1 << 20)
L_K, L_V, L_Q, L_WO, L_SC = 0, 28672, 57344, 86016, 114688
L_PHI = L_SC
L_KVI = L_SC + 28672
L_CS = L_SC + 32768
L_RS = L_SC + 34816
L_QX = L_SC + 36864
L_MX = L_SC + 45056
L_RED = L_SC
LDS_BYTES = 163840
HIB = 57344
X, WA, WPHI, WOA, WB, WOB, OUT, WS, CODE = ("s[%d:%d]" % (i, i + 3) for i in range(24, 60, 4))
sR, sH, sW = "s60", "s61", "s62"
sBUD = "s63"
sROWC, sCOLC = "s[64:65]", "s[66:67]"
sACT, sPUB, sKV, sKVP = "s68", "s69", "s70", "s71"
sG = ["s%d" % i for i in range(72, 80)]
sHI, sLO, sONE28, sEVEN = "s[80:81]", "s[82:83]", "s[84:85]", "s[86:87]"
sONE, sT0, sT1, sT2, sT3 = "s88", "s89", "s90", "s91", "s92"
sC10, sC01 = "s93", "s94"
sPASS = "s95"
sST = "s[96:97]"
sM = "s[98:99]"
vLANE, vL16 = "v0", "v1"
vA = ["v2", "v3", "v4"]; vAH = ["v5", "v6", "v7"]
vN, vNH = "v8", "v9"
vGX, vGM, vWD, vWOD, vXO = "v10", "v11", "v12", "v13", "v14"
vMX = "v15"
Y, AK, AV, AQ = 16, 32, 48, 64
ACT = 128
vRSTD, vMB0 = "v124", 126
vSTAMP = "a250"
RING = 0
WR = 128
CSA, CSB = 160, 166
WP = 172
QA = 180

def v(i, n=1): return "v%d" % i if n == 1 else "v[%d:%d]" % (i, i + n - 1)
def a(i, n=1): return "a%d" % i if n == 1 else "a[%d:%d]" % (i, i + n - 1)

A = Asm()
nstamp = [0]
stamp_names = []
def stamp(name):
    if not STAMPS: return
    i = nstamp[0]; nstamp[0] += 1
    stamp_names.append(name)
    A(f"{'s_memtime' if 'cyc' in OPT else 's_memrealtime'} {sST}")
    A("s_waitcnt lgkmcnt(0)")
    A(f"v_writelane_b32 v125, s96, {i}")

uid = [0]
def lab(p):
    uid[0] += 1
    return f"L_{p}_{uid[0]}"

def mfma(d, x, y, c, k16=True):
    A(f"v_mfma_f32_32x32x16_bf16 {d}, {x}, {y}, {c}")

def exec_set(m): A(f"s_mov_b64 exec, {m}")

def arrive(ctr):
    A("s_waitcnt vmcnt(0)")
    A(f"s_atomic_add {sONE}, {ctr}, 0")

def wait_ctr(ctr, target):
    L, Lo = lab("poll"), lab("go")
    A("s_waitcnt lgkmcnt(0)")
    A.label(L)
    A(f"s_mov_b32 {sT0}, 0")
    A(f"s_atomic_add {sT0}, {ctr}, 0 glc")
    A(f"s_sub_u32 {sBUD}, {sBUD}, 1")
    A(f"s_cbranch_scc1 {Lo}_to")
    A("s_waitcnt lgkmcnt(0)")
    A(f"s_cmp_lt_u32 {sT0}, {target}")
    A(f"s_cbranch_scc1 {L}")
    A(f"s_branch {Lo}")
    A.label(Lo + "_to")
    A(f"s_mov_b32 {sBUD}, 0")
    A("s_waitcnt lgkmcnt(0)")
    A.label(Lo)

def ksteps_act():
    out = []
    for Q in range(4):
        out.append((ACT + 32 * Q + 26, 2, 7 * (4 * Q) + 5, 7 * (4 * Q + 1) + 5))
    for Q in range(4):
        for i in range(4):
            out.append((ACT + 32 * Q + 4 * i, 0, 7 * (4 * Q + i), 7 * (4 * Q + i) + 2))
        for j in range(2):
            out.append((ACT + 32 * Q + 16 + 4 * j, 1, 7 * (4 * Q + 2 * j) + 4, 7 * (4 * Q + 2 * j) + 6))
    return out
def ksteps_nat():
    return [(ACT + 4 * s, None, 4 * s, 4 * s + 1) for s in range(28)]

def tr_read(dst, ks, tile_off):
    _, b, g0, g1 = ks
    hi = tile_off >= HIB
    base = (vNH if hi else vN) if b is None else (vAH[b] if hi else vA[b])
    off = tile_off - (HIB if hi else 0)
    A(f"ds_read_b64_tr_b16 {a(dst,2)}, {base} offset:{off + g0*256}")
    A(f"ds_read_b64_tr_b16 {a(dst+2,2)}, {base} offset:{off + g1*256}")

class Gemm:
    def __init__(self, ks, tiles):
        self.ks, self.tiles = ks, tiles
        self.nt = len(tiles)
        self.depth = min(8 // self.nt, 15 // (2 * self.nt) + 1, 4 if self.nt > 1 else 6)
        self.issued = 0
    def slot(self, s, t): return WR + 4 * ((s % (8 // self.nt)) * self.nt + t)
    def prefetch(self):
        while self.issued < self.depth - 1:
            self.issue()
    def issue(self):
        s = self.issued
        if s < len(self.ks):
            for t, (acc, off, tr, c0) in enumerate(self.tiles):
                tr_read(self.slot(s, t), self.ks[s], off)
        self.issued += 1
    def run(self, fill=None):
        fill = fill or {}
        self.prefetch()
        for s, k in enumerate(self.ks):
            for t, (acc, off, tr, c0) in enumerate(self.tiles):
                wf, af = a(self.slot(s, t), 4), v(k[0], 4)
                c = c0 if s == 0 else v(acc, 16)
                if tr: mfma(v(acc, 16), wf, af, c)
                else: mfma(v(acc, 16), af, wf, c)
                if t == 0: self.issue()
                f = fill.get((s, t))
                if f: f()

def rank1(acc, cs, tr):
    if tr: A(f"v_mfma_f32_32x32x8_bf16 {v(acc,16)}, {a(cs,2)}, {v(vMB0,2)}, {v(acc,16)}")
    else: A(f"v_mfma_f32_32x32x8_bf16 {v(acc,16)}, {v(vMB0,2)}, {a(cs,2)}, {v(acc,16)}")

def gather_setup(buf):
    A(f"s_add_u32 {sG[0]}, {sACT}, {WS_ACT + buf * (2 << 20)}")
    for i in range(1, 8): A(f"s_add_u32 {sG[i]}, {sG[0]}, {4096 * i}")

def gather(stats):
    for Q in range(4):
        R = ACT + 32 * Q
        if stats:
            A(f"buffer_load_dwordx4 {v(R+24,4)}, {vGM}, {WS}, {sG[2*Q]} offen offset:1536 sc1")
            A(f"buffer_load_dwordx4 {v(R+28,4)}, {vGM}, {WS}, {sG[2*Q]} offen offset:3584 sc1")
        else:
            A(f"buffer_load_dwordx2 {v(R+26,2)}, {vGM}, {WS}, {sG[2*Q]} offen offset:1544 sc1")
            A(f"buffer_load_dwordx2 {v(R+28,2)}, {vGM}, {WS}, {sG[2*Q]} offen offset:3584 sc1")
    for Q in range(4):
        R = ACT + 32 * Q
        for i in range(4):
            A(f"buffer_load_dwordx4 {v(R+4*i,4)}, {vL16}, {WS}, {sG[2*Q+(i>>1)]} offen offset:{2048*(i&1)} sc1")
        for j in range(2):
            A(f"buffer_load_dwordx4 {v(R+16+4*j,4)}, {vGX}, {WS}, {sG[2*Q+j]} offen offset:1024 sc1")

def dma_list(srd, tiles):
    out = []
    for (lo, col, wo) in tiles:
        stride = 896 if wo else 2688
        for i in range(7):
            def f(lo=lo, col=col, wo=wo, i=i, stride=stride):
                A(f"s_mul_i32 {sT1}, {sW}, {7 * 1024}")
                A(f"s_add_u32 m0, {sT1}, {lo + i * 1024}")
                A(f"s_mul_i32 {sT1}, {sW}, {7 * 16 * stride}")
                A(f"s_add_u32 {sT1}, {sT1}, {i * 16 * stride + col}")
                A(f"buffer_load_dwordx4 {vWOD if wo else vWD}, {srd}, {sT1} offen lds")
            out.append(f)
    return out
T_K, T_V, T_Q, T_WO = (L_K, 896, False), (L_V, 1792, False), (L_Q, 0, False), (L_WO, 0, True)

def both_halves_sum(x, t):
    A(f"v_mov_b32 {t}, {x}")
    A(f"v_permlane32_swap_b32 {t}, {x}")
    A(f"v_add_f32 {x}, {x}, {t}")

def stats_finish_ops(s, q, t):
    ops = []
    P = lambda txt: ops.append(lambda: A(txt))
    P(f"v_mov_b32 {t}, {s}")
    P(f"v_permlane32_swap_b32 {t}, {s}")
    P(f"v_add_f32 {s}, {s}, {t}")
    P(f"v_mov_b32 {t}, {q}")
    P(f"v_permlane32_swap_b32 {t}, {q}")
    P(f"v_add_f32 {q}, {q}, {t}")
    P(f"v_mul_f32 {s}, {fbits(-1.0/448)}, {s}")
    P(f"v_mul_f32 {q}, {fbits(1.0/448)}, {q}")
    P(f"v_fma_f32 {q}, -{s}, {s}, {q}")
    P(f"v_max_f32 {q}, 0, {q}")
    P(f"v_add_f32 {q}, {fbits(1e-5)}, {q}")
    P(f"v_rsq_f32 {vRSTD}, {q}")
    P(f"v_cndmask_b32 {s}, {s}, 0, {sHI}")
    P(f"v_cvt_pk_bf16_f32 {v(vMB0+1)}, {s}, 0")
    P(f"v_lshlrev_b32 {t}, 16, {v(vMB0+1)}")
    P(f"v_sub_f32 {t}, {s}, {t}")
    P(f"v_cvt_pk_bf16_f32 {v(vMB0)}, {s}, {t}")
    return ops

def stats_gather_ops(s, q):
    ops = []
    P = lambda txt: ops.append(lambda: A(txt))
    P(f"v_add_f32 {s}, {v(ACT+24)}, {v(ACT+30)}")
    P(f"v_add_f32 {q}, {v(ACT+25)}, {v(ACT+31)}")
    for Q in range(1, 4):
        R = ACT + 32 * Q
        P(f"v_add_f32 {s}, {s}, {v(R+24)}")
        P(f"v_add_f32 {q}, {q}, {v(R+25)}")
        P(f"v_add_f32 {s}, {s}, {v(R+30)}")
        P(f"v_add_f32 {q}, {q}, {v(R+31)}")
    return ops

def spread(ops, slots, per):
    fill = {}
    i = 0
    for sl in slots:
        chunk = ops[i:i + per]; i += per
        if chunk: fill[sl] = (lambda ch=chunk: [f() for f in ch])
    assert i >= len(ops), (i, len(ops))
    return fill

def scale_cvt(dst, acc, sc, n=8):
    reg, sel = sc
    for i in range(n):
        A(f"v_pk_mul_f32 {v(acc+2*i,2)}, {v(acc+2*i,2)}, {v(reg,2)} op_sel:[0,{sel}] op_sel_hi:[1,{sel}]")
    for i in range(n):
        A(f"v_cvt_pk_bf16_f32 {v(dst+i)}, {v(acc+2*i)}, {v(acc+2*i+1)}")

def colsum_mfma():
    ones = 80
    for i in range(4): A(f"v_mov_b32 {v(ones+i)}, 0x3f803f80")
    A(f"s_mul_i32 {sT1}, {sW}, {7*1024}")
    A(f"v_add_u32 v84, {sT1}, {vN}")
    A(f"v_add_u32 v85, {HIB}, v84")
    seq = [(i, t) for i in range(7) for t in range(3)]
    offs = (L_K, L_V, L_Q); accs = (AK, AV, AQ)
    def rd(n):
        if n >= len(seq): return
        i, t = seq[n]
        base, off = ("v85", offs[t] - HIB) if offs[t] >= HIB else ("v84", offs[t])
        A(f"ds_read_b64_tr_b16 {a(WR+4*(n%8),2)}, {base} offset:{off + i*1024}")
        A(f"ds_read_b64_tr_b16 {a(WR+4*(n%8)+2,2)}, {base} offset:{off + i*1024 + 256}")
    for n in range(5): rd(n)
    for n, (i, t) in enumerate(seq):
        mfma(v(accs[t], 16), v(ones, 4), a(WR + 4 * (n % 8), 4), "0" if i == 0 else v(accs[t], 16))
        rd(n + 5)
    A(f"v_and_b32 v84, 31, {vLANE}")
    A(f"s_mul_i32 {sT1}, {sW}, 384")
    A(f"s_add_u32 {sT1}, {sT1}, {L_CS}")
    A(f"v_lshl_add_u32 v85, v84, 2, {sT1}")
    for t in range(3): A(f"ds_write_b32 v85, {v(accs[t])} offset:{128*t}")

def colsum_finish_ops(cs):
    ops = []
    P = lambda txt: ops.append(lambda: A(txt))
    P(f"v_and_b32 v84, 31, {vLANE}")
    P(f"v_lshlrev_b32 v84, 2, v84")
    P(f"v_add_u32 v84, {L_CS}, v84")
    for t in range(3):
        for w in range(4): P(f"ds_read_b32 {v(88+4*t+w)}, v84 offset:{384*w+128*t}")
    for t in range(3):
        r = 88 + 4 * t
        P(f"v_add_f32 {v(r)}, {v(r)}, {v(r+1)}")
        P(f"v_add_f32 {v(r+2)}, {v(r+2)}, {v(r+3)}")
        P(f"v_add_f32 {v(r)}, {v(r)}, {v(r+2)}")
        P(f"v_cvt_pk_bf16_f32 {v(r+1)}, {v(r)}, {v(r)}")
        P(f"v_and_b32 {v(r+2)}, 0xffff0000, {v(r+1)}")
        P(f"v_sub_f32 {v(r+2)}, {v(r)}, {v(r+2)}")
        P(f"v_cvt_pk_bf16_f32 {v(r+2)}, {v(r+2)}, 0")
        P(f"v_accvgpr_write_b32 {a(cs+2*t)}, {v(r+1)}")
        P(f"v_accvgpr_write_b32 {a(cs+2*t+1)}, {v(r+2)}")
    return ops

def phi(P, E, dp, dm, T):
    mx, nm, t0, t1 = v(T), v(T + 1), v(T + 2), v(T + 3)
    A(f"v_max3_f32 {mx}, {v(P)}, {v(P+1)}, {v(P+2)}")
    A(f"v_max3_f32 {nm}, -{v(P)}, -{v(P+1)}, -{v(P+2)}")
    for i in range(3, 13, 2):
        A(f"v_max3_f32 {mx}, {mx}, {v(P+i)}, {v(P+i+1)}")
        A(f"v_max3_f32 {nm}, {nm}, -{v(P+i)}, -{v(P+i+1)}")
    A(f"v_max_f32 {mx}, {mx}, {v(P+13)}")
    A(f"v_max_f32_e64 {nm}, {nm}, -{v(P+13)}")
    A(f"v_permlane32_swap_b32 {mx}, {nm}")
    A(f"v_max_f32 {nm}, {mx}, {nm}")
    A(f"v_mov_b32 {mx}, {nm}")
    A(f"v_permlane32_swap_b32 {mx}, {nm}")
    for i in range(7):
        A(f"v_pk_add_f32 {v(E+2*i,2)}, {v(P+2*i,2)}, {v(T,2)} op_sel:[0,0] op_sel_hi:[1,0] neg_lo:[0,1] neg_hi:[0,1]")
        A(f"v_pk_add_f32 {v(P+2*i,2)}, {v(P+2*i,2)}, {v(T,2)} op_sel:[0,1] op_sel_hi:[1,1] neg_lo:[1,1] neg_hi:[1,1]")
    for i in range(14):
        A(f"v_exp_f32 {v(E+i)}, {v(E+i)}")
        A(f"v_exp_f32 {v(P+i)}, {v(P+i)}")
    A(f"v_pk_add_f32 {v(T,2)}, {v(E,2)}, {v(E+2,2)}")
    A(f"v_pk_add_f32 {v(T+2,2)}, {v(P,2)}, {v(P+2,2)}")
    for i in range(2, 7):
        A(f"v_pk_add_f32 {v(T,2)}, {v(T,2)}, {v(E+2*i,2)}")
        A(f"v_pk_add_f32 {v(T+2,2)}, {v(T+2,2)}, {v(P+2*i,2)}")
    A(f"v_add_f32 {mx}, {mx}, {nm}")
    A(f"v_add_f32 {nm}, {t0}, {t1}")
    A(f"v_mov_b32 {v(dp+7)}, 0")
    A(f"v_permlane32_swap_b32 {mx}, {nm}")
    A(f"v_add_f32 {nm}, {mx}, {nm}")
    A(f"v_rcp_f32 {nm}, {nm}")
    A(f"v_mov_b32 {v(dm+7)}, 0")
    A(f"v_mov_b32 {mx}, {nm}")
    A(f"v_permlane32_swap_b32 {mx}, {nm}")
    scale_cvt(dp, E, (T, 0), 7)
    scale_cvt(dm, P, (T, 1), 7)

def publish_act(F, buf):
    A(f"s_add_u32 {sT1}, {sPUB}, {WS_ACT + buf * (2 << 20)}")
    A(f"buffer_store_dwordx4 {v(F,4)}, {vL16}, {WS}, {sT1} offen sc1")
    A(f"buffer_store_dwordx4 {v(F+4,4)}, {vL16}, {WS}, {sT1} offen offset:1024 sc1")

def normalize_publish(D, buf, eps, pre=None, T=104, F=96):
    A(f"v_mov_b32 {v(T)}, {v(D+12)}")
    A(f"v_mov_b32 {v(T+1)}, {v(D+12)}")
    A(f"v_permlane32_swap_b32 {v(T)}, {v(T+1)}")
    if eps: A(f"v_add_f32 {v(T+1)}, {fbits(eps)}, {v(T+1)}")
    if pre: pre(v(T + 1))
    A(f"v_rcp_f32 {v(T)}, {v(T+1)}")
    scale_cvt(F, D, (T, 0), 8)
    exec_set(sEVEN)
    A(f"v_mov_b32 {v(F+6)}, {v(F+4)}")
    A(f"v_mov_b32 {v(F+7)}, {v(F+5)}")
    exec_set("-1")
    publish_act(F, buf)

rowc, colc = [0], [0]
def arrive_row(): arrive(sROWC); rowc[0] += 16
def arrive_col(): arrive(sCOLC); colc[0] += 16
def wait_row(): wait_ctr(sROWC, rowc[0])
def wait_col(): wait_ctr(sCOLC, colc[0])

def prologue():
    A.raw(f"""; @launch grid=(256,1,1) block=(256,1,1) lds={LDS_BYTES}
.amdgcn_target "amdgcn-amd-amdhsa--gfx950"
.text
.globl {NAME}_kernel
.p2align 8
.type {NAME}_kernel,@function
{NAME}_kernel:""")
    A("s_cmp_ge_u32 s2, 256")
    A("s_cbranch_scc1 L_end")
    A("s_load_dwordx16 s[4:19], s[0:1], 0")
    A("s_load_dwordx4 s[20:23], s[0:1], 64")
    A("s_getpc_b64 s[56:57]")
    A("s_and_b32 s56, s56, 0xffffff00")
    A("s_and_b32 s57, s57, 0xffff")
    A(f"s_mov_b32 s58, L_code_end-{NAME}_kernel")
    A("s_mov_b32 s59, 0x20000")
    A("v_lshlrev_b32 v2, 7, v0")
    A(f"buffer_load_dword v250, v2, {CODE}, 0 offen")
    A("v_add_u32 v2, 0x8000, v2")
    A(f"buffer_load_dword v251, v2, {CODE}, 0 offen")
    A("v_lshrrev_b32 v1, 6, v0")
    A(f"v_readfirstlane_b32 {sW}, v1")
    A("v_and_b32 v0, 63, v0")
    if STAMPS: A("v_mov_b32 v125, 0")
    stamp("start")
    A("s_and_b32 s89, s2, 7")
    A("s_lshl_b32 s89, s89, 1")
    A("s_bfe_u32 s90, s2, 0x10003")
    A(f"s_add_u32 {sR}, s89, s90")
    A(f"s_lshr_b32 {sH}, s2, 4")
    A(f"s_mov_b32 {sBUD}, 0x40000")
    A(f"s_mov_b32 {sONE}, 1")
    A(f"s_mov_b32 {sC10}, 0x00003f80")
    A(f"s_mov_b32 {sC01}, 0x3f800000")
    A("s_mov_b32 s80, 0\n s_mov_b32 s81, -1\n s_mov_b32 s82, -1\n s_mov_b32 s83, 0")
    A("s_mov_b32 s84, 0x10000000\n s_mov_b32 s85, 0x10000000")
    A(f"s_bitcmp1_b32 {sH}, 0")
    A(f"s_cselect_b64 {sEVEN}, 0, {sHI}")
    A(f"s_lshl_b32 s89, {sR}, 2\n s_add_u32 s89, s89, {sW}")
    A(f"s_lshl_b32 s90, {sH}, 2\n s_add_u32 s90, s90, {sW}")
    A(f"s_lshl_b32 {sACT}, s89, 15")
    A(f"s_lshl_b32 s91, {sH}, 11\n s_add_u32 {sPUB}, {sACT}, s91")
    A(f"s_lshl_b32 {sKV}, s90, 16")
    A(f"s_lshl_b32 {sKVP}, s90, 14")
    A(f"v_lshlrev_b32 {vL16}, 4, {vLANE}")
    A(f"v_and_b32 v80, 31, {vLANE}")
    A(f"v_lshrrev_b32 v81, 5, {vLANE}")
    A(f"s_lshl_b32 s91, s89, 5")
    A(f"v_add_u32 v82, s91, v80")
    A(f"v_mul_u32_u24 v82, 896, v82")
    A(f"v_lshl_add_u32 v15, v81, 4, v82")
    A(f"s_mul_i32 s92, {sH}, 56")
    A(f"v_lshl_add_u32 {vXO}, v81, 3, v82")
    A(f"v_add_u32 {vXO}, s92, {vXO}")
    A(f"v_lshrrev_b32 v83, 2, {vLANE}")
    A(f"v_and_b32 v84, 3, {vLANE}")
    A(f"v_lshl_add_u32 v84, v84, 4, s92")
    A(f"v_mul_u32_u24 {vWD}, 2688, v83")
    A(f"v_add_u32 {vWD}, {vWD}, v84")
    A(f"v_mul_u32_u24 {vWOD}, 896, v83")
    A(f"v_add_u32 {vWOD}, {vWOD}, v84")
    A("s_waitcnt lgkmcnt(0)")
    stamp("kernargs")
    for srd, p, size in ((24, 4, 1835008), (28, 6, 1204224), (32, 8, 25088), (36, 10, 401408), (40, 14, 1204224),
                         (44, 16, 401408), (48, 18, 1835008), (52, 22, WS_END)):
        A(f"s_mov_b32 s{srd}, s{p}\n s_and_b32 s{srd+1}, s{p+1}, 0xffff\n s_mov_b32 s{srd+2}, {size}\n s_mov_b32 s{srd+3}, 0x20000")
    A(f"s_lshl_b32 s91, s89, 7\n s_add_u32 s64, s22, s91\n s_addc_u32 s65, s23, 0")
    A(f"s_lshl_b32 s91, s90, 7\n s_add_u32 s91, s91, 8192\n s_add_u32 s66, s22, s91\n s_addc_u32 s67, s23, 0")
    A(f"s_or_b32 s91, s2, {sW}")
    A("s_cmp_lg_u32 s91, 0")
    A("s_cbranch_scc1 L_noinit")
    vm_save = list(A.vm)
    A(f"v_lshlrev_b32 v84, 7, {vLANE}")
    A("v_mov_b32 v85, 0")
    A(f"buffer_store_dword v85, v84, {WS}, 0 offen sc1")
    A("v_add_u32 v84, 8192, v84")
    A(f"buffer_store_dword v85, v84, {WS}, 0 offen sc1")
    A("s_waitcnt vmcnt(0)")
    A(f"s_atomic_add {sONE}, s[20:21], 0")
    A.settle()
    A.label("L_noinit")
    A.vm = vm_save
    for s in range(28):
        A(f"buffer_load_dwordx4 {v(ACT+4*s,4)}, v15, {X}, 0 offen offset:{32*s}")
    for f in dma_list(WA, (T_K, T_V, T_Q)): f()
    stamp("loads issued")
    A(f"v_and_b32 v83, 15, {vLANE}")
    A(f"v_lshrrev_b32 v84, 2, v83")
    A(f"v_lshlrev_b32 v84, 6, v84")
    A(f"v_and_b32 v83, 3, v83")
    A(f"v_lshl_add_u32 v84, v83, 3, v84")
    A(f"v_bfe_u32 v83, {vLANE}, 4, 1")
    A(f"v_lshl_add_u32 v84, v83, 5, v84")
    A(f"v_lshl_add_u32 {vA[0]}, v81, 8, v84")
    A(f"v_mul_u32_u24 v83, 1792, v81")
    A(f"v_add_u32 {vA[1]}, v83, v84")
    A(f"v_lshl_add_u32 {vA[2]}, v83, 1, v84")
    for i in range(3): A(f"v_add_u32 {vAH[i]}, {HIB}, {vA[i]}")
    A(f"v_lshl_add_u32 {vN}, v81, 9, v84")
    A(f"v_add_u32 {vNH}, {HIB}, {vN}")
    A(f"v_lshlrev_b32 v83, 4, v80")
    A(f"v_lshl_add_u32 {vGX}, v81, 11, v83")
    A(f"v_lshl_add_u32 {vGM}, v81, 12, v83")
    for g in range(4): A(f"buffer_load_dwordx2 {v(96+2*g,2)}, {vXO}, {X}, 0 offen offset:{16*g}")
    A(f"v_lshrrev_b32 v83, 3, v80")
    A(f"v_and_b32 v84, 3, v80")
    A(f"v_lshl_add_u32 v83, v83, 2, v84")
    A(f"v_bfe_u32 v84, v80, 2, 1")
    A(f"v_mad_u32_u24 v84, v84, 14, v83")
    A(f"s_mul_i32 s91, {sH}, 1568")
    A(f"v_lshl_add_u32 v84, v84, 1, s91")
    A(f"v_mul_u32_u24 v85, 224, v81")
    A(f"v_add_u32 v84, v84, v85")
    A(f"v_mov_b32 v86, 0x40000000")
    A(f"v_cmp_gt_u32 {sM}, 14, v83")
    A(f"v_cndmask_b32 v84, v86, v84, {sM}")
    A(f"v_cndmask_b32 v85, v84, v86, {sHI}")

def wphi_loads():
    for u in range(2):
        for e in range(8):
            d0 = 16 * u + 8 * (e >> 2) + (e & 3)
            ad = "v85" if (u == 1 and e >= 4) else "v84"
            op = "buffer_load_short_d16_hi" if e & 1 else "buffer_load_ushort"
            A(f"{op} {v(104+8*u+e)}, {ad}, {WPHI}, 0 offen offset:{56*d0}")

def p1():
    A(f"s_mov_b32 {sT1}, 0x3f803f80")
    for i in range(112):
        r = ACT + i
        if i == 64: wphi_loads()
        if i == 1: stamp("first x")
        A(f"v_dot2_f32_bf16 {v(64+(i&1))}, {v(r)}, {v(r)}, {'0' if i < 2 else v(64+(i&1))}")
        A(f"v_dot2_f32_bf16 {v(66+(i&1))}, {v(r)}, {sT1}, {'0' if i < 2 else v(66+(i&1))}")
    A("v_add_f32 v120, v66, v67")
    A("v_add_f32 v121, v64, v65")
    stamp("x stats")
    for f in stats_finish_ops("v120", "v121", "v122"): f()
    for g in range(4):
        for j in range(2):
            A(f"v_lshlrev_b32 {v(Y+4*g+2*j)}, 16, {v(96+2*g+j)}")
            A(f"v_and_b32 {v(Y+4*g+2*j+1)}, 0xffff0000, {v(96+2*g+j)}")
    for i in range(8):
        A(f"v_or_b32 {v(104+2*i)}, {v(104+2*i)}, {v(105+2*i)}")
        A(f"v_accvgpr_write_b32 {a(WP+i)}, {v(104+2*i)}")
    A("s_waitcnt vmcnt(0)")
    A("s_barrier")
    stamp("W landed")
    colsum_mfma()
    stamp("colsum")
    g = Gemm(ksteps_nat(), [(AK, L_K, True, "0"), (AV, L_V, True, "0")])
    ops = [lambda: A("s_waitcnt lgkmcnt(0)\n s_barrier")] + colsum_finish_ops(CSA)
    fill = spread(ops, [(s, t) for s in range(4, 28) for t in range(2)], 1)
    g.run(fill)
    rank1(AK, CSA, True); rank1(AV, CSA + 2, True)
    stamp("p1 gemm")
    L = lab("init")
    A("v_mov_b32 v80, 0")
    A.label(L)
    A(f"global_load_dword v81, v80, s[20:21] sc1")
    A(f"s_sub_u32 {sBUD}, {sBUD}, 1")
    A(f"s_cbranch_scc1 {L}_to")
    A(f"v_readfirstlane_b32 {sT0}, v81")
    A(f"s_cmp_eq_u32 {sT0}, 0")
    A(f"s_cbranch_scc1 {L}")
    A(f"s_branch {L}_go")
    A.label(L + "_to")
    A(f"s_mov_b32 {sBUD}, 0")
    A("s_waitcnt vmcnt(0)")
    A.label(L + "_go")

def qkv_act(buf, cs, v_tr):
    g = Gemm(ksteps_act(), [(AK, L_K, True, "0"), (AV, L_V, v_tr, "0")])
    gather_setup(buf)
    g.prefetch()
    wait_row()
    stamp("y ready")
    gather(True)
    ops = stats_gather_ops("v120", "v121") + stats_finish_ops("v120", "v121", "v122")
    if not v_tr:
        ops.append(lambda: A(f"v_and_b32 v122, 31, {vLANE}"))
        ops.append(lambda: A(f"s_lshl_b32 {sT1}, {sW}, 7\n s_add_u32 {sT1}, {sT1}, {L_RS}"))
        ops.append(lambda: A(f"v_lshl_add_u32 v122, v122, 2, {sT1}"))
        ops.append(lambda: A(f"ds_write_b32 v122, {vRSTD}"))
        ops.append(lambda: A(f"v_lshrrev_b32 v122, 5, {vLANE}"))
        ops.append(lambda: A(f"v_lshl_add_u32 v122, v122, 4, {sT1}"))
        for gi in range(4):
            ops.append(lambda gi=gi: A(f"ds_read_b128 {v(96+4*gi,4)}, v122 offset:{32*gi}"))
    fill = spread(ops, [(s, t) for s in range(3, 27) for t in range(2)], 2)
    g.run(fill)
    rank1(AK, cs, True); rank1(AV, cs + 2, v_tr)

def a_rest(it, nat):
    stamp("A gemm done")
    A(f"v_mul_f32 v122, {fbits(LOG2E)}, {vRSTD}")
    scale_cvt(80, AK, (122, 0), 8)
    mfma(v(AQ, 16), a(WP, 4), v(80, 4), "0")
    mfma(v(AQ, 16), a(WP + 4, 4), v(84, 4), v(AQ, 16))
    scale_cvt(104, AV, (124, 0), 8)
    exec_set(sHI)
    A("v_mov_b32 v110, 0x00003f80\n v_mov_b32 v111, 0")
    exec_set("-1")
    A(f"v_and_b32 v32, 31, {vLANE}")
    A(f"s_lshl_b32 {sT1}, {sW}, 5")
    A(f"v_add_u32 v32, {sT1}, v32")
    A(f"v_mul_u32_u24 v32, 200, v32")
    A(f"v_lshrrev_b32 v33, 5, {vLANE}")
    A(f"v_lshl_add_u32 v32, v33, 3, v32")
    A(f"v_add_u32 v32, {L_PHI}, v32")
    for gi in range(4): A(f"ds_write_b64 v32, {v(104+2*gi,2)} offset:{128+16*gi}")
    phi(AQ, 88, 104, 112, 120)
    for sg in range(2):
        for gi in range(4): A(f"ds_write_b64 v32, {v(104+8*sg+2*gi,2)} offset:{64*sg+16*gi}")
    A(f"v_and_b32 v33, 15, {vLANE}")
    A(f"v_lshrrev_b32 v34, 2, v33")
    A(f"v_lshrrev_b32 v35, 4, {vLANE}")
    A(f"v_lshl_add_u32 v34, v35, 3, v34")
    A(f"v_mul_u32_u24 v34, 200, v34")
    A(f"v_and_b32 v33, 3, v33")
    A(f"v_lshl_add_u32 v34, v33, 3, v34")
    A(f"v_add_u32 v34, {L_PHI}, v34")
    A(f"s_lshl_b32 {sT1}, {sW}, 5")
    A(f"v_add_u32 v33, {sT1}, v34")
    A("s_waitcnt lgkmcnt(0)")
    A("s_barrier")
    def rd(tb):
        R = WR + 12 * (tb & 1)
        for q in range(2): A(f"ds_read_b64_tr_b16 {a(R+2*q,2)}, v33 offset:{(tb*32+4*q)*200}")
        for dt in range(2):
            for q in range(2): A(f"ds_read_b64_tr_b16 {a(R+4+4*dt+2*q,2)}, v34 offset:{(tb*32+4*q)*200+128+32*dt}")
    rd(0); rd(1)
    for tb in range(4):
        R = WR + 12 * (tb & 1)
        for dt in range(2):
            A(f"v_mfma_f32_16x16x32_bf16 {v(36+4*dt,4)}, {a(R,4)}, {a(R+4+4*dt,4)}, {'0' if tb == 0 else v(36+4*dt,4)}")
        if tb + 2 < 4: rd(tb + 2)
    A(f"s_lshl_b32 {sT1}, {sR}, 10")
    A(f"s_add_u32 {sT1}, {sT1}, {sKVP}")
    A(f"s_add_u32 {sT1}, {sT1}, {WS_KVP + it * (1 << 20)}")
    for i in range(4): A(f"v_cvt_pk_bf16_f32 {v(44+i)}, {v(36+2*i)}, {v(37+2*i)}")
    A(f"buffer_store_dwordx4 {v(44,4)}, {vL16}, {WS}, {sT1} offen sc1")
    g = Gemm(ksteps_nat() if nat else ksteps_act(), [(AQ, L_Q, True, "0")])
    arrive_col()
    stamp("kvp published")
    dm = dma_list(WOA, (T_WO,)) + dma_list(WB, (T_K, T_V))
    g.run(spread(dm, [(s, 0) for s in range(28)], 1))
    rank1(AQ, CSA + 4, True)
    A(f"v_mul_f32 v122, {fbits(LOG2E)}, {vRSTD}")
    scale_cvt(80, AQ, (122, 0), 8)
    mfma(v(AQ, 16), a(WP, 4), v(80, 4), "0")
    mfma(v(AQ, 16), a(WP + 4, 4), v(84, 4), v(AQ, 16))
    A(f"s_add_u32 {sG[0]}, {sKVP}, {WS_KVP + it * (1 << 20)}")
    for i in range(1, 4): A(f"s_add_u32 {sG[i]}, {sG[0]}, {4096*i}")
    A(f"v_lshrrev_b32 v33, 4, {vLANE}")
    A(f"v_and_b32 v34, 1, v33")
    A(f"v_lshlrev_b32 v34, 9, v34")
    A(f"v_lshrrev_b32 v33, 1, v33")
    A(f"v_lshl_add_u32 v34, v33, 3, v34")
    A(f"v_and_b32 v33, 15, {vLANE}")
    A(f"v_lshl_add_u32 v34, v33, 4, v34")
    A(f"s_lshl_b32 {sT1}, {sW}, 10")
    A(f"s_add_u32 {sT1}, {sT1}, {L_KVI}")
    A(f"v_add_u32 v34, {sT1}, v34")
    A(f"v_add_u32 v35, {L_KVI}, {vL16}")
    phi(AQ, 88, 104, 112, 120)
    stamp("phi_q done")
    wait_col()
    stamp("kvp ready")
    for r in range(16):
        A(f"buffer_load_dwordx4 {v(ACT+4*r,4)}, {vL16}, {WS}, {sG[r>>2]} offen offset:{1024*(r&3)} sc1")
    for r in range(16):
        for i in range(4):
            A(f"v_dot2_f32_bf16 {v(80+2*i)}, {v(ACT+4*r+i)}, {sC10}, {'0' if r == 0 else v(80+2*i)}")
            A(f"v_dot2_f32_bf16 {v(81+2*i)}, {v(ACT+4*r+i)}, {sC01}, {'0' if r == 0 else v(81+2*i)}")
    for i in range(4): A(f"v_cvt_pk_bf16_f32 {v(88+i)}, {v(80+2*i)}, {v(81+2*i)}")
    for dt in range(2): A(f"ds_write_b64 v34, {v(88+2*dt,2)} offset:{256*dt}")
    A("s_waitcnt lgkmcnt(0)")
    A("s_barrier")
    for u in range(4): A(f"ds_read_b128 {a(WR+4*u,4)}, v35 offset:{1024*u}")
    for u in range(4): mfma(v(AK, 16), a(WR + 4 * u, 4), v(104 + 4 * u, 4), "0" if u == 0 else v(AK, 16))
    normalize_publish(AK, 4 * it + 0, 1e-6)
    arrive_row()
    stamp("o published")
    for f in dma_list(WB, (T_Q,)): f()

def outproj(buf, last):
    g = Gemm(ksteps_act(), [(Y, L_WO, True, v(Y, 16))])
    gather_setup(buf)
    g.prefetch()
    wait_row()
    stamp("o ready")
    gather(False)
    g.run()
    F = 96
    if last:
        for i in range(8): A(f"v_cvt_pk_bf16_f32 {v(F+i)}, {v(Y+2*i)}, {v(Y+2*i+1)}")
        for gi in range(3): A(f"buffer_store_dwordx2 {v(F+2*gi,2)}, {vXO}, {OUT}, 0 offen offset:{16*gi}")
        exec_set(sLO)
        A(f"buffer_store_dwordx2 {v(F+6,2)}, {vXO}, {OUT}, 0 offen offset:48")
        exec_set("-1")
        return
    A(f"s_add_u32 {sT1}, {sPUB}, {WS_ACT + (buf + 1) * (2 << 20)}")
    for i in range(4): A(f"v_cvt_pk_bf16_f32 {v(F+i)}, {v(Y+2*i)}, {v(Y+2*i+1)}")
    A(f"buffer_store_dwordx4 {v(F,4)}, {vL16}, {WS}, {sT1} offen sc1")
    A(f"v_pk_add_f32 v[104:105], {v(Y,2)}, {v(Y+2,2)}")
    A(f"v_pk_mul_f32 v[106:107], {v(Y,2)}, {v(Y,2)}")
    A(f"v_pk_fma_f32 v[106:107], {v(Y+2,2)}, {v(Y+2,2)}, v[106:107]")
    for i in range(2, 8):
        if i == 6: exec_set(sLO)
        A(f"v_pk_add_f32 v[104:105], v[104:105], {v(Y+2*i,2)}")
        A(f"v_pk_fma_f32 v[106:107], {v(Y+2*i,2)}, {v(Y+2*i,2)}, v[106:107]")
    exec_set("-1")
    A("v_add_f32 v104, v104, v105")
    A("v_add_f32 v106, v106, v107")
    for i in range(4, 8): A(f"v_cvt_pk_bf16_f32 {v(F+i)}, {v(Y+2*i)}, {v(Y+2*i+1)}")
    A("v_permlane32_swap_b32 v105, v104")
    A("v_permlane32_swap_b32 v107, v106")
    exec_set(sHI)
    A(f"v_add_f32 {v(F+6)}, v104, v105")
    A(f"v_add_f32 {v(F+7)}, v106, v107")
    exec_set(sEVEN)
    A(f"v_swap_b32 {v(F+4)}, {v(F+6)}")
    A(f"v_swap_b32 {v(F+5)}, {v(F+7)}")
    exec_set("-1")
    A(f"buffer_store_dwordx4 {v(F+4,4)}, {vL16}, {WS}, {sT1} offen offset:1024 sc1")
    arrive_row()
    stamp("y published")
    A("s_barrier")

KF, VF, QF, O, S0, S1, P = 80, 88, 96, 128, 32, 48, 64
def qreg(j, i): return v(QF + 4 * i, 4) if j == 0 else a(QA + 8 * (j - 1) + 4 * i, 4)

def attention(it):
    last = it == 1
    stamp("B gemm done")
    scale_cvt(KF, AK, (124, 0), 8)
    exec_set(sHI)
    A(f"v_mov_b32 {v(KF+6)}, 0x3f803f80\n v_mov_b32 {v(KF+7)}, 0x00003f80")
    exec_set("-1")
    A(f"s_lshl_b32 {sT1}, {sR}, 12")
    A(f"s_add_u32 {sT1}, {sT1}, {sKV}")
    A(f"s_add_u32 {sT1}, {sT1}, {WS_KV + it * (4 << 20)}")
    A(f"buffer_store_dwordx4 {v(KF,4)}, {vL16}, {WS}, {sT1} offen sc1")
    A(f"buffer_store_dwordx4 {v(KF+4,4)}, {vL16}, {WS}, {sT1} offen offset:1024 sc1")
    for i in range(8): A(f"v_pk_mul_f32 {v(AV+2*i,2)}, {v(AV+2*i,2)}, {v(96+2*i,2)}")
    for i in range(8): A(f"v_cvt_pk_bf16_f32 {v(VF+i)}, {v(AV+2*i)}, {v(AV+2*i+1)}")
    exec_set(sONE28)
    for i in range(8): A(f"v_mov_b32 {v(VF+i)}, 0x3f803f80")
    exec_set("-1")
    A(f"buffer_store_dwordx4 {v(VF,4)}, {vL16}, {WS}, {sT1} offen offset:2048 sc1")
    A(f"buffer_store_dwordx4 {v(VF+4,4)}, {vL16}, {WS}, {sT1} offen offset:3072 sc1")
    g = Gemm(ksteps_act(), [(AQ, L_Q, True, "0")])
    g.prefetch()
    arrive_col()
    stamp("kv published")
    g.run()
    rank1(AQ, CSB + 4, True)
    A(f"v_mul_f32 v122, {fbits(28 ** -0.5 * LOG2E)}, {vRSTD}")
    scale_cvt(QF, AQ, (122, 0), 8)
    exec_set(sHI)
    A(f"v_mov_b32 {v(QF+6)}, 0\n v_mov_b32 {v(QF+7)}, 0")
    exec_set("-1")
    mfma(v(S0, 16), v(KF, 4), v(QF, 4), "0")
    mfma(v(S0, 16), v(KF + 4, 4), v(QF + 4, 4), v(S0, 16))
    A(f"s_mov_b32 {sPASS}, 0")
    A(f"v_max3_f32 {vMX}, {v(S0)}, {v(S0+1)}, {v(S0+2)}")
    for i in range(3, 15, 2): A(f"v_max3_f32 {vMX}, {vMX}, {v(S0+i)}, {v(S0+i+1)}")
    A(f"v_max_f32 {vMX}, {vMX}, {v(S0+15)}")
    A(f"v_mov_b32 v72, {vMX}")
    A(f"v_permlane32_swap_b32 v72, {vMX}")
    A(f"v_max_f32 {vMX}, {vMX}, v72")
    A("s_waitcnt lgkmcnt(0)")
    A.settle()
    Lre = lab("attn")
    A.label(Lre)
    A(f"v_cvt_pk_bf16_f32 v72, -{vMX}, 0")
    A(f"v_lshlrev_b32 v73, 16, v72")
    A(f"v_sub_f32_e64 v73, -{vMX}, v73")
    A(f"v_cvt_pk_bf16_f32 v72, -{vMX}, v73")
    A(f"v_and_b32 v74, 0xffff0000, v72")
    A(f"v_sub_f32 v73, v73, v74")
    exec_set(sHI)
    A(f"v_mov_b32 {v(QF+6)}, v72")
    A(f"v_cvt_pk_bf16_f32 {v(QF+7)}, v73, 0")
    exec_set("-1")
    A(f"s_lshl_b32 {sT1}, {sW}, 11\n s_add_u32 {sT1}, {sT1}, {L_QX}")
    A(f"v_add_u32 v72, {sT1}, {vL16}")
    A(f"ds_write_b128 v72, {v(QF,4)}")
    A(f"ds_write_b128 v72, {v(QF+4,4)} offset:1024")
    for j in range(1, 4):
        A(f"s_add_u32 {sT1}, {sW}, {j}\n s_and_b32 {sT1}, {sT1}, 3\n s_lshl_b32 {sT2}, {sT1}, 11\n s_add_u32 {sT2}, {sT2}, {L_QX}")
        A(f"v_add_u32 {v(72+j)}, {sT2}, {vL16}")
        A(f"s_mul_i32 {sT2}, {sT1}, 12288\n s_add_u32 {sT2}, {sT2}, {L_RED + 4096*(j-1)}")
        A(f"v_add_u32 {v(76+j)}, {sT2}, {vL16}")
    A(f"s_mul_i32 {sT2}, {sW}, 12288\n s_add_u32 {sT2}, {sT2}, {L_RED}")
    A(f"v_add_u32 v76, {sT2}, {vL16}")
    A("s_waitcnt lgkmcnt(0)")
    A("s_barrier")
    for j in range(1, 4):
        A(f"ds_read_b128 {qreg(j,0)}, {v(72+j)}")
        A(f"ds_read_b128 {qreg(j,1)}, {v(72+j)} offset:1024")
    A("s_waitcnt lgkmcnt(0)")
    A("s_barrier")
    stamp("q ready")
    wait_col()
    stamp("kv ready")
    def kreg(kt, i): return v(KF + 4 * i, 4) if kt == 0 else a(RING + 16 * ((kt - 1) % 8) + 4 * i, 4)
    def vreg(kt, i): return v(VF + 4 * i, 4) if kt == 0 else a(RING + 16 * ((kt - 1) % 8) + 8 + 4 * i, 4)
    loads = []
    for kt in range(1, 16):
        for i in range(4):
            def f(kt=kt, i=i):
                if i == 0:
                    A(f"s_add_u32 {sT2}, {sR}, {kt}\n s_and_b32 {sT2}, {sT2}, 15\n s_lshl_b32 {sT2}, {sT2}, 12\n s_add_u32 {sT2}, {sT2}, {sT3}")
                A(f"buffer_load_dwordx4 {a(RING+16*((kt-1)%8)+4*i,4)}, {vL16}, {WS}, {sT2} offen offset:{1024*i} sc1")
            loads.append(f)
    dm = dma_list(WOB, (T_WO,)) + ([] if last else dma_list(WA, (T_K, T_V, T_Q)))
    A(f"s_add_u32 {sT3}, {sKV}, {WS_KV + it * (4 << 20)}")
    PRE = int(OPT.get("pre", 8))
    for f in loads[:PRE]: f()
    li = [PRE]; di = [0]
    def next_load(n):
        if li[0] < len(loads):
            kt = li[0] // 4 + 1
            if kt < 9 or n > 4 * (kt - 8) + 5:
                loads[li[0]](); li[0] += 1; return True
        return False
    def next_dma():
        if di[0] < len(dm): dm[di[0]](); di[0] += 1
    Sb = (S0, S1)
    def S_(n, i):
        kt, j = n >> 2, n & 3
        mfma(v(Sb[n & 1], 16), kreg(kt, i), qreg(j, i), "0" if i == 0 else v(Sb[n & 1], 16))
    def PV(n, i):
        kt, j = n >> 2, n & 3
        mfma(v(O + 16 * j, 16), vreg(kt, i), v(P + 4 * i, 4), "0" if (kt == 0 and i == 0) else v(O + 16 * j, 16))
    S_(0, 0); S_(0, 1)
    for n in range(64):
        s = Sb[n & 1]
        e = lambda i: A(f"v_exp_f32 {v(s+i)}, {v(s+i)}")
        c = lambda i: A(f"v_cvt_pk_bf16_f32 {v(P+i)}, {v(s+2*i)}, {v(s+2*i+1)}")
        if n + 1 < 64: S_(n + 1, 0)
        next_load(n)
        e(0); e(1); e(2); c(0); e(3)
        if n > 0: PV(n - 1, 1)
        if n < 12: next_load(n)
        elif n >= 16: next_dma()
        c(1); e(4); e(5); e(6); c(2); e(7)
        if n + 1 < 64: S_(n + 1, 1)
        A.wait_regs(vreg(n >> 2, 0), vreg(n >> 2, 1))
        c(3); e(8); e(9); e(10); c(4); e(11)
        PV(n, 0)
        if n + 2 < 64: A.wait_regs(kreg((n + 2) >> 2, 0), kreg((n + 2) >> 2, 1))
        c(5); e(12); e(13); e(14); e(15); c(6); c(7)
    PV(63, 1)
    assert li[0] == len(loads) and di[0] == len(dm)
    stamp("attn loop done")
    for j in range(1, 4):
        for i in range(4): A(f"ds_write_b128 {v(76+j)}, {v(O+16*j+4*i,4)} offset:{1024*i}")
    A("s_waitcnt vmcnt(0) lgkmcnt(0)")
    A("s_barrier")
    for j in range(3):
        for i in range(4): A(f"ds_read_b128 {v(192+16*j+4*i,4)}, v76 offset:{4096*j+1024*i}")
    for j in range(3):
        for i in range(8): A(f"v_pk_add_f32 {v(O+2*i,2)}, {v(O+2*i,2)}, {v(192+16*j+2*i,2)}")
    def check(den):
        A(f"v_pk_mul_f32 v[72:73], {v(O,2)}, 0")
        for i in range(1, 8): A(f"v_pk_fma_f32 v[72:73], {v(O+2*i,2)}, 0, v[72:73]")
        A(f"v_add_f32 v72, v72, v73")
        A(f"v_add_f32 v72, v72, {den}")
        A(f"s_mov_b32 {sT1}, {fbits(2.0**60)}")
        A(f"v_cmp_nle_f32 {sM}, v72, {sT1}")
        A(f"s_mov_b32 {sT1}, {fbits(2.0**-60)}")
        A(f"v_cmp_nge_f32 vcc, v72, {sT1}")
        A(f"s_or_b64 {sM}, {sM}, vcc")
        A(f"s_or_b32 {sT1}, s98, s99")
        A(f"v_mov_b32 v72, {sT1}")
        A(f"s_mul_i32 {sT2}, {sW}, 12288\n s_add_u32 {sT2}, {sT2}, {L_RED}")
        A(f"v_mov_b32 v73, {sT2}")
        A("ds_write_b32 v73, v72")
    normalize_publish(O, 4 * it + 2, None, check, T=200, F=192)
    A(f"v_mov_b32 v73, {L_RED}")
    A("s_waitcnt lgkmcnt(0)")
    A("s_barrier")
    for w in range(4): A(f"ds_read_b32 {v(72+w) if w != 1 else 'v71'}, v73 offset:{12288*w}")
    A("v_or_b32 v72, v72, v71")
    A("v_or3_b32 v72, v72, v74, v75")
    A(f"v_readfirstlane_b32 {sT1}, v72")
    A(f"s_andn2_b32 {sT1}, {sT1}, {sPASS}")
    A(f"s_cmp_lg_u32 {sT1}, 0")
    Lslow = lab("slow")
    A(f"s_cbranch_scc1 {Lslow}")
    slow.append((Lslow, Lre, it))
    arrive_row()
    stamp("o published")

slow = []
def slow_path(L, Lre, it):
    A.hist = []; A.vm = []; A.lg = []; A.sm = []
    A.label(L)
    A("s_waitcnt vmcnt(0) lgkmcnt(0)")
    A(f"s_mov_b32 {sPASS}, -1")
    A(f"s_add_u32 {sT3}, {sKV}, {WS_KV + it * (4 << 20)}")
    A(f"s_mov_b32 {sT2}, 16")
    for j in range(4): A(f"v_mov_b32 {v(72+j)}, 0xff800000")
    Ll = lab("mx")
    A.label(Ll)
    A(f"buffer_load_dwordx4 {a(RING,4)}, {vL16}, {WS}, {sT3} offen sc1")
    A(f"buffer_load_dwordx4 {a(RING+4,4)}, {vL16}, {WS}, {sT3} offen offset:1024 sc1")
    for j in range(4):
        mfma(v(S0, 16), a(RING, 4), qreg(j, 0), "0")
        mfma(v(S0, 16), a(RING + 4, 4), qreg(j, 1), v(S0, 16))
        for i in range(0, 16, 2): A(f"v_max3_f32 {v(72+j)}, {v(72+j)}, {v(S0+i)}, {v(S0+i+1)}")
    A(f"s_add_u32 {sT3}, {sT3}, 4096")
    A(f"s_sub_u32 {sT2}, {sT2}, 1")
    A(f"s_cmp_lg_u32 {sT2}, 0")
    A.settle()
    A(f"s_cbranch_scc1 {Ll}")
    A("s_barrier")
    for j in range(4):
        A(f"s_add_u32 {sT1}, {sW}, {j}\n s_and_b32 {sT1}, {sT1}, 3\n s_lshl_b32 {sT1}, {sT1}, 10\n s_add_u32 {sT1}, {sT1}, {L_RED + 256*j}")
        A(f"v_lshl_add_u32 v71, {vLANE}, 2, {sT1}")
        A(f"ds_write_b32 v71, {v(72+j)}")
    A(f"s_lshl_b32 {sT1}, {sW}, 10\n s_add_u32 {sT1}, {sT1}, {L_RED}")
    A(f"v_lshl_add_u32 v71, {vLANE}, 2, {sT1}")
    A("s_waitcnt lgkmcnt(0)")
    A("s_barrier")
    for j in range(4): A(f"ds_read_b32 {v(72+j)}, v71 offset:{256*j}")
    A("v_max3_f32 v72, v72, v73, v74")
    A("v_max_f32 v72, v72, v75")
    A("v_mov_b32 v73, v72")
    A("v_permlane32_swap_b32 v73, v72")
    A("v_max_f32 v72, v72, v73")
    A(f"v_add_f32 {vMX}, {vMX}, v72")
    A("s_waitcnt lgkmcnt(0)")
    A("s_barrier")
    A.settle()
    A(f"s_branch {Lre}")

def epilogue():
    if STAMPS:
        stamp("end")
        A(f"s_lshl_b32 {sT1}, s2, 2\n s_add_u32 {sT1}, {sT1}, {sW}\n s_lshl_b32 {sT1}, {sT1}, 8\n s_add_u32 {sT1}, {sT1}, {WS_DBG}")
        A(f"v_lshlrev_b32 v72, 2, {vLANE}")
        A(f"buffer_store_dword v125, v72, {WS}, {sT1} offen")
    A("s_waitcnt vmcnt(0)")
    A.label("L_end")
    A("s_endpgm")
    for args in slow: slow_path(*args)
    A.label("L_code_end")
    A.raw(f""".section .rodata,"a"
.p2align 6
.amdhsa_kernel {NAME}_kernel
  .amdhsa_next_free_vgpr 464
  .amdhsa_next_free_sgpr 102
  .amdhsa_accum_offset 256
  .amdhsa_group_segment_fixed_size 0
  .amdhsa_kernarg_size 80
  .amdhsa_user_sgpr_count 2
  .amdhsa_user_sgpr_kernarg_segment_ptr 1
  .amdhsa_system_sgpr_workgroup_id_x 1
  .amdhsa_float_denorm_mode_32 3
.end_amdhsa_kernel""")

prologue()
p1()
for it in range(2):
    a_rest(it, nat=(it == 0))
    outproj(4 * it + 0, False)
    if it == 0:
        colsum_mfma()
        A("s_waitcnt lgkmcnt(0)\n s_barrier")
        for f in colsum_finish_ops(CSB): f()
    qkv_act(4 * it + 1, CSB, False)
    attention(it)
    outproj(4 * it + 2, it == 1)
    if it == 0: qkv_act(3, CSA, True)
epilogue()

out = OUTF[0] if OUTF else f"cdna_kernels/{NAME}.s"
open(out, "w").write(A.text())
if STAMPS: open(out + ".stamps", "w").write("\n".join(stamp_names))
print(f"wrote {out}: {A.nins} instructions, {A.nnop} nop states")
```

```python
import sys, struct, math
sys.path.insert(0, "work")
from asmgen import Asm

NAME = "interleave_layers__linear_kernel_hedgehog__mha_block__prompt"
STAMPS = "--stamps" in sys.argv
OUTF = [a for a in sys.argv[1:] if not a.startswith("--")]
OPT = {a.split("=")[0][2:]: (a.split("=") + ["1"])[1] for a in sys.argv[1:] if a.startswith("--")}

def fbits(x): return "0x%08x" % struct.unpack("<I", struct.pack("<f", x))[0]
LOG2E = math.log2(math.e)

WS_CTR = 0
WS_ACT = 1 << 20
WS_KV = WS_ACT + 7 * (2 << 20)
WS_KVP = WS_KV + 2 * (4 << 20)
WS_IMG = WS_KVP + 2 * (1 << 20)
WS_DBG = WS_IMG + (4 << 20)
WS_END = WS_DBG + (1 << 20)
L_K, L_V, L_Q, L_WO, L_SC = 0, 28672, 57344, 86016, 114688
L_PHI = L_SC
L_KVI = L_SC + 28672
L_CS = L_SC + 32768
L_RS = L_SC + 34816
L_QX = L_SC + 36864
L_MX = L_SC + 45056
L_RED = L_SC
LDS_BYTES = 163840
HIB = 57344
X, WA, WPHI, WOA, WB, WOB, OUT, WS, CODE = ("s[%d:%d]" % (i, i + 3) for i in range(24, 60, 4))
sR, sH, sW = "s60", "s61", "s62"
sBUD = "s63"
sROWC, sCOLC = "s[64:65]", "s[66:67]"
sACT, sPUB, sKV, sKVP = "s68", "s69", "s70", "s71"
sG = ["s%d" % i for i in range(72, 80)]
sHI, sLO, sONE28, sEVEN = "s[80:81]", "s[82:83]", "s[84:85]", "s[86:87]"
sONE, sT0, sT1, sT2, sT3 = "s88", "s89", "s90", "s91", "s92"
sC10, sC01 = "s93", "s94"
sPASS = "s95"
sST = "s[96:97]"
sM = "s[98:99]"
sIMG, sW7, sPOLL = "s3", "s100", "s101"
vLANE, vL16 = "v0", "v1"
vA = ["v2", "v3", "v4"]; vAH = ["v5", "v6", "v7"]
vN, vNH = "v86", "v15"
vGX, vGM, vWD, vXO = "v10", "v11", "v12", "v14"
vPHW, vPHA, vPHB, vKVW, vLS = "v8", "v9", "v13", "v103", "v102"
vMX = "v15"
Y, AK, AV, AQ = 16, 32, 48, 64
ACT = 128
vRSTD, vMB0 = "v124", 126
vSTAMP = "a250"
RING = 0
WR = 128
CSA, CSB = 160, 166
WP = 172
QA = 180

def v(i, n=1): return "v%d" % i if n == 1 else "v[%d:%d]" % (i, i + n - 1)
def a(i, n=1): return "a%d" % i if n == 1 else "a[%d:%d]" % (i, i + n - 1)

A = Asm()
nstamp = [0]
stamp_names = []
def stamp(name):
    if not STAMPS: return
    i = nstamp[0]; nstamp[0] += 1
    stamp_names.append(name)
    A(f"{'s_memtime' if 'cyc' in OPT else 's_memrealtime'} {sST}")
    A("s_waitcnt lgkmcnt(0)")
    A(f"v_writelane_b32 v125, s96, {i}")

uid = [0]
def lab(p):
    uid[0] += 1
    return f"L_{p}_{uid[0]}"

def mfma(d, x, y, c, k16=True):
    A(f"v_mfma_f32_32x32x16_bf16 {d}, {x}, {y}, {c}")

def exec_set(m): A(f"s_mov_b64 exec, {m}")

def arrive(ctr, n=0):
    A(f"s_waitcnt vmcnt({n})")
    A(f"s_atomic_add {sONE}, {ctr}, 0")

def poll_issue(ctr):
    A(f"s_mov_b32 {sPOLL}, 0")
    A(f"s_atomic_add {sPOLL}, {ctr}, 0 glc")

def wait_ctr(ctr, target, issued=False):
    L, Lo = lab("poll"), lab("go")
    if not issued:
        A.wait_regs(sPOLL)
        poll_issue(ctr)
    A("s_waitcnt lgkmcnt(0)")
    A(f"s_cmp_ge_u32 {sPOLL}, {target}")
    A(f"s_cbranch_scc1 {Lo}")
    A.label(L)
    poll_issue(ctr)
    A(f"s_sub_u32 {sBUD}, {sBUD}, 1")
    A(f"s_cbranch_scc1 {Lo}_to")
    A("s_waitcnt lgkmcnt(0)")
    A(f"s_cmp_lt_u32 {sPOLL}, {target}")
    A(f"s_cbranch_scc1 {L}")
    A(f"s_branch {Lo}")
    A.label(Lo + "_to")
    A(f"s_mov_b32 {sBUD}, 0")
    A("s_waitcnt lgkmcnt(0)")
    A.label(Lo)

def ksteps_act():
    out = []
    for Q in range(4):
        out.append((ACT + 32 * Q + 26, 2, 7 * (4 * Q) + 5, 7 * (4 * Q + 1) + 5))
    for Q in range(4):
        for i in range(4):
            out.append((ACT + 32 * Q + 4 * i, 0, 7 * (4 * Q + i), 7 * (4 * Q + i) + 2))
        for j in range(2):
            out.append((ACT + 32 * Q + 16 + 4 * j, 1, 7 * (4 * Q + 2 * j) + 4, 7 * (4 * Q + 2 * j) + 6))
    return out
def ksteps_nat():
    return [(ACT + 4 * s, None, 4 * s, 4 * s + 1) for s in range(28)]

def tr_read(dst, ks, tile_off):
    _, b, g0, g1 = ks
    hi = tile_off >= HIB
    base = (vNH if hi else vN) if b is None else (vAH[b] if hi else vA[b])
    off = tile_off - (HIB if hi else 0)
    A(f"ds_read_b64_tr_b16 {a(dst,2)}, {base} offset:{off + g0*256}")
    A(f"ds_read_b64_tr_b16 {a(dst+2,2)}, {base} offset:{off + g1*256}")

class Gemm:
    def __init__(self, ks, tiles):
        self.ks, self.tiles = ks, tiles
        self.nt = len(tiles)
        self.depth = min(8 // self.nt, 15 // (2 * self.nt) + 1, 4 if self.nt > 1 else 6)
        self.issued = 0
    def slot(self, s, t): return WR + 4 * ((s % (8 // self.nt)) * self.nt + t)
    def prefetch(self):
        while self.issued < self.depth - 1:
            self.issue()
    def issue(self):
        s = self.issued
        if s < len(self.ks):
            for t, (acc, off, tr, c0) in enumerate(self.tiles):
                tr_read(self.slot(s, t), self.ks[s], off)
        self.issued += 1
    def run(self, fill=None, tail=0):
        fill = fill or {}
        self.prefetch()
        n = len(self.ks)
        order = [(s, t) for s in range(n - tail) for t in range(self.nt)]
        order += [(s, t) for t in range(self.nt) for s in range(n - tail, n)]
        for s, t in order:
            k = self.ks[s]
            acc, off, tr, c0 = self.tiles[t]
            wf, af = a(self.slot(s, t), 4), v(k[0], 4)
            c = c0 if s == 0 else v(acc, 16)
            if tr: mfma(v(acc, 16), wf, af, c)
            else: mfma(v(acc, 16), af, wf, c)
            if t == 0: self.issue()
            f = fill.get((s, t))
            if f: f()

def rank1(acc, cs, tr):
    if tr: A(f"v_mfma_f32_32x32x8_bf16 {v(acc,16)}, {a(cs,2)}, {v(vMB0,2)}, {v(acc,16)}")
    else: A(f"v_mfma_f32_32x32x8_bf16 {v(acc,16)}, {v(vMB0,2)}, {a(cs,2)}, {v(acc,16)}")

def gather_setup(buf):
    A(f"s_add_u32 {sG[0]}, {sACT}, {WS_ACT + buf * (2 << 20)}")
    for i in range(1, 8): A(f"s_add_u32 {sG[i]}, {sG[0]}, {4096 * i}")

def gather(stats):
    out = []
    P = lambda txt: out.append(lambda: A(txt))
    for Q in range(4):
        R = ACT + 32 * Q
        if stats:
            P(f"buffer_load_dwordx4 {v(R+24,4)}, {vGM}, {WS}, {sG[2*Q]} offen offset:1536 sc1")
            P(f"buffer_load_dwordx4 {v(R+28,4)}, {vGM}, {WS}, {sG[2*Q]} offen offset:3584 sc1")
        else:
            P(f"buffer_load_dwordx2 {v(R+26,2)}, {vGM}, {WS}, {sG[2*Q]} offen offset:1544 sc1")
            P(f"buffer_load_dwordx2 {v(R+28,2)}, {vGM}, {WS}, {sG[2*Q]} offen offset:3584 sc1")
    for Q in range(4):
        R = ACT + 32 * Q
        for i in range(4):
            P(f"buffer_load_dwordx4 {v(R+4*i,4)}, {vL16}, {WS}, {sG[2*Q+(i>>1)]} offen offset:{2048*(i&1)} sc1")
        for j in range(2):
            P(f"buffer_load_dwordx4 {v(R+16+4*j,4)}, {vGX}, {WS}, {sG[2*Q+j]} offen offset:1024 sc1")
    return out

def paced(loads, fill, ahead):
    for f in loads[:ahead]: f()
    rest = loads[ahead:]
    fill = dict(fill or {})
    s = 0
    while rest:
        n = 2 if s < 4 else 1
        chunk, rest = rest[:n], rest[n:]
        old = fill.get((s, 0))
        fill[(s, 0)] = (lambda ch=chunk, old=old: ([f() for f in ch], old() if old else None))
        s += 1
    return fill

def dma_img(st, tiles):
    out = []
    for t in tiles:
        for i in range(7):
            def f(t=t, i=i):
                if i in (0, 4):
                    A(f"s_add_u32 m0, {sW7}, {t * 28672 + i * 1024}")
                    A(f"s_add_u32 {sT1}, {sIMG}, {st * 16 * 114688 + t * 28672 + i * 1024}")
                A(f"buffer_load_dwordx4 {vL16}, {WS}, {sT1} offen offset:{1024 * (i % 4)} sc1 lds")
            out.append(f)
    return out

def dma_direct_q():
    out = []
    for i in range(7):
        def f(i=i):
            A(f"s_add_u32 m0, {sW7}, {L_Q + i * 1024}")
            A(f"s_mul_i32 {sT1}, {sW}, {7 * 16 * 2688}")
            A(f"s_add_u32 {sT1}, {sT1}, {i * 16 * 2688}")
            A(f"buffer_load_dwordx4 {vWD}, {WA}, {sT1} offen lds")
        out.append(f)
    return out

def both_halves_sum(x, t):
    A(f"v_mov_b32 {t}, {x}")
    A(f"v_permlane32_swap_b32 {t}, {x}")
    A(f"v_add_f32 {x}, {x}, {t}")

def stats_finish_ops(s, q, t):
    ops = []
    P = lambda txt: ops.append(lambda: A(txt))
    P(f"v_mov_b32 {t}, {s}")
    P(f"v_permlane32_swap_b32 {t}, {s}")
    P(f"v_add_f32 {s}, {s}, {t}")
    P(f"v_mov_b32 {t}, {q}")
    P(f"v_permlane32_swap_b32 {t}, {q}")
    P(f"v_add_f32 {q}, {q}, {t}")
    P(f"v_mul_f32 {s}, {fbits(-1.0/448)}, {s}")
    P(f"v_mul_f32 {q}, {fbits(1.0/448)}, {q}")
    P(f"v_fma_f32 {q}, -{s}, {s}, {q}")
    P(f"v_max_f32 {q}, 0, {q}")
    P(f"v_add_f32 {q}, {fbits(1e-5)}, {q}")
    P(f"v_rsq_f32 {vRSTD}, {q}")
    P(f"v_cndmask_b32 {s}, {s}, 0, {sHI}")
    P(f"v_cvt_pk_bf16_f32 {v(vMB0+1)}, {s}, 0")
    P(f"v_lshlrev_b32 {t}, 16, {v(vMB0+1)}")
    P(f"v_sub_f32 {t}, {s}, {t}")
    P(f"v_cvt_pk_bf16_f32 {v(vMB0)}, {s}, {t}")
    return ops

def stats_gather_ops(s, q):
    ops = []
    P = lambda txt: ops.append(lambda: A(txt))
    P(f"v_add_f32 {s}, {v(ACT+24)}, {v(ACT+30)}")
    P(f"v_add_f32 {q}, {v(ACT+25)}, {v(ACT+31)}")
    for Q in range(1, 4):
        R = ACT + 32 * Q
        P(f"v_add_f32 {s}, {s}, {v(R+24)}")
        P(f"v_add_f32 {q}, {q}, {v(R+25)}")
        P(f"v_add_f32 {s}, {s}, {v(R+30)}")
        P(f"v_add_f32 {q}, {q}, {v(R+31)}")
    return ops

def spread(ops, slots, per):
    fill = {}
    i = 0
    for sl in slots:
        chunk = ops[i:i + per]; i += per
        if chunk: fill[sl] = (lambda ch=chunk: [f() for f in ch])
    assert i >= len(ops), (i, len(ops))
    return fill

def scale_cvt(dst, acc, sc, n=8):
    reg, sel = sc
    for i in range(n):
        A(f"v_pk_mul_f32 {v(acc+2*i,2)}, {v(acc+2*i,2)}, {v(reg,2)} op_sel:[0,{sel}] op_sel_hi:[1,{sel}]")
    for i in range(n):
        A(f"v_cvt_pk_bf16_f32 {v(dst+i)}, {v(acc+2*i)}, {v(acc+2*i+1)}")

def nat_base(dst):
    A(f"v_lshrrev_b32 {dst}, 5, {vLANE}")
    A(f"v_lshl_add_u32 {dst}, {dst}, 8, {vA[0]}")

def colsum_mfma(tiles, accs):
    ones = 80
    for i in range(4): A(f"v_mov_b32 {v(ones+i)}, 0x3f803f80")
    nat_base("v84")
    A(f"v_add_u32 v84, {sW7}, v84")
    A(f"v_add_u32 v85, {HIB}, v84")
    seq = [(i, t) for i in range(7) for t in tiles]
    offs = (L_K, L_V, L_Q)
    def rd(n):
        if n >= len(seq): return
        i, t = seq[n]
        base, off = ("v85", offs[t] - HIB) if offs[t] >= HIB else ("v84", offs[t])
        A(f"ds_read_b64_tr_b16 {a(WR+4*(n%8),2)}, {base} offset:{off + i*1024}")
        A(f"ds_read_b64_tr_b16 {a(WR+4*(n%8)+2,2)}, {base} offset:{off + i*1024 + 256}")
    for n in range(5): rd(n)
    for n, (i, t) in enumerate(seq):
        mfma(v(accs[t], 16), v(ones, 4), a(WR + 4 * (n % 8), 4), "0" if i == 0 else v(accs[t], 16))
        rd(n + 5)
    A(f"v_and_b32 v84, 31, {vLANE}")
    A(f"s_mul_i32 {sT1}, {sW}, 384")
    A(f"s_add_u32 {sT1}, {sT1}, {L_CS}")
    A(f"v_lshl_add_u32 v85, v84, 2, {sT1}")
    return [lambda t=t: A(f"ds_write_b32 v85, {v(accs[t])} offset:{128*t}") for t in tiles]

def colsum_finish_ops(cs, tiles):
    ops = []
    P = lambda txt: ops.append(lambda: A(txt))
    P(f"v_and_b32 v84, 31, {vLANE}")
    P(f"v_lshlrev_b32 v84, 2, v84")
    P(f"v_add_u32 v84, {L_CS}, v84")
    for t in tiles:
        for w in range(4): P(f"ds_read_b32 {v(88+4*t+w)}, v84 offset:{384*w+128*t}")
    for t in tiles:
        r = 88 + 4 * t
        P(f"v_add_f32 {v(r)}, {v(r)}, {v(r+1)}")
        P(f"v_add_f32 {v(r+2)}, {v(r+2)}, {v(r+3)}")
        P(f"v_add_f32 {v(r)}, {v(r)}, {v(r+2)}")
        P(f"v_cvt_pk_bf16_f32 {v(r+1)}, {v(r)}, {v(r)}")
        P(f"v_and_b32 {v(r+2)}, 0xffff0000, {v(r+1)}")
        P(f"v_sub_f32 {v(r+2)}, {v(r)}, {v(r+2)}")
        P(f"v_cvt_pk_bf16_f32 {v(r+2)}, {v(r+2)}, 0")
        P(f"v_accvgpr_write_b32 {a(cs+2*t)}, {v(r+1)}")
        P(f"v_accvgpr_write_b32 {a(cs+2*t+1)}, {v(r+2)}")
    return ops

def phi(P, E, dp, dm, T, after=None, mid=None):
    mx, nm, t0, t1 = v(T), v(T + 1), v(T + 2), v(T + 3)
    A(f"v_max3_f32 {mx}, {v(P)}, {v(P+1)}, {v(P+2)}")
    A(f"v_max3_f32 {nm}, -{v(P)}, -{v(P+1)}, -{v(P+2)}")
    for i in range(3, 13, 2):
        A(f"v_max3_f32 {mx}, {mx}, {v(P+i)}, {v(P+i+1)}")
        A(f"v_max3_f32 {nm}, {nm}, -{v(P+i)}, -{v(P+i+1)}")
    A(f"v_max_f32 {mx}, {mx}, {v(P+13)}")
    A(f"v_max_f32_e64 {nm}, {nm}, -{v(P+13)}")
    A(f"v_permlane32_swap_b32 {mx}, {nm}")
    A(f"v_max_f32 {nm}, {mx}, {nm}")
    A(f"v_mov_b32 {mx}, {nm}")
    A(f"v_permlane32_swap_b32 {mx}, {nm}")
    for i in range(7):
        A(f"v_pk_add_f32 {v(E+2*i,2)}, {v(P+2*i,2)}, {v(T,2)} op_sel:[0,0] op_sel_hi:[1,0] neg_lo:[0,1] neg_hi:[0,1]")
        A(f"v_pk_add_f32 {v(P+2*i,2)}, {v(P+2*i,2)}, {v(T,2)} op_sel:[0,1] op_sel_hi:[1,1] neg_lo:[1,1] neg_hi:[1,1]")
    for i in range(14):
        A(f"v_exp_f32 {v(E+i)}, {v(E+i)}")
        A(f"v_exp_f32 {v(P+i)}, {v(P+i)}")
    if mid: mid()
    A(f"v_pk_add_f32 {v(T,2)}, {v(E,2)}, {v(E+2,2)}")
    A(f"v_pk_add_f32 {v(T+2,2)}, {v(P,2)}, {v(P+2,2)}")
    for i in range(2, 7):
        A(f"v_pk_add_f32 {v(T,2)}, {v(T,2)}, {v(E+2*i,2)}")
        A(f"v_pk_add_f32 {v(T+2,2)}, {v(T+2,2)}, {v(P+2*i,2)}")
    A(f"v_add_f32 {mx}, {mx}, {nm}")
    A(f"v_add_f32 {nm}, {t0}, {t1}")
    A(f"v_mov_b32 {v(dp+7)}, 0")
    A(f"v_permlane32_swap_b32 {mx}, {nm}")
    A(f"v_add_f32 {nm}, {mx}, {nm}")
    A(f"v_rcp_f32 {nm}, {nm}")
    A(f"v_mov_b32 {v(dm+7)}, 0")
    A(f"v_mov_b32 {mx}, {nm}")
    A(f"v_permlane32_swap_b32 {mx}, {nm}")
    scale_cvt(dp, E, (T, 0), 7)
    if after: after(0)
    scale_cvt(dm, P, (T, 1), 7)
    if after: after(1)

def publish_act(F, buf):
    A(f"s_add_u32 {sT1}, {sPUB}, {WS_ACT + buf * (2 << 20)}")
    A(f"buffer_store_dwordx4 {v(F,4)}, {vL16}, {WS}, {sT1} offen sc1")
    A(f"buffer_store_dwordx4 {v(F+4,4)}, {vL16}, {WS}, {sT1} offen offset:1024 sc1")

def normalize_publish(D, buf, eps, pre=None, T=104, F=96):
    A(f"v_mov_b32 {v(T)}, {v(D+12)}")
    A(f"v_mov_b32 {v(T+1)}, {v(D+12)}")
    A(f"v_permlane32_swap_b32 {v(T)}, {v(T+1)}")
    if eps: A(f"v_add_f32 {v(T+1)}, {fbits(eps)}, {v(T+1)}")
    if pre: pre(v(T + 1))
    A(f"v_rcp_f32 {v(T)}, {v(T+1)}")
    scale_cvt(F, D, (T, 0), 8)
    exec_set(sEVEN)
    A(f"v_mov_b32 {v(F+6)}, {v(F+4)}")
    A(f"v_mov_b32 {v(F+7)}, {v(F+5)}")
    exec_set("-1")
    publish_act(F, buf)

rowc, colc = [0], [0]
def arrive_row(n=0): arrive(sROWC, n); rowc[0] += 16
def arrive_col(n=0): arrive(sCOLC, n); colc[0] += 16
def wait_row(issued=False): wait_ctr(sROWC, rowc[0], issued)
def wait_col(issued=False): wait_ctr(sCOLC, colc[0], issued)

def prologue():
    A.raw(f"""; @launch grid=(256,1,1) block=(256,1,1) lds={LDS_BYTES}
.amdgcn_target "amdgcn-amd-amdhsa--gfx950"
.text
.globl {NAME}_kernel
.p2align 8
.type {NAME}_kernel,@function
{NAME}_kernel:""")
    A("s_cmp_ge_u32 s2, 256")
    A("s_cbranch_scc1 L_end")
    A("s_load_dwordx16 s[4:19], s[0:1], 0")
    A("s_load_dwordx4 s[20:23], s[0:1], 64")
    A("s_getpc_b64 s[56:57]")
    A("s_and_b32 s56, s56, 0xffffff00")
    A("s_and_b32 s57, s57, 0xffff")
    A(f"s_mov_b32 s58, L_code_end-{NAME}_kernel")
    A("s_mov_b32 s59, 0x20000")
    A("v_lshlrev_b32 v2, 7, v0")
    A(f"buffer_load_dword v250, v2, {CODE}, 0 offen")
    A("v_add_u32 v2, 0x8000, v2")
    A(f"buffer_load_dword v251, v2, {CODE}, 0 offen")
    A("v_lshrrev_b32 v1, 6, v0")
    A(f"v_readfirstlane_b32 {sW}, v1")
    A("v_and_b32 v0, 63, v0")
    if STAMPS: A("v_mov_b32 v125, 0")
    stamp("start")
    if OPT.get("map", "0") == "0":
        A("s_and_b32 s89, s2, 7")
        A("s_lshl_b32 s89, s89, 1")
        A("s_bfe_u32 s90, s2, 0x10003")
        A(f"s_add_u32 {sR}, s89, s90")
        A(f"s_lshr_b32 {sH}, s2, 4")
    elif OPT["map"] == "2":
        A("s_bfe_u32 s89, s2, 0x20001\n s_lshl_b32 s89, s89, 2\n s_bfe_u32 s90, s2, 0x20003")
        A(f"s_add_u32 {sR}, s89, s90")
        A("s_and_b32 s89, s2, 1\n s_lshl_b32 s89, s89, 3\n s_lshr_b32 s90, s2, 5")
        A(f"s_add_u32 {sH}, s89, s90")
    elif OPT["map"] == "3":
        A("s_bfe_u32 s89, s2, 0x10002\n s_lshl_b32 s89, s89, 3\n s_bfe_u32 s90, s2, 0x30003")
        A(f"s_add_u32 {sR}, s89, s90")
        A("s_and_b32 s89, s2, 3\n s_lshl_b32 s89, s89, 2\n s_lshr_b32 s90, s2, 6")
        A(f"s_add_u32 {sH}, s89, s90")
    A(f"s_mov_b32 {sBUD}, 0x40000")
    A(f"s_mov_b32 {sONE}, 1")
    A(f"s_mov_b32 {sC10}, 0x00003f80")
    A(f"s_mov_b32 {sC01}, 0x3f800000")
    A("s_mov_b32 s80, 0\n s_mov_b32 s81, -1\n s_mov_b32 s82, -1\n s_mov_b32 s83, 0")
    A("s_mov_b32 s84, 0x10000000\n s_mov_b32 s85, 0x10000000")
    A(f"s_bitcmp1_b32 {sH}, 0")
    A(f"s_cselect_b64 {sEVEN}, 0, {sHI}")
    A(f"s_lshl_b32 s89, {sR}, 2\n s_add_u32 s89, s89, {sW}")
    A(f"s_lshl_b32 s90, {sH}, 2\n s_add_u32 s90, s90, {sW}")
    A(f"s_lshl_b32 {sACT}, s89, 15")
    A(f"s_lshl_b32 s91, {sH}, 11\n s_add_u32 {sPUB}, {sACT}, s91")
    A(f"s_lshl_b32 {sKV}, s90, 16")
    A(f"s_lshl_b32 {sKVP}, s90, 14")
    A(f"s_mul_i32 {sW7}, {sW}, 7168")
    A(f"s_mul_i32 {sIMG}, {sH}, 114688\n s_add_u32 {sIMG}, {sIMG}, {sW7}\n s_add_u32 {sIMG}, {sIMG}, {WS_IMG}")
    A(f"v_lshlrev_b32 {vL16}, 4, {vLANE}")
    A(f"v_lshrrev_b32 v83, 3, {vLANE}")
    A(f"v_and_b32 v84, 7, {vLANE}")
    A(f"v_lshrrev_b32 v85, 1, v83")
    A(f"v_xor_b32 v84, v84, v85")
    A(f"v_mul_u32_u24 v83, 896, v83")
    A(f"v_lshl_add_u32 v88, v84, 4, v83")
    A(f"v_xor_b32 v89, 64, v88")
    A(f"s_mul_i32 s92, {sH}, 56")
    A(f"v_lshrrev_b32 v83, 2, {vLANE}")
    A(f"v_and_b32 v84, 3, {vLANE}")
    A(f"v_lshl_add_u32 v84, v84, 4, s92")
    A(f"v_mul_u32_u24 {vWD}, 2688, v83")
    A(f"v_add_u32 {vWD}, {vWD}, v84")
    A(f"v_mul_u32_u24 v87, 896, v83")
    A(f"v_add_u32 v87, v87, v84")
    A(f"s_mul_i32 s72, s89, 28672")
    A(f"s_mul_i32 s73, {sW}, 26624\n s_add_u32 s73, s73, {L_Q}")
    A(f"s_mul_i32 s74, {sH}, 6\n s_lshr_b32 s74, s74, 4")
    A("s_waitcnt lgkmcnt(0)")
    stamp("kernargs")
    def srd(n, p, size):
        A(f"s_mov_b32 s{n}, s{p}\n s_and_b32 s{n+1}, s{p+1}, 0xffff\n s_mov_b32 s{n+2}, {size}\n s_mov_b32 s{n+3}, 0x20000")
    srd(24, 4, 1835008); srd(52, 22, WS_END)
    A(f"s_or_b32 s91, s2, {sW}")
    A("s_cmp_lg_u32 s91, 0")
    A("s_cbranch_scc1 L_noinit")
    vm_save = list(A.vm)
    A(f"v_lshlrev_b32 v84, 7, {vLANE}")
    A("v_mov_b32 v85, 0")
    A(f"buffer_store_dword v85, v84, {WS}, 0 offen sc1")
    A("v_add_u32 v84, 8192, v84")
    A(f"buffer_store_dword v85, v84, {WS}, 0 offen sc1")
    A("s_waitcnt vmcnt(0)")
    A(f"s_atomic_add {sONE}, s[20:21], 0")
    A.settle()
    A.label("L_noinit")
    A.vm = vm_save
    def xdma(rg, soff):
        A(f"buffer_load_dwordx4 v{88 + (rg >> 1)}, {X}, {soff} offen lds")
    for c in range(6):
        A("s_lshl_b32 s75, s74, 7\n s_add_u32 s75, s75, s72\n s_lshl_b32 s76, s74, 12\n s_add_u32 s76, s76, s73")
        for rg in range(4):
            A(f"s_add_u32 m0, s76, {1024 * rg}")
            if rg: A(f"s_add_u32 s75, s75, 7168")
            xdma(rg, "s75")
        A("s_add_u32 s74, s74, 1\n s_cmp_eq_u32 s74, 6\n s_cselect_b32 s74, 0, s74")
    for rg in range(2):
        A(f"s_add_u32 m0, s73, {24576 + 1024 * rg}")
        A(f"s_add_u32 s75, s72, {768 + 7168 * rg}")
        xdma(rg, "s75")
    global XMARK
    XMARK = len(A.vm)
    srd(28, 6, 1204224)
    A(f"s_mul_i32 s74, {sR}, 7\n s_lshr_b32 s74, s74, 4")
    A(f"s_and_b32 s77, {sR}, 1")
    for t in range(2):
        A(f"s_xor_b32 s78, s77, {t}")
        A(f"s_mul_i32 s76, s78, 28672\n s_add_u32 s76, s76, {sW7}")
        A(f"s_mul_i32 s78, s78, 896\n s_mul_i32 s79, {sW}, {7 * 16 * 2688}\n s_add_u32 s78, s78, s79\n s_add_u32 s78, s78, 896")
        for i in range(7):
            A("s_lshl_b32 s75, s74, 10\n s_add_u32 m0, s75, s76")
            A(f"s_mul_i32 s75, s74, {16 * 2688}\n s_add_u32 s75, s75, s78")
            A(f"buffer_load_dwordx4 {vWD}, {WA}, s75 offen lds")
            A("s_add_u32 s74, s74, 1\n s_cmp_eq_u32 s74, 7\n s_cselect_b32 s74, 0, s74")
    stamp("loads issued")
    srd(32, 8, 25088); srd(36, 10, 401408); srd(40, 14, 1204224); srd(44, 16, 401408); srd(48, 18, 1835008)
    A(f"s_lshl_b32 s91, s89, 7\n s_add_u32 s64, s22, s91\n s_addc_u32 s65, s23, 0")
    A(f"s_lshl_b32 s91, s90, 7\n s_add_u32 s91, s91, 8192\n s_add_u32 s66, s22, s91\n s_addc_u32 s67, s23, 0")
    A(f"v_and_b32 v80, 31, {vLANE}")
    A(f"v_lshrrev_b32 v81, 5, {vLANE}")
    A(f"v_lshrrev_b32 v83, 3, v80")
    A(f"v_and_b32 v84, 3, v80")
    A(f"v_lshl_add_u32 v83, v83, 2, v84")
    A(f"v_bfe_u32 v84, v80, 2, 1")
    A(f"v_mad_u32_u24 v84, v84, 14, v83")
    A(f"s_mul_i32 s91, {sH}, 1568")
    A(f"v_lshl_add_u32 v84, v84, 1, s91")
    A(f"v_mul_u32_u24 v85, 224, v81")
    A(f"v_add_u32 v84, v84, v85")
    A(f"v_mov_b32 v82, 0x40000000")
    A(f"v_cmp_gt_u32 {sM}, 14, v83")
    A(f"v_cndmask_b32 v84, v82, v84, {sM}")
    A(f"v_cndmask_b32 v85, v84, v82, {sHI}")
    for u in range(2):
        for e in range(8):
            d0 = 16 * u + 8 * (e >> 2) + (e & 3)
            ad = "v85" if (u == 1 and e >= 4) else "v84"
            op = "buffer_load_short_d16_hi" if e & 1 else "buffer_load_ushort"
            A(f"{op} {v(104+8*u+e)}, {ad}, {WPHI}, 0 offen offset:{56*d0}")
    A(f"s_lshl_b32 s91, s89, 5")
    A(f"v_add_u32 v82, s91, v80")
    A(f"v_mul_u32_u24 v82, 896, v82")
    A(f"v_lshl_add_u32 {vXO}, v81, 3, v82")
    A(f"v_add_u32 {vXO}, s92, {vXO}")
    A(f"v_and_b32 v83, 15, {vLANE}")
    A(f"v_lshrrev_b32 v84, 2, v83")
    A(f"v_lshlrev_b32 v84, 6, v84")
    A(f"v_and_b32 v83, 3, v83")
    A(f"v_lshl_add_u32 v84, v83, 3, v84")
    A(f"v_bfe_u32 v83, {vLANE}, 4, 1")
    A(f"v_lshl_add_u32 v84, v83, 5, v84")
    A(f"v_lshl_add_u32 {vA[0]}, v81, 8, v84")
    A(f"v_mul_u32_u24 v83, 1792, v81")
    A(f"v_add_u32 {vA[1]}, v83, v84")
    A(f"v_lshl_add_u32 {vA[2]}, v83, 1, v84")
    for i in range(3): A(f"v_add_u32 {vAH[i]}, {HIB}, {vA[i]}")
    A(f"v_lshl_add_u32 {vN}, v81, 9, v84")
    A(f"v_add_u32 {vNH}, {HIB}, {vN}")
    A(f"v_lshlrev_b32 v83, 4, v80")
    A(f"v_lshl_add_u32 {vGX}, v81, 11, v83")
    A(f"v_lshl_add_u32 {vGM}, v81, 12, v83")
    A(f"v_add_u32 {vLS}, {L_SC}, {vL16}")
    A(f"s_lshl_b32 s91, {sW}, 5")
    A(f"v_add_u32 v83, s91, v80")
    A(f"v_mul_u32_u24 v83, 200, v83")
    A(f"v_lshl_add_u32 v83, v81, 3, v83")
    A(f"v_add_u32 {vPHW}, {L_PHI}, v83")
    A(f"v_and_b32 v82, 15, {vLANE}")
    A(f"v_lshrrev_b32 v83, 2, v82")
    A(f"v_lshrrev_b32 v84, 4, {vLANE}")
    A(f"v_lshl_add_u32 v83, v84, 3, v83")
    A(f"v_mul_u32_u24 v83, 200, v83")
    A(f"v_and_b32 v85, 3, v82")
    A(f"v_lshl_add_u32 v83, v85, 3, v83")
    A(f"v_add_u32 {vPHB}, {L_PHI}, v83")
    A(f"v_add_u32 {vPHA}, s91, {vPHB}")
    A(f"v_and_b32 v83, 1, v84")
    A(f"v_lshlrev_b32 v83, 9, v83")
    A(f"v_lshrrev_b32 v84, 1, v84")
    A(f"v_lshl_add_u32 v83, v84, 3, v83")
    A(f"v_lshl_add_u32 v83, v82, 4, v83")
    A(f"s_lshl_b32 s91, {sW}, 10\n s_add_u32 s91, s91, {L_KVI}")
    A(f"v_add_u32 {vKVW}, s91, v83")
    A(f"v_bfe_u32 v82, v80, 1, 2")
    A(f"v_lshrrev_b32 v83, 4, v80")
    A(f"v_lshl_add_u32 v82, v83, 2, v82")
    A(f"v_xor_b32 v82, v82, v81")
    A(f"v_lshlrev_b32 v84, 7, v80")
    A(f"v_add_u32 v84, s73, v84")
    A(f"v_mul_u32_u24 v83, 26624, v83")
    A(f"v_sub_u32 v83, 24576, v83")
    for u in range(4):
        A(f"v_xor_b32 v85, {2 * u}, v82")
        A(f"v_lshl_add_u32 v{90 + u}, v85, 4, v84")
        A(f"v_add_u32 v{94 + u}, v{90 + u}, v83")

def coop_ops():
    lo, st = [], []
    def guard(n, lim, src):
        A(f"s_cmp_lt_u32 {n}, {lim}\n s_cselect_b64 {sM}, -1, 0\n s_cselect_b32 {sT1}, {sT1}, 0")
        A(f"v_cndmask_b32 v98, v99, {src}, {sM}")
    def blk(n, reg, srd_, st_set, wo):
        def load():
            if wo:
                A(f"s_mul_i32 {sT1}, {sW}, 7\n s_add_u32 {sT1}, {sT1}, {n}\n s_mul_i32 {sT1}, {sT1}, {16 * 896}")
                guard(n, 7, "v87")
            else:
                A(f"s_mul_i32 {sT2}, {n}, 37\n s_lshr_b32 {sT2}, {sT2}, 8")
                A(f"s_mul_i32 {sT1}, {sT2}, 7\n s_sub_u32 {sT1}, {n}, {sT1}")
                A(f"s_mul_i32 {sT3}, {sW}, 7\n s_add_u32 {sT1}, {sT1}, {sT3}\n s_mul_i32 {sT1}, {sT1}, {16 * 2688}")
                A(f"s_add_u32 {sT3}, {sT2}, 1\n s_cmp_eq_u32 {sT2}, 2\n s_cselect_b32 {sT3}, 0, {sT3}\n s_mul_i32 {sT3}, {sT3}, 896")
                A(f"s_add_u32 {sT1}, {sT1}, {sT3}")
                guard(n, 21, vWD)
            A(f"buffer_load_dwordx4 {v(reg,4)}, v98, {srd_}, {sT1} offen")
        def store():
            if wo:
                A(f"s_lshl_b32 {sT1}, {n}, 10\n s_add_u32 {sT1}, {sT1}, {st_set * 16 * 114688 + 3 * 28672}\n s_add_u32 {sT1}, {sT1}, {sIMG}")
                guard(n, 7, vL16)
            else:
                A(f"s_mul_i32 {sT2}, {n}, 37\n s_lshr_b32 {sT2}, {sT2}, 8")
                A(f"s_mul_i32 {sT2}, {sT2}, {28672 - 7168}\n s_lshl_b32 {sT1}, {n}, 10\n s_add_u32 {sT1}, {sT1}, {sT2}")
                A(f"s_add_u32 {sT1}, {sT1}, {st_set * 16 * 114688}\n s_add_u32 {sT1}, {sT1}, {sIMG}")
                guard(n, 21, vL16)
            A(f"buffer_store_dwordx4 {v(reg,4)}, v98, {WS}, {sT1} offen sc1")
        lo.append(load); st.append(store)
    A(f"s_add_u32 s74, {sR}, 16\n s_sub_u32 s75, {sR}, 5")
    A("v_mov_b32 v99, 0x40000000")
    regs = [104, 108, 112, 116, 240, 244]
    for st_set, (w_, wo_) in enumerate(((WA, WOA), (WB, WOB))):
        blk(sR, regs[3 * st_set], w_, st_set, False)
        blk("s74", regs[3 * st_set + 1], w_, st_set, False)
        blk("s75", regs[3 * st_set + 2], wo_, st_set, True)
    return lo, st

def p1():
    nyoung = len(A.vm) - XMARK
    A(f"s_waitcnt vmcnt({nyoung})")
    stamp("x landed")
    def rd(c):
        for u in range(4):
            if c < 6: A(f"ds_read_b128 {v(ACT+16*c+4*u,4)}, v{90+u} offset:{4096*c}")
            else: A(f"ds_read_b128 {v(ACT+16*c+4*u,4)}, v{94+u}")
    def dots(c):
        for i in range(16 * c, 16 * c + 16):
            r = ACT + i
            A(f"v_dot2_f32_bf16 {v(64+(i&1))}, {v(r)}, {v(r)}, {'0' if i < 2 else v(64+(i&1))}")
            A(f"v_dot2_f32_bf16 {v(66+(i&1))}, {v(r)}, {sT0}, {'0' if i < 2 else v(66+(i&1))}")
    A(f"s_mov_b32 {sT0}, 0x3f803f80")
    rd(0); rd(1); rd(2)
    A.wait_regs(v(ACT, 16))
    for rg in range(2, 4):
        A(f"s_add_u32 m0, s73, {1024 * (rg - 2)}")
        A(f"s_add_u32 s75, s72, {768 + 7168 * rg}")
        A(f"buffer_load_dwordx4 v89, {X}, s75 offen lds")
    for c in range(6):
        dots(c)
        if c + 3 < 6: rd(c + 3)
    for i in range(8):
        A(f"v_or_b32 {v(104+2*i)}, {v(104+2*i)}, {v(105+2*i)}")
        A(f"v_accvgpr_write_b32 {a(WP+i)}, {v(104+2*i)}")
    A("s_waitcnt vmcnt(0)")
    rd(6)
    A("v_mov_b32 v80, 0")
    A(f"global_load_dword v123, v80, s[20:21] sc1")
    A.wait_regs(v(ACT + 96, 16))
    A("s_barrier")
    stamp("W landed")
    lo, st = coop_ops()
    for f in lo: f()
    dots(6)
    A("v_add_f32 v120, v66, v67")
    A("v_add_f32 v121, v64, v65")
    wr = colsum_mfma((0, 1), (AK, AV))
    for f in stats_finish_ops("v120", "v121", "v122"): f()
    for f in wr: f()
    stamp("colsum")
    g = Gemm(ksteps_nat(), [(AK, L_K, True, "0"), (AV, L_V, True, "0")])
    yl = [lambda g_=g_: A(f"buffer_load_dwordx2 {v(64+2*g_,2)}, {vXO}, {X}, 0 offen offset:{16*g_}") for g_ in range(4)]
    ops = dma_direct_q() + [lambda: A("s_waitcnt lgkmcnt(0)\n s_barrier")] + colsum_finish_ops(CSA, (0, 1)) + yl + st
    fill = spread(ops, [(s, t) for s in range(0, 27) for t in range(2)], 1)
    fill[(27, 0)] = lambda: rank1(AK, CSA, True)
    g.run(fill, tail=2)
    rank1(AV, CSA + 2, True)
    stamp("p1 gemm")
    for g_ in range(4):
        for j in range(2):
            A(f"v_lshlrev_b32 {v(Y+4*g_+2*j)}, 16, {v(64+2*g_+j)}")
            A(f"v_and_b32 {v(Y+4*g_+2*j+1)}, 0xffff0000, {v(64+2*g_+j)}")
    L = lab("init")
    A(f"v_readfirstlane_b32 {sT0}, v123")
    A(f"s_cmp_lg_u32 {sT0}, 0")
    A(f"s_cbranch_scc1 {L}_go")
    vm_save = list(A.vm)
    A("v_mov_b32 v80, 0")
    A.label(L)
    A(f"global_load_dword v123, v80, s[20:21] sc1")
    A(f"s_sub_u32 {sBUD}, {sBUD}, 1")
    A(f"s_cbranch_scc1 {L}_to")
    A(f"v_readfirstlane_b32 {sT0}, v123")
    A(f"s_cmp_eq_u32 {sT0}, 0")
    A(f"s_cbranch_scc1 {L}")
    A(f"s_branch {L}_go")
    A.label(L + "_to")
    A(f"s_mov_b32 {sBUD}, 0")
    A("s_waitcnt vmcnt(0)")
    A.label(L + "_go")
    A.vm = vm_save

def qkv_act(buf, cs, v_tr):
    g = Gemm(ksteps_act(), [(AK, L_K, True, "0"), (AV, L_V, v_tr, "0")])
    gather_setup(buf)
    g.prefetch()
    wait_row()
    stamp("y ready")
    loads = gather(True)
    ops = stats_gather_ops("v120", "v121") + stats_finish_ops("v120", "v121", "v122")
    ops.append(lambda: rank1(AK, cs, True))
    ops.append(lambda: rank1(AV, cs + 2, v_tr))
    if not v_tr:
        ops.append(lambda: A(f"v_and_b32 v122, 31, {vLANE}"))
        ops.append(lambda: A(f"s_lshl_b32 {sT1}, {sW}, 7\n s_add_u32 {sT1}, {sT1}, {L_RS}"))
        ops.append(lambda: A(f"v_lshl_add_u32 v122, v122, 2, {sT1}"))
        ops.append(lambda: A(f"ds_write_b32 v122, {vRSTD}"))
        ops.append(lambda: A(f"v_lshrrev_b32 v122, 5, {vLANE}"))
        ops.append(lambda: A(f"v_lshl_add_u32 v122, v122, 4, {sT1}"))
        for gi in range(4):
            ops.append(lambda gi=gi: A(f"ds_read_b128 {v(104+4*gi,4)}, v122 offset:{32*gi}"))
    fill = spread(ops, [(s, t) for s in range(3, 26) for t in range(2)], 2)
    g.run(paced(loads, fill, int(OPT.get("ahead", 14))), tail=2)

def a_rest(it):
    nat = it == 0
    stamp("A gemm done")
    A(f"v_mul_f32 v122, {fbits(LOG2E)}, {vRSTD}")
    scale_cvt(80, AK, (122, 0), 8)
    mfma(v(AQ, 16), a(WP, 4), v(80, 4), "0")
    mfma(v(AQ, 16), a(WP + 4, 4), v(84, 4), v(AQ, 16))
    scale_cvt(104, AV, (124, 0), 8)
    exec_set(sHI)
    A("v_mov_b32 v110, 0x00003f80\n v_mov_b32 v111, 0")
    exec_set("-1")
    for gi in range(4): A(f"ds_write_b64 {vPHW}, {v(104+2*gi,2)} offset:{128+16*gi}")
    phi(AQ, 88, 104, 112, 120, lambda sg: [A(f"ds_write_b64 {vPHW}, {v(104+8*sg+2*gi,2)} offset:{64*sg+16*gi}") for gi in range(4)])
    A(f"s_lshl_b32 {sT1}, {sR}, 10")
    A(f"s_add_u32 {sT1}, {sT1}, {sKVP}")
    A(f"s_add_u32 {sT1}, {sT1}, {WS_KVP + it * (1 << 20)}")
    A("s_waitcnt vmcnt(0) lgkmcnt(0)" if nat else "s_waitcnt lgkmcnt(0)")
    A("s_barrier")
    def rd(tb):
        R = RING + 12 * tb
        for q in range(2): A(f"ds_read_b64_tr_b16 {a(R+2*q,2)}, {vPHA} offset:{(tb*32+4*q)*200}")
        for dt in range(2):
            for q in range(2): A(f"ds_read_b64_tr_b16 {a(R+4+4*dt+2*q,2)}, {vPHB} offset:{(tb*32+4*q)*200+128+32*dt}")
    rd(0); rd(1)
    for tb in range(4):
        R = RING + 12 * tb
        for dt in range(2):
            A(f"v_mfma_f32_16x16x32_bf16 {v(36+4*dt,4)}, {a(R,4)}, {a(R+4+4*dt,4)}, {'0' if tb == 0 else v(36+4*dt,4)}")
            if dt == 0 and tb + 2 < 4: rd(tb + 2)
    g = Gemm(ksteps_nat() if nat else ksteps_act(), [(AQ, L_Q, True, "0")])
    if not nat: g.prefetch()
    for i in range(4): A(f"v_cvt_pk_bf16_f32 {v(44+i)}, {v(36+2*i)}, {v(37+2*i)}")
    A(f"buffer_store_dwordx4 {v(44,4)}, {vL16}, {WS}, {sT1} offen sc1")
    stamp("kvp stored")
    ARR = int(OPT.get("arr", 18))
    if nat:
        for f in colsum_mfma((2,), (None, None, AV)): f()
        ops = [lambda: A("s_waitcnt lgkmcnt(0)\n s_barrier")] + colsum_finish_ops(CSA, (2,))
        fill = spread(ops, [(s, 0) for s in range(12, 28)], 2)
        fill[(ARR - 8, 0)] = arrive_col
    else:
        fill = {(ARR, 0): arrive_col}
    g.run(fill)
    rank1(AQ, CSA + 4, True)
    A(f"v_mul_f32 v122, {fbits(LOG2E)}, {vRSTD}")
    A(f"s_add_u32 {sG[0]}, {sKVP}, {WS_KVP + it * (1 << 20)}")
    for i in range(1, 4): A(f"s_add_u32 {sG[i]}, {sG[0]}, {4096*i}")
    scale_cvt(80, AQ, (122, 0), 8)
    mfma(v(AQ, 16), a(WP, 4), v(80, 4), "0")
    mfma(v(AQ, 16), a(WP + 4, 4), v(84, 4), v(AQ, 16))
    phi(AQ, 88, 104, 112, 120, None, lambda: poll_issue(sCOLC))
    stamp("phi_q done")
    wait_col(True)
    stamp("kvp ready")
    for r in range(16):
        A(f"buffer_load_dwordx4 {v(ACT+4*r,4)}, {vL16}, {WS}, {sG[r>>2]} offen offset:{1024*(r&3)} sc1")
    dm = dma_img(0, (3,)) if nat else []
    for r in range(16):
        for i in range(4):
            A(f"v_dot2_f32_bf16 {v(80+2*i)}, {v(ACT+4*r+i)}, {sC10}, {'0' if r == 0 else v(80+2*i)}")
            A(f"v_dot2_f32_bf16 {v(81+2*i)}, {v(ACT+4*r+i)}, {sC01}, {'0' if r == 0 else v(81+2*i)}")
        if r >= 8 and dm: dm.pop(0)()
    for i in range(4): A(f"v_cvt_pk_bf16_f32 {v(88+i)}, {v(80+2*i)}, {v(81+2*i)}")
    for dt in range(2): A(f"ds_write_b64 {vKVW}, {v(88+2*dt,2)} offset:{256*dt}")
    A("s_waitcnt lgkmcnt(0)")
    A("s_barrier")
    for u in range(4): A(f"ds_read_b128 {a(WR+4*u,4)}, {vLS} offset:{L_KVI - L_SC + 1024*u}")
    for u in range(4): mfma(v(AK, 16), a(WR + 4 * u, 4), v(104 + 4 * u, 4), "0" if u == 0 else v(AK, 16))
    normalize_publish(AK, 4 * it + 0, 1e-6, None, T=120, F=88)
    stamp("o stored")
    arrive_row()
    if nat: A("s_barrier")
    for f in dma_img(1, (0, 1, 2) if nat else (0, 1)): f()

def outproj(buf, last):
    g = Gemm(ksteps_act(), [(Y, L_WO, True, v(Y, 16))])
    gather_setup(buf)
    g.prefetch()
    wait_row()
    stamp("o ready")
    g.run(paced(gather(False), None, int(OPT.get("ahead2", 14))))
    F = 88
    if last:
        for i in range(8): A(f"v_cvt_pk_bf16_f32 {v(F+i)}, {v(Y+2*i)}, {v(Y+2*i+1)}")
        for gi in range(3): A(f"buffer_store_dwordx2 {v(F+2*gi,2)}, {vXO}, {OUT}, 0 offen offset:{16*gi}")
        exec_set(sLO)
        A(f"buffer_store_dwordx2 {v(F+6,2)}, {vXO}, {OUT}, 0 offen offset:48")
        exec_set("-1")
        return
    A(f"s_add_u32 {sT1}, {sPUB}, {WS_ACT + (buf + 1) * (2 << 20)}")
    for i in range(4): A(f"v_cvt_pk_bf16_f32 {v(F+i)}, {v(Y+2*i)}, {v(Y+2*i+1)}")
    A(f"buffer_store_dwordx4 {v(F,4)}, {vL16}, {WS}, {sT1} offen sc1")
    A(f"v_pk_add_f32 v[104:105], {v(Y,2)}, {v(Y+2,2)}")
    A(f"v_pk_mul_f32 v[106:107], {v(Y,2)}, {v(Y,2)}")
    A(f"v_pk_fma_f32 v[106:107], {v(Y+2,2)}, {v(Y+2,2)}, v[106:107]")
    for i in range(2, 8):
        if i == 6: exec_set(sLO)
        A(f"v_pk_add_f32 v[104:105], v[104:105], {v(Y+2*i,2)}")
        A(f"v_pk_fma_f32 v[106:107], {v(Y+2*i,2)}, {v(Y+2*i,2)}, v[106:107]")
    exec_set("-1")
    A("v_add_f32 v104, v104, v105")
    A("v_add_f32 v106, v106, v107")
    for i in range(4, 8): A(f"v_cvt_pk_bf16_f32 {v(F+i)}, {v(Y+2*i)}, {v(Y+2*i+1)}")
    A("v_permlane32_swap_b32 v105, v104")
    A("v_permlane32_swap_b32 v107, v106")
    exec_set(sHI)
    A(f"v_add_f32 {v(F+6)}, v104, v105")
    A(f"v_add_f32 {v(F+7)}, v106, v107")
    exec_set(sEVEN)
    A(f"v_swap_b32 {v(F+4)}, {v(F+6)}")
    A(f"v_swap_b32 {v(F+5)}, {v(F+7)}")
    exec_set("-1")
    A(f"buffer_store_dwordx4 {v(F+4,4)}, {vL16}, {WS}, {sT1} offen offset:1024 sc1")
    stamp("y stored")
    arrive_row()
    A("s_barrier")

KF, VF, QF, O, S0, S1, P = 80, 88, 104, 128, 32, 48, 64
def qreg(j, i): return v(QF + 4 * i, 4) if j == 0 else a(QA + 8 * (j - 1) + 4 * i, 4)

def attention(it):
    last = it == 1
    stamp("B gemm done")
    scale_cvt(KF, AK, (124, 0), 8)
    exec_set(sHI)
    A(f"v_mov_b32 {v(KF+6)}, 0x3f803f80\n v_mov_b32 {v(KF+7)}, 0x00003f80")
    exec_set("-1")
    A(f"s_lshl_b32 {sT1}, {sR}, 12")
    A(f"s_add_u32 {sT1}, {sT1}, {sKV}")
    A(f"s_add_u32 {sT1}, {sT1}, {WS_KV + it * (4 << 20)}")
    A(f"buffer_store_dwordx4 {v(KF,4)}, {vL16}, {WS}, {sT1} offen sc1")
    A(f"buffer_store_dwordx4 {v(KF+4,4)}, {vL16}, {WS}, {sT1} offen offset:1024 sc1")
    for i in range(8): A(f"v_pk_mul_f32 {v(AV+2*i,2)}, {v(AV+2*i,2)}, {v(104+2*i,2)}")
    for i in range(8): A(f"v_cvt_pk_bf16_f32 {v(VF+i)}, {v(AV+2*i)}, {v(AV+2*i+1)}")
    exec_set(sONE28)
    for i in range(8): A(f"v_mov_b32 {v(VF+i)}, 0x3f803f80")
    exec_set("-1")
    A(f"buffer_store_dwordx4 {v(VF,4)}, {vL16}, {WS}, {sT1} offen offset:2048 sc1")
    A(f"buffer_store_dwordx4 {v(VF+4,4)}, {vL16}, {WS}, {sT1} offen offset:3072 sc1")
    stamp("kv stored")
    if it == 1: A("s_barrier")
    g = Gemm(ksteps_act(), [(AQ, L_Q, True, "0")])
    g.run({(int(OPT.get("arr", 18)), 0): arrive_col, (8, 0): lambda: rank1(AQ, CSB + 4, True)})
    A(f"v_mul_f32 v122, {fbits(28 ** -0.5 * LOG2E)}, {vRSTD}")
    scale_cvt(QF, AQ, (122, 0), 8)
    exec_set(sHI)
    A(f"v_mov_b32 {v(QF+6)}, 0\n v_mov_b32 {v(QF+7)}, 0")
    exec_set("-1")
    mfma(v(S0, 16), v(KF, 4), v(QF, 4), "0")
    mfma(v(S0, 16), v(KF + 4, 4), v(QF + 4, 4), v(S0, 16))
    A(f"s_mov_b32 {sPASS}, 0")
    A(f"v_max3_f32 {vMX}, {v(S0)}, {v(S0+1)}, {v(S0+2)}")
    for i in range(3, 15, 2): A(f"v_max3_f32 {vMX}, {vMX}, {v(S0+i)}, {v(S0+i+1)}")
    A(f"v_max_f32 {vMX}, {vMX}, {v(S0+15)}")
    A(f"v_mov_b32 v72, {vMX}")
    A(f"v_permlane32_swap_b32 v72, {vMX}")
    A(f"v_max_f32 {vMX}, {vMX}, v72")
    A("s_waitcnt lgkmcnt(0)")
    A.settle()
    Lre = lab("attn")
    A.label(Lre)
    A(f"v_cvt_pk_bf16_f32 v72, -{vMX}, 0")
    A(f"v_lshlrev_b32 v73, 16, v72")
    A(f"v_sub_f32_e64 v73, -{vMX}, v73")
    A(f"v_cvt_pk_bf16_f32 v72, -{vMX}, v73")
    A(f"v_and_b32 v74, 0xffff0000, v72")
    A(f"v_sub_f32 v73, v73, v74")
    exec_set(sHI)
    A(f"v_mov_b32 {v(QF+6)}, v72")
    A(f"v_cvt_pk_bf16_f32 {v(QF+7)}, v73, 0")
    exec_set("-1")
    A(f"s_lshl_b32 {sT1}, {sW}, 11\n s_add_u32 {sT1}, {sT1}, {L_QX}")
    A(f"v_add_u32 v72, {sT1}, {vL16}")
    A(f"ds_write_b128 v72, {v(QF,4)}")
    A(f"ds_write_b128 v72, {v(QF+4,4)} offset:1024")
    for j in range(1, 4):
        A(f"s_add_u32 {sT1}, {sW}, {j}\n s_and_b32 {sT1}, {sT1}, 3\n s_lshl_b32 {sT2}, {sT1}, 11\n s_add_u32 {sT2}, {sT2}, {L_QX}")
        A(f"v_add_u32 {v(72+j)}, {sT2}, {vL16}")
        A(f"s_mul_i32 {sT2}, {sT1}, 12288\n s_add_u32 {sT2}, {sT2}, {L_RED + 4096*(j-1)}")
        A(f"v_add_u32 {v(76+j)}, {sT2}, {vL16}")
    A(f"s_mul_i32 {sT2}, {sW}, 12288\n s_add_u32 {sT2}, {sT2}, {L_RED}")
    A(f"v_add_u32 v76, {sT2}, {vL16}")
    A("s_waitcnt lgkmcnt(0)")
    poll_issue(sCOLC)
    A("s_barrier")
    for j in range(1, 4):
        A(f"ds_read_b128 {qreg(j,0)}, {v(72+j)}")
        A(f"ds_read_b128 {qreg(j,1)}, {v(72+j)} offset:1024")
    A("s_waitcnt lgkmcnt(0)")
    A("s_barrier")
    stamp("q ready")
    wait_col(True)
    stamp("kv ready")
    def kreg(kt, i): return v(KF + 4 * i, 4) if kt == 0 else a(RING + 16 * ((kt - 1) % 8) + 4 * i, 4)
    def vreg(kt, i): return v(VF + 4 * i, 4) if kt == 0 else a(RING + 16 * ((kt - 1) % 8) + 8 + 4 * i, 4)
    loads = []
    for kt in range(1, 16):
        for i in range(4):
            def f(kt=kt, i=i):
                if i == 0:
                    A(f"s_add_u32 {sT2}, {sR}, {kt}\n s_and_b32 {sT2}, {sT2}, 15\n s_lshl_b32 {sT2}, {sT2}, 12\n s_add_u32 {sT2}, {sT2}, {sT3}")
                A(f"buffer_load_dwordx4 {a(RING+16*((kt-1)%8)+4*i,4)}, {vL16}, {WS}, {sT2} offen offset:{1024*i} sc1")
            loads.append(f)
    dm = []
    A(f"s_add_u32 {sT3}, {sKV}, {WS_KV + it * (4 << 20)}")
    PRE = int(OPT.get("pre", 8))
    for f in loads[:PRE]: f()
    li = [PRE]; di = [0]
    def next_load(n):
        if li[0] < len(loads):
            kt = li[0] // 4 + 1
            if kt < 9 or n > 4 * (kt - 8) + 5:
                loads[li[0]](); li[0] += 1; return True
        return False
    def next_dma():
        if di[0] < len(dm): dm[di[0]](); di[0] += 1
    Sb = (S0, S1)
    def S_(n, i):
        kt, j = n >> 2, n & 3
        mfma(v(Sb[n & 1], 16), kreg(kt, i), qreg(j, i), "0" if i == 0 else v(Sb[n & 1], 16))
    def PV(n, i):
        kt, j = n >> 2, n & 3
        mfma(v(O + 16 * j, 16), vreg(kt, i), v(P + 4 * i, 4), "0" if (kt == 0 and i == 0) else v(O + 16 * j, 16))
    S_(0, 0); S_(0, 1)
    for n in range(64):
        s = Sb[n & 1]
        e = lambda i: A(f"v_exp_f32 {v(s+i)}, {v(s+i)}")
        c = lambda i: A(f"v_cvt_pk_bf16_f32 {v(P+i)}, {v(s+2*i)}, {v(s+2*i+1)}")
        if n + 1 < 64: S_(n + 1, 0)
        next_load(n)
        e(0); e(1); e(2); c(0); e(3)
        if n > 0: PV(n - 1, 1)
        if n < 12: next_load(n)
        elif n >= 16: next_dma()
        c(1); e(4); e(5); e(6); c(2); e(7)
        if n + 1 < 64: S_(n + 1, 1)
        A.wait_regs(vreg(n >> 2, 0), vreg(n >> 2, 1))
        c(3); e(8); e(9); e(10); c(4); e(11)
        PV(n, 0)
        if n + 2 < 64: A.wait_regs(kreg((n + 2) >> 2, 0), kreg((n + 2) >> 2, 1))
        c(5); e(12); e(13); e(14); e(15); c(6); c(7)
    PV(63, 1)
    assert li[0] == len(loads) and di[0] == len(dm)
    stamp("attn loop done")
    for j in range(1, 4):
        for i in range(4): A(f"ds_write_b128 {v(76+j)}, {v(O+16*j+4*i,4)} offset:{1024*i}")
    A("s_waitcnt vmcnt(0) lgkmcnt(0)")
    A("s_barrier")
    for j in range(3):
        for i in range(4): A(f"ds_read_b128 {v(192+16*j+4*i,4)}, v76 offset:{4096*j+1024*i}")
    for j in range(3):
        for i in range(8): A(f"v_pk_add_f32 {v(O+2*i,2)}, {v(O+2*i,2)}, {v(192+16*j+2*i,2)}")
    def check(den):
        A(f"v_pk_mul_f32 v[72:73], {v(O,2)}, 0")
        for i in range(1, 8): A(f"v_pk_fma_f32 v[72:73], {v(O+2*i,2)}, 0, v[72:73]")
        A(f"v_add_f32 v72, v72, v73")
        A(f"v_add_f32 v72, v72, {den}")
        A(f"s_mov_b32 {sT1}, {fbits(2.0**60)}")
        A(f"v_cmp_nle_f32 {sM}, v72, {sT1}")
        A(f"s_mov_b32 {sT1}, {fbits(2.0**-60)}")
        A(f"v_cmp_nge_f32 vcc, v72, {sT1}")
        A(f"s_or_b64 {sM}, {sM}, vcc")
        A(f"s_or_b32 {sT1}, s98, s99")
        A(f"v_mov_b32 v72, {sT1}")
        A(f"s_mul_i32 {sT2}, {sW}, 12288\n s_add_u32 {sT2}, {sT2}, {L_RED}")
        A(f"v_mov_b32 v73, {sT2}")
        A("ds_write_b32 v73, v72")
    normalize_publish(O, 4 * it + 2, None, check, T=200, F=192)
    A(f"v_mov_b32 v73, {L_RED}")
    A("s_waitcnt lgkmcnt(0)")
    A("s_barrier")
    for w in range(4): A(f"ds_read_b32 {v(72+w) if w != 1 else 'v71'}, v73 offset:{12288*w}")
    A("v_or_b32 v72, v72, v71")
    A("v_or3_b32 v72, v72, v74, v75")
    A(f"v_readfirstlane_b32 {sT1}, v72")
    A(f"s_andn2_b32 {sT1}, {sT1}, {sPASS}")
    A(f"s_cmp_lg_u32 {sT1}, 0")
    Lslow = lab("slow")
    A(f"s_cbranch_scc1 {Lslow}")
    slow.append((Lslow, Lre, it))
    stamp("o voted")
    arrive_row()
    if not last:
        for f in dma_img(0, (0, 1)): f()

slow = []
def slow_path(L, Lre, it):
    A.hist = []; A.vm = []; A.lg = []; A.sm = []
    A.label(L)
    A("s_waitcnt vmcnt(0) lgkmcnt(0)")
    A(f"s_mov_b32 {sPASS}, -1")
    A(f"s_add_u32 {sT3}, {sKV}, {WS_KV + it * (4 << 20)}")
    A(f"s_mov_b32 {sT2}, 16")
    for j in range(4): A(f"v_mov_b32 {v(72+j)}, 0xff800000")
    Ll = lab("mx")
    A.label(Ll)
    A(f"buffer_load_dwordx4 {a(RING,4)}, {vL16}, {WS}, {sT3} offen sc1")
    A(f"buffer_load_dwordx4 {a(RING+4,4)}, {vL16}, {WS}, {sT3} offen offset:1024 sc1")
    for j in range(4):
        mfma(v(S0, 16), a(RING, 4), qreg(j, 0), "0")
        mfma(v(S0, 16), a(RING + 4, 4), qreg(j, 1), v(S0, 16))
        for i in range(0, 16, 2): A(f"v_max3_f32 {v(72+j)}, {v(72+j)}, {v(S0+i)}, {v(S0+i+1)}")
    A(f"s_add_u32 {sT3}, {sT3}, 4096")
    A(f"s_sub_u32 {sT2}, {sT2}, 1")
    A(f"s_cmp_lg_u32 {sT2}, 0")
    A.settle()
    A(f"s_cbranch_scc1 {Ll}")
    A("s_barrier")
    for j in range(4):
        A(f"s_add_u32 {sT1}, {sW}, {j}\n s_and_b32 {sT1}, {sT1}, 3\n s_lshl_b32 {sT1}, {sT1}, 10\n s_add_u32 {sT1}, {sT1}, {L_RED + 256*j}")
        A(f"v_lshl_add_u32 v71, {vLANE}, 2, {sT1}")
        A(f"ds_write_b32 v71, {v(72+j)}")
    A(f"s_lshl_b32 {sT1}, {sW}, 10\n s_add_u32 {sT1}, {sT1}, {L_RED}")
    A(f"v_lshl_add_u32 v71, {vLANE}, 2, {sT1}")
    A("s_waitcnt lgkmcnt(0)")
    A("s_barrier")
    for j in range(4): A(f"ds_read_b32 {v(72+j)}, v71 offset:{256*j}")
    A("v_max3_f32 v72, v72, v73, v74")
    A("v_max_f32 v72, v72, v75")
    A("v_mov_b32 v73, v72")
    A("v_permlane32_swap_b32 v73, v72")
    A("v_max_f32 v72, v72, v73")
    A(f"v_add_f32 {vMX}, {vMX}, v72")
    A("s_waitcnt lgkmcnt(0)")
    A("s_barrier")
    A.settle()
    A(f"s_branch {Lre}")

def epilogue():
    if STAMPS:
        stamp("end")
        A(f"s_lshl_b32 {sT1}, s2, 2\n s_add_u32 {sT1}, {sT1}, {sW}\n s_lshl_b32 {sT1}, {sT1}, 8\n s_add_u32 {sT1}, {sT1}, {WS_DBG}")
        A(f"v_lshlrev_b32 v72, 2, {vLANE}")
        A(f"buffer_store_dword v125, v72, {WS}, {sT1} offen")
    A("s_waitcnt vmcnt(0)")
    A.label("L_end")
    A("s_endpgm")
    for args in slow: slow_path(*args)
    A.label("L_code_end")
    A.raw(f""".section .rodata,"a"
.p2align 6
.amdhsa_kernel {NAME}_kernel
  .amdhsa_next_free_vgpr 464
  .amdhsa_next_free_sgpr 102
  .amdhsa_accum_offset 256
  .amdhsa_group_segment_fixed_size 0
  .amdhsa_kernarg_size 80
  .amdhsa_user_sgpr_count 2
  .amdhsa_user_sgpr_kernarg_segment_ptr 1
  .amdhsa_system_sgpr_workgroup_id_x 1
  .amdhsa_float_denorm_mode_32 3
.end_amdhsa_kernel""")

prologue()
p1()
for it in range(2):
    a_rest(it)
    outproj(4 * it + 0, False)
    if it == 0:
        for f in dma_img(1, (3,)): f()
        for f in colsum_mfma((0, 1, 2), (AK, AV, AQ)): f()
        A("s_waitcnt lgkmcnt(0)\n s_barrier")
        for f in colsum_finish_ops(CSB, (0, 1, 2)): f()
    else:
        for f in dma_img(1, (2, 3)): f()
    qkv_act(4 * it + 1, CSB, False)
    attention(it)
    outproj(4 * it + 2, it == 1)
    if it == 0:
        for f in dma_img(0, (2, 3)): f()
        qkv_act(3, CSA, True)
epilogue()

out = OUTF[0] if OUTF else f"cdna_kernels/{NAME}.s"
open(out, "w").write(A.text())
if STAMPS: open(out + ".stamps", "w").write("\n".join(stamp_names))
print(f"wrote {out}: {A.nins} instructions, {A.nnop} nop states")
```

```python
import sys, struct, math
sys.path.insert(0, "work")
from asmgen import Asm

NAME = "interleave_layers__linear_kernel_hedgehog__mha_block__prompt"
STAMPS = "--stamps" in sys.argv
OUTF = [a for a in sys.argv[1:] if not a.startswith("--")]
OPT = {a.split("=")[0][2:]: (a.split("=") + ["1"])[1] for a in sys.argv[1:] if a.startswith("--")}

def fbits(x): return "0x%08x" % struct.unpack("<I", struct.pack("<f", x))[0]
LOG2E = math.log2(math.e)

WS_CTR = 0
WS_ACT = 1 << 20
WS_KV = WS_ACT + 7 * (2 << 20)
WS_KVP = WS_KV + 2 * (4 << 20)
WS_IMG = WS_KVP + 2 * (1 << 20)
WS_DBG = WS_IMG + (4 << 20)
WS_END = WS_DBG + (1 << 20)
L_K, L_V, L_Q, L_WO, L_SC = 0, 28672, 57344, 86016, 114688
L_PHI = L_SC
L_KVI = L_SC + 28672
L_CS = L_SC + 32768
L_RS = L_SC + 34816
L_QX = L_SC + 36864
L_MX = L_SC + 45056
L_RED = L_SC
LDS_BYTES = 163840
HIB = 57344
X, WA, WPHI, WOA, WB, WOB, OUT, WS, CODE = ("s[%d:%d]" % (i, i + 3) for i in range(24, 60, 4))
sR, sH, sW = "s60", "s61", "s62"
sBUD = "s63"
sROWC, sCOLC = "s[64:65]", "s[66:67]"
sACT, sPUB, sKV, sKVP = "s68", "s69", "s70", "s71"
sG = ["s%d" % i for i in range(72, 80)]
sHI, sLO, sONE28, sEVEN = "s[80:81]", "s[82:83]", "s[84:85]", "s[86:87]"
sONE, sT0, sT1, sT2, sT3 = "s88", "s89", "s90", "s91", "s92"
sC10, sC01 = "s93", "s94"
sPASS = "s95"
sST = "s[96:97]"
sM = "s[98:99]"
sIMG, sW7, sPOLL = "s3", "s100", "s101"
vLANE, vL16 = "v0", "v1"
vA = ["v2", "v3", "v4"]; vAH = ["v5", "v6", "v7"]
vN, vNH = "v86", "v15"
vGX, vGM, vWD, vXO = "v10", "v11", "v12", "v14"
vPHW, vPHA, vPHB, vKVW, vLS = "v8", "v9", "v13", "v103", "v102"
vMX = "v15"
Y, AK, AV, AQ = 16, 32, 48, 64
ACT = 128
vRSTD, vMB0 = "v124", 126
vSTAMP = "a250"
RING = 0
WR = 128
CSA, CSB = 160, 166
WP = 172
QA = 180

def v(i, n=1): return "v%d" % i if n == 1 else "v[%d:%d]" % (i, i + n - 1)
def a(i, n=1): return "a%d" % i if n == 1 else "a[%d:%d]" % (i, i + n - 1)

A = Asm()
nstamp = [0]
stamp_names = []
DBG_SEL = [int(x) for x in OPT["dbg"].split(",")] if "dbg" in OPT else None
allst = [0]
def stamp(name):
    if not STAMPS: return
    allst[0] += 1
    if DBG_SEL is not None and allst[0] - 1 not in DBG_SEL: return
    i = nstamp[0]; nstamp[0] += 1
    stamp_names.append(name)
    A(f"{'s_memtime' if 'cyc' in OPT else 's_memrealtime'} {sST}")
    A("s_waitcnt lgkmcnt(0)")
    A(f"v_writelane_b32 v125, s96, {i}")

uid = [0]
def lab(p):
    uid[0] += 1
    return f"L_{p}_{uid[0]}"

def mfma(d, x, y, c, k16=True):
    A(f"v_mfma_f32_32x32x16_bf16 {d}, {x}, {y}, {c}")

def exec_set(m): A(f"s_mov_b64 exec, {m}")

def arrive(ctr, n=0):
    A(f"s_waitcnt vmcnt({n})")
    A(f"s_atomic_add {sONE}, {ctr}, 0")

def poll_issue(ctr):
    A(f"s_mov_b32 {sPOLL}, 0")
    A(f"s_atomic_add {sPOLL}, {ctr}, 0 glc")

def wait_ctr(ctr, target, issued=False):
    L, Lo = lab("poll"), lab("go")
    if not issued:
        A.wait_regs(sPOLL)
        poll_issue(ctr)
    A("s_waitcnt lgkmcnt(0)")
    A(f"s_cmp_ge_u32 {sPOLL}, {target}")
    A(f"s_cbranch_scc1 {Lo}")
    A.label(L)
    poll_issue(ctr)
    A(f"s_sub_u32 {sBUD}, {sBUD}, 1")
    A(f"s_cbranch_scc1 {Lo}_to")
    A("s_waitcnt lgkmcnt(0)")
    A(f"s_cmp_lt_u32 {sPOLL}, {target}")
    A(f"s_cbranch_scc1 {L}")
    A(f"s_branch {Lo}")
    A.label(Lo + "_to")
    A(f"s_mov_b32 {sBUD}, 0")
    A("s_waitcnt lgkmcnt(0)")
    A.label(Lo)

def ksteps_act():
    out = []
    for Q in range(4):
        out.append((ACT + 32 * Q + 26, 2, 7 * (4 * Q) + 5, 7 * (4 * Q + 1) + 5))
    for Q in range(4):
        for i in range(4):
            out.append((ACT + 32 * Q + 4 * i, 0, 7 * (4 * Q + i), 7 * (4 * Q + i) + 2))
        for j in range(2):
            out.append((ACT + 32 * Q + 16 + 4 * j, 1, 7 * (4 * Q + 2 * j) + 4, 7 * (4 * Q + 2 * j) + 6))
    return out
def ksteps_nat():
    return [(ACT + 4 * s, None, 4 * s, 4 * s + 1) for s in range(28)]

def tr_read(dst, ks, tile_off):
    _, b, g0, g1 = ks
    hi = tile_off >= HIB
    base = (vNH if hi else vN) if b is None else (vAH[b] if hi else vA[b])
    off = tile_off - (HIB if hi else 0)
    A(f"ds_read_b64_tr_b16 {a(dst,2)}, {base} offset:{off + g0*256}")
    A(f"ds_read_b64_tr_b16 {a(dst+2,2)}, {base} offset:{off + g1*256}")

class Gemm:
    def __init__(self, ks, tiles):
        self.ks, self.tiles = ks, tiles
        self.nt = len(tiles)
        self.depth = min(8 // self.nt, 15 // (2 * self.nt) + 1, 4 if self.nt > 1 else 6)
        self.issued = 0
    def slot(self, s, t): return WR + 4 * ((s % (8 // self.nt)) * self.nt + t)
    def prefetch(self):
        while self.issued < self.depth - 1:
            self.issue()
    def issue(self):
        s = self.issued
        if s < len(self.ks):
            for t, (acc, off, tr, c0) in enumerate(self.tiles):
                tr_read(self.slot(s, t), self.ks[s], off)
        self.issued += 1
    def run(self, fill=None, tail=0):
        fill = fill or {}
        self.prefetch()
        n = len(self.ks)
        order = [(s, t) for s in range(n - tail) for t in range(self.nt)]
        order += [(s, t) for t in range(self.nt) for s in range(n - tail, n)]
        for s, t in order:
            k = self.ks[s]
            acc, off, tr, c0 = self.tiles[t]
            wf, af = a(self.slot(s, t), 4), v(k[0], 4)
            c = c0 if s == 0 else v(acc, 16)
            if tr: mfma(v(acc, 16), wf, af, c)
            else: mfma(v(acc, 16), af, wf, c)
            if t == 0: self.issue()
            f = fill.get((s, t))
            if f: f()

def rank1(acc, cs, tr):
    if tr: A(f"v_mfma_f32_32x32x8_bf16 {v(acc,16)}, {a(cs,2)}, {v(vMB0,2)}, {v(acc,16)}")
    else: A(f"v_mfma_f32_32x32x8_bf16 {v(acc,16)}, {v(vMB0,2)}, {a(cs,2)}, {v(acc,16)}")

def gather_setup(buf):
    A(f"s_add_u32 {sG[0]}, {sACT}, {WS_ACT + buf * (2 << 20)}")
    for i in range(1, 8): A(f"s_add_u32 {sG[i]}, {sG[0]}, {4096 * i}")

def gather(stats):
    out = []
    P = lambda txt: out.append(lambda: A(txt))
    for Q in range(4):
        R = ACT + 32 * Q
        if stats:
            P(f"buffer_load_dwordx4 {v(R+24,4)}, {vGM}, {WS}, {sG[2*Q]} offen offset:1536 sc1")
            P(f"buffer_load_dwordx4 {v(R+28,4)}, {vGM}, {WS}, {sG[2*Q]} offen offset:3584 sc1")
        else:
            P(f"buffer_load_dwordx2 {v(R+26,2)}, {vGM}, {WS}, {sG[2*Q]} offen offset:1544 sc1")
            P(f"buffer_load_dwordx2 {v(R+28,2)}, {vGM}, {WS}, {sG[2*Q]} offen offset:3584 sc1")
    for Q in range(4):
        R = ACT + 32 * Q
        for i in range(4):
            P(f"buffer_load_dwordx4 {v(R+4*i,4)}, {vL16}, {WS}, {sG[2*Q+(i>>1)]} offen offset:{2048*(i&1)} sc1")
        for j in range(2):
            P(f"buffer_load_dwordx4 {v(R+16+4*j,4)}, {vGX}, {WS}, {sG[2*Q+j]} offen offset:1024 sc1")
    return out

def paced(loads, fill, ahead):
    for f in loads[:ahead]: f()
    rest = loads[ahead:]
    fill = dict(fill or {})
    s = 0
    while rest:
        n = 2 if s < 4 else 1
        chunk, rest = rest[:n], rest[n:]
        old = fill.get((s, 0))
        fill[(s, 0)] = (lambda ch=chunk, old=old: ([f() for f in ch], old() if old else None))
        s += 1
    return fill

def dma_img(st, tiles):
    out = []
    for t in tiles:
        for i in range(7):
            def f(t=t, i=i):
                if i in (0, 4):
                    A(f"s_add_u32 m0, {sW7}, {t * 28672 + i * 1024}")
                    A(f"s_add_u32 {sT1}, {sIMG}, {st * 16 * 114688 + t * 28672 + i * 1024}")
                A(f"buffer_load_dwordx4 {vL16}, {WS}, {sT1} offen offset:{1024 * (i % 4)} sc1 lds")
            out.append(f)
    return out

def dma_direct_q():
    out = []
    for i in range(7):
        def f(i=i):
            A(f"s_add_u32 m0, {sW7}, {L_Q + i * 1024}")
            A(f"s_mul_i32 {sT1}, {sW}, {7 * 16 * 2688}")
            A(f"s_add_u32 {sT1}, {sT1}, {i * 16 * 2688}")
            A(f"buffer_load_dwordx4 {vWD}, {WA}, {sT1} offen lds")
        out.append(f)
    return out

def both_halves_sum(x, t):
    A(f"v_mov_b32 {t}, {x}")
    A(f"v_permlane32_swap_b32 {t}, {x}")
    A(f"v_add_f32 {x}, {x}, {t}")

def stats_finish_ops(s, q, t):
    ops = []
    P = lambda txt: ops.append(lambda: A(txt))
    P(f"v_mov_b32 {t}, {s}")
    P(f"v_permlane32_swap_b32 {t}, {s}")
    P(f"v_add_f32 {s}, {s}, {t}")
    P(f"v_mov_b32 {t}, {q}")
    P(f"v_permlane32_swap_b32 {t}, {q}")
    P(f"v_add_f32 {q}, {q}, {t}")
    P(f"v_mul_f32 {s}, {fbits(-1.0/448)}, {s}")
    P(f"v_mul_f32 {q}, {fbits(1.0/448)}, {q}")
    P(f"v_fma_f32 {q}, -{s}, {s}, {q}")
    P(f"v_max_f32 {q}, 0, {q}")
    P(f"v_add_f32 {q}, {fbits(1e-5)}, {q}")
    P(f"v_rsq_f32 {vRSTD}, {q}")
    P(f"v_cndmask_b32 {s}, {s}, 0, {sHI}")
    P(f"v_cvt_pk_bf16_f32 {v(vMB0+1)}, {s}, 0")
    P(f"v_lshlrev_b32 {t}, 16, {v(vMB0+1)}")
    P(f"v_sub_f32 {t}, {s}, {t}")
    P(f"v_cvt_pk_bf16_f32 {v(vMB0)}, {s}, {t}")
    return ops

def stats_gather_ops(s, q):
    ops = []
    P = lambda txt: ops.append(lambda: A(txt))
    P(f"v_add_f32 {s}, {v(ACT+24)}, {v(ACT+30)}")
    P(f"v_add_f32 {q}, {v(ACT+25)}, {v(ACT+31)}")
    for Q in range(1, 4):
        R = ACT + 32 * Q
        P(f"v_add_f32 {s}, {s}, {v(R+24)}")
        P(f"v_add_f32 {q}, {q}, {v(R+25)}")
        P(f"v_add_f32 {s}, {s}, {v(R+30)}")
        P(f"v_add_f32 {q}, {q}, {v(R+31)}")
    return ops

def spread(ops, slots, per):
    fill = {}
    i = 0
    for sl in slots:
        chunk = ops[i:i + per]; i += per
        if chunk: fill[sl] = (lambda ch=chunk: [f() for f in ch])
    assert i >= len(ops), (i, len(ops))
    return fill

def scale_cvt(dst, acc, sc, n=8):
    reg, sel = sc
    for i in range(n):
        A(f"v_pk_mul_f32 {v(acc+2*i,2)}, {v(acc+2*i,2)}, {v(reg,2)} op_sel:[0,{sel}] op_sel_hi:[1,{sel}]")
    for i in range(n):
        A(f"v_cvt_pk_bf16_f32 {v(dst+i)}, {v(acc+2*i)}, {v(acc+2*i+1)}")

def nat_base(dst):
    A(f"v_lshrrev_b32 {dst}, 5, {vLANE}")
    A(f"v_lshl_add_u32 {dst}, {dst}, 8, {vA[0]}")

def colsum_mfma(tiles, accs):
    ones = 80
    for i in range(4): A(f"v_mov_b32 {v(ones+i)}, 0x3f803f80")
    nat_base("v84")
    A(f"v_add_u32 v84, {sW7}, v84")
    A(f"v_add_u32 v85, {HIB}, v84")
    seq = [(i, t) for i in range(7) for t in tiles]
    offs = (L_K, L_V, L_Q)
    def rd(n):
        if n >= len(seq): return
        i, t = seq[n]
        base, off = ("v85", offs[t] - HIB) if offs[t] >= HIB else ("v84", offs[t])
        A(f"ds_read_b64_tr_b16 {a(WR+4*(n%8),2)}, {base} offset:{off + i*1024}")
        A(f"ds_read_b64_tr_b16 {a(WR+4*(n%8)+2,2)}, {base} offset:{off + i*1024 + 256}")
    for n in range(5): rd(n)
    for n, (i, t) in enumerate(seq):
        mfma(v(accs[t], 16), v(ones, 4), a(WR + 4 * (n % 8), 4), "0" if i == 0 else v(accs[t], 16))
        rd(n + 5)
    A(f"v_and_b32 v84, 31, {vLANE}")
    A(f"s_mul_i32 {sT1}, {sW}, 384")
    A(f"s_add_u32 {sT1}, {sT1}, {L_CS}")
    A(f"v_lshl_add_u32 v85, v84, 2, {sT1}")
    return [lambda t=t: A(f"ds_write_b32 v85, {v(accs[t])} offset:{128*t}") for t in tiles]

def colsum_finish_ops(cs, tiles):
    ops = []
    P = lambda txt: ops.append(lambda: A(txt))
    P(f"v_and_b32 v84, 31, {vLANE}")
    P(f"v_lshlrev_b32 v84, 2, v84")
    P(f"v_add_u32 v84, {L_CS}, v84")
    for t in tiles:
        for w in range(4): P(f"ds_read_b32 {v(88+4*t+w)}, v84 offset:{384*w+128*t}")
    for t in tiles:
        r = 88 + 4 * t
        P(f"v_add_f32 {v(r)}, {v(r)}, {v(r+1)}")
        P(f"v_add_f32 {v(r+2)}, {v(r+2)}, {v(r+3)}")
        P(f"v_add_f32 {v(r)}, {v(r)}, {v(r+2)}")
        P(f"v_cvt_pk_bf16_f32 {v(r+1)}, {v(r)}, {v(r)}")
        P(f"v_and_b32 {v(r+2)}, 0xffff0000, {v(r+1)}")
        P(f"v_sub_f32 {v(r+2)}, {v(r)}, {v(r+2)}")
        P(f"v_cvt_pk_bf16_f32 {v(r+2)}, {v(r+2)}, 0")
        P(f"v_accvgpr_write_b32 {a(cs+2*t)}, {v(r+1)}")
        P(f"v_accvgpr_write_b32 {a(cs+2*t+1)}, {v(r+2)}")
    return ops

def phi(P, E, dp, dm, T, after=None, mid=None):
    mx, nm, t0, t1 = v(T), v(T + 1), v(T + 2), v(T + 3)
    A(f"v_max3_f32 {mx}, {v(P)}, {v(P+1)}, {v(P+2)}")
    A(f"v_max3_f32 {nm}, -{v(P)}, -{v(P+1)}, -{v(P+2)}")
    for i in range(3, 13, 2):
        A(f"v_max3_f32 {mx}, {mx}, {v(P+i)}, {v(P+i+1)}")
        A(f"v_max3_f32 {nm}, {nm}, -{v(P+i)}, -{v(P+i+1)}")
    A(f"v_max_f32 {mx}, {mx}, {v(P+13)}")
    A(f"v_max_f32_e64 {nm}, {nm}, -{v(P+13)}")
    A(f"v_permlane32_swap_b32 {mx}, {nm}")
    A(f"v_max_f32 {nm}, {mx}, {nm}")
    A(f"v_mov_b32 {mx}, {nm}")
    A(f"v_permlane32_swap_b32 {mx}, {nm}")
    for i in range(7):
        A(f"v_pk_add_f32 {v(E+2*i,2)}, {v(P+2*i,2)}, {v(T,2)} op_sel:[0,0] op_sel_hi:[1,0] neg_lo:[0,1] neg_hi:[0,1]")
        A(f"v_pk_add_f32 {v(P+2*i,2)}, {v(P+2*i,2)}, {v(T,2)} op_sel:[0,1] op_sel_hi:[1,1] neg_lo:[1,1] neg_hi:[1,1]")
    for i in range(14):
        A(f"v_exp_f32 {v(E+i)}, {v(E+i)}")
        A(f"v_exp_f32 {v(P+i)}, {v(P+i)}")
    if mid: mid()
    A(f"v_pk_add_f32 {v(T,2)}, {v(E,2)}, {v(E+2,2)}")
    A(f"v_pk_add_f32 {v(T+2,2)}, {v(P,2)}, {v(P+2,2)}")
    for i in range(2, 7):
        A(f"v_pk_add_f32 {v(T,2)}, {v(T,2)}, {v(E+2*i,2)}")
        A(f"v_pk_add_f32 {v(T+2,2)}, {v(T+2,2)}, {v(P+2*i,2)}")
    A(f"v_add_f32 {mx}, {mx}, {nm}")
    A(f"v_add_f32 {nm}, {t0}, {t1}")
    A(f"v_mov_b32 {v(dp+7)}, 0")
    A(f"v_permlane32_swap_b32 {mx}, {nm}")
    A(f"v_add_f32 {nm}, {mx}, {nm}")
    A(f"v_rcp_f32 {nm}, {nm}")
    A(f"v_mov_b32 {v(dm+7)}, 0")
    A(f"v_mov_b32 {mx}, {nm}")
    A(f"v_permlane32_swap_b32 {mx}, {nm}")
    scale_cvt(dp, E, (T, 0), 7)
    if after: after(0)
    scale_cvt(dm, P, (T, 1), 7)
    if after: after(1)

def publish_act(F, buf):
    A(f"s_add_u32 {sT1}, {sPUB}, {WS_ACT + buf * (2 << 20)}")
    A(f"buffer_store_dwordx4 {v(F,4)}, {vL16}, {WS}, {sT1} offen sc1")
    A(f"buffer_store_dwordx4 {v(F+4,4)}, {vL16}, {WS}, {sT1} offen offset:1024 sc1")

def normalize_publish(D, buf, eps, pre=None, T=104, F=96):
    A(f"v_mov_b32 {v(T)}, {v(D+12)}")
    A(f"v_mov_b32 {v(T+1)}, {v(D+12)}")
    A(f"v_permlane32_swap_b32 {v(T)}, {v(T+1)}")
    if eps: A(f"v_add_f32 {v(T+1)}, {fbits(eps)}, {v(T+1)}")
    if pre: pre(v(T + 1))
    A(f"v_rcp_f32 {v(T)}, {v(T+1)}")
    scale_cvt(F, D, (T, 0), 8)
    exec_set(sEVEN)
    A(f"v_mov_b32 {v(F+6)}, {v(F+4)}")
    A(f"v_mov_b32 {v(F+7)}, {v(F+5)}")
    exec_set("-1")
    publish_act(F, buf)

rowc, colc = [0], [0]
def arrive_row(n=0): arrive(sROWC, n); rowc[0] += 16
def arrive_col(n=0): arrive(sCOLC, n); colc[0] += 16
def wait_row(issued=False): wait_ctr(sROWC, rowc[0], issued)
def wait_col(issued=False): wait_ctr(sCOLC, colc[0], issued)

def prologue():
    A.raw(f"""; @launch grid=(256,1,1) block=(256,1,1) lds={LDS_BYTES}
.amdgcn_target "amdgcn-amd-amdhsa--gfx950"
.text
.globl {NAME}_kernel
.p2align 8
.type {NAME}_kernel,@function
{NAME}_kernel:""")
    A("s_cmp_ge_u32 s2, 256")
    A("s_cbranch_scc1 L_end")
    A("s_load_dwordx16 s[4:19], s[0:1], 0")
    A("s_load_dwordx4 s[20:23], s[0:1], 64")
    A("s_getpc_b64 s[56:57]")
    A("s_and_b32 s56, s56, 0xffffff00")
    A("s_and_b32 s57, s57, 0xffff")
    A(f"s_mov_b32 s58, L_code_end-{NAME}_kernel")
    A("s_mov_b32 s59, 0x20000")
    A("v_lshlrev_b32 v2, 7, v0")
    A(f"buffer_load_dword v250, v2, {CODE}, 0 offen")
    A("v_add_u32 v2, 0x8000, v2")
    A(f"buffer_load_dword v251, v2, {CODE}, 0 offen")
    A("v_lshrrev_b32 v1, 6, v0")
    A(f"v_readfirstlane_b32 {sW}, v1")
    A("v_and_b32 v0, 63, v0")
    if STAMPS: A("v_mov_b32 v125, 0")
    stamp("start")
    if OPT.get("map", "0") == "0":
        A("s_and_b32 s89, s2, 7")
        A("s_lshl_b32 s89, s89, 1")
        A("s_bfe_u32 s90, s2, 0x10003")
        A(f"s_add_u32 {sR}, s89, s90")
        A(f"s_lshr_b32 {sH}, s2, 4")
    elif OPT["map"] == "2":
        A("s_bfe_u32 s89, s2, 0x20001\n s_lshl_b32 s89, s89, 2\n s_bfe_u32 s90, s2, 0x20003")
        A(f"s_add_u32 {sR}, s89, s90")
        A("s_and_b32 s89, s2, 1\n s_lshl_b32 s89, s89, 3\n s_lshr_b32 s90, s2, 5")
        A(f"s_add_u32 {sH}, s89, s90")
    elif OPT["map"] == "3":
        A("s_bfe_u32 s89, s2, 0x10002\n s_lshl_b32 s89, s89, 3\n s_bfe_u32 s90, s2, 0x30003")
        A(f"s_add_u32 {sR}, s89, s90")
        A("s_and_b32 s89, s2, 3\n s_lshl_b32 s89, s89, 2\n s_lshr_b32 s90, s2, 6")
        A(f"s_add_u32 {sH}, s89, s90")
    A(f"s_mov_b32 {sBUD}, 0x40000")
    A(f"s_mov_b32 {sONE}, 1")
    A(f"s_mov_b32 {sC10}, 0x00003f80")
    A(f"s_mov_b32 {sC01}, 0x3f800000")
    A("s_mov_b32 s80, 0\n s_mov_b32 s81, -1\n s_mov_b32 s82, -1\n s_mov_b32 s83, 0")
    A("s_mov_b32 s84, 0x10000000\n s_mov_b32 s85, 0x10000000")
    A(f"s_bitcmp1_b32 {sH}, 0")
    A(f"s_cselect_b64 {sEVEN}, 0, {sHI}")
    A(f"s_lshl_b32 s89, {sR}, 2\n s_add_u32 s89, s89, {sW}")
    A(f"s_lshl_b32 s90, {sH}, 2\n s_add_u32 s90, s90, {sW}")
    A(f"s_lshl_b32 {sACT}, s89, 15")
    A(f"s_lshl_b32 s91, {sH}, 11\n s_add_u32 {sPUB}, {sACT}, s91")
    A(f"s_lshl_b32 {sKV}, s90, 16")
    A(f"s_lshl_b32 {sKVP}, s90, 14")
    A(f"s_mul_i32 {sW7}, {sW}, 7168")
    A(f"s_mul_i32 {sIMG}, {sH}, 114688\n s_add_u32 {sIMG}, {sIMG}, {sW7}\n s_add_u32 {sIMG}, {sIMG}, {WS_IMG}")
    A(f"v_lshlrev_b32 {vL16}, 4, {vLANE}")
    A(f"v_lshrrev_b32 v83, 3, {vLANE}")
    A(f"v_and_b32 v84, 7, {vLANE}")
    A(f"v_lshrrev_b32 v85, 1, v83")
    A(f"v_xor_b32 v84, v84, v85")
    A(f"v_mul_u32_u24 v83, 896, v83")
    A(f"v_lshl_add_u32 v88, v84, 4, v83")
    A(f"v_xor_b32 v89, 64, v88")
    A(f"s_mul_i32 s92, {sH}, 56")
    A(f"v_lshrrev_b32 v83, 2, {vLANE}")
    A(f"v_and_b32 v84, 3, {vLANE}")
    A(f"v_lshl_add_u32 v84, v84, 4, s92")
    A(f"v_mul_u32_u24 {vWD}, 2688, v83")
    A(f"v_add_u32 {vWD}, {vWD}, v84")
    A(f"v_mul_u32_u24 v87, 896, v83")
    A(f"v_add_u32 v87, v87, v84")
    A(f"s_mul_i32 s72, s89, 28672")
    A(f"s_mul_i32 s73, {sW}, 26624\n s_add_u32 s73, s73, {L_Q}")
    A(f"s_mul_i32 s74, {sH}, 6\n s_lshr_b32 s74, s74, 4")
    A("s_waitcnt lgkmcnt(0)")
    stamp("kernargs")
    def srd(n, p, size):
        A(f"s_mov_b32 s{n}, s{p}\n s_and_b32 s{n+1}, s{p+1}, 0xffff\n s_mov_b32 s{n+2}, {size}\n s_mov_b32 s{n+3}, 0x20000")
    srd(24, 4, 1835008); srd(52, 22, WS_END)
    A(f"s_or_b32 s91, s2, {sW}")
    A("s_cmp_lg_u32 s91, 0")
    A("s_cbranch_scc1 L_noinit")
    vm_save = list(A.vm)
    A(f"v_lshlrev_b32 v84, 7, {vLANE}")
    A("v_mov_b32 v85, 0")
    A(f"buffer_store_dword v85, v84, {WS}, 0 offen sc1")
    A("v_add_u32 v84, 8192, v84")
    A(f"buffer_store_dword v85, v84, {WS}, 0 offen sc1")
    A("s_waitcnt vmcnt(0)")
    A(f"s_atomic_add {sONE}, s[20:21], 0")
    A.settle()
    A.label("L_noinit")
    A.vm = vm_save
    def xdma(rg, soff):
        A(f"buffer_load_dwordx4 v{88 + (rg >> 1)}, {X}, {soff} offen lds")
    for c in range(6):
        A("s_lshl_b32 s75, s74, 7\n s_add_u32 s75, s75, s72\n s_lshl_b32 s76, s74, 12\n s_add_u32 s76, s76, s73")
        for rg in range(4):
            A(f"s_add_u32 m0, s76, {1024 * rg}")
            if rg: A(f"s_add_u32 s75, s75, 7168")
            xdma(rg, "s75")
        A("s_add_u32 s74, s74, 1\n s_cmp_eq_u32 s74, 6\n s_cselect_b32 s74, 0, s74")
    for rg in range(2):
        A(f"s_add_u32 m0, s73, {24576 + 1024 * rg}")
        A(f"s_add_u32 s75, s72, {768 + 7168 * rg}")
        xdma(rg, "s75")
    global XMARK
    XMARK = len(A.vm)
    srd(28, 6, 1204224)
    A(f"s_mul_i32 s74, {sR}, 7\n s_lshr_b32 s74, s74, 4")
    A(f"s_and_b32 s77, {sR}, 1")
    for t in range(2):
        A(f"s_xor_b32 s78, s77, {t}")
        A(f"s_mul_i32 s76, s78, 28672\n s_add_u32 s76, s76, {sW7}")
        A(f"s_mul_i32 s78, s78, 896\n s_mul_i32 s79, {sW}, {7 * 16 * 2688}\n s_add_u32 s78, s78, s79\n s_add_u32 s78, s78, 896")
        for i in range(7):
            A("s_lshl_b32 s75, s74, 10\n s_add_u32 m0, s75, s76")
            A(f"s_mul_i32 s75, s74, {16 * 2688}\n s_add_u32 s75, s75, s78")
            A(f"buffer_load_dwordx4 {vWD}, {WA}, s75 offen lds")
            A("s_add_u32 s74, s74, 1\n s_cmp_eq_u32 s74, 7\n s_cselect_b32 s74, 0, s74")
    stamp("loads issued")
    srd(32, 8, 25088); srd(36, 10, 401408); srd(40, 14, 1204224); srd(44, 16, 401408); srd(48, 18, 1835008)
    A(f"s_lshl_b32 s91, s89, 7\n s_add_u32 s64, s22, s91\n s_addc_u32 s65, s23, 0")
    A(f"s_lshl_b32 s91, s90, 7\n s_add_u32 s91, s91, 8192\n s_add_u32 s66, s22, s91\n s_addc_u32 s67, s23, 0")
    A(f"v_and_b32 v80, 31, {vLANE}")
    A(f"v_lshrrev_b32 v81, 5, {vLANE}")
    A(f"v_lshrrev_b32 v83, 3, v80")
    A(f"v_and_b32 v84, 3, v80")
    A(f"v_lshl_add_u32 v83, v83, 2, v84")
    A(f"v_bfe_u32 v84, v80, 2, 1")
    A(f"v_mad_u32_u24 v84, v84, 14, v83")
    A(f"s_mul_i32 s91, {sH}, 1568")
    A(f"v_lshl_add_u32 v84, v84, 1, s91")
    A(f"v_mul_u32_u24 v85, 224, v81")
    A(f"v_add_u32 v84, v84, v85")
    A(f"v_mov_b32 v82, 0x40000000")
    A(f"v_cmp_gt_u32 {sM}, 14, v83")
    A(f"v_cndmask_b32 v84, v82, v84, {sM}")
    A(f"v_cndmask_b32 v85, v84, v82, {sHI}")
    for u in range(2):
        for e in range(8):
            d0 = 16 * u + 8 * (e >> 2) + (e & 3)
            ad = "v85" if (u == 1 and e >= 4) else "v84"
            op = "buffer_load_short_d16_hi" if e & 1 else "buffer_load_ushort"
            A(f"{op} {v(104+8*u+e)}, {ad}, {WPHI}, 0 offen offset:{56*d0}")
    A(f"s_lshl_b32 s91, s89, 5")
    A(f"v_add_u32 v82, s91, v80")
    A(f"v_mul_u32_u24 v82, 896, v82")
    A(f"v_lshl_add_u32 {vXO}, v81, 3, v82")
    A(f"v_add_u32 {vXO}, s92, {vXO}")
    A(f"v_and_b32 v83, 15, {vLANE}")
    A(f"v_lshrrev_b32 v84, 2, v83")
    A(f"v_lshlrev_b32 v84, 6, v84")
    A(f"v_and_b32 v83, 3, v83")
    A(f"v_lshl_add_u32 v84, v83, 3, v84")
    A(f"v_bfe_u32 v83, {vLANE}, 4, 1")
    A(f"v_lshl_add_u32 v84, v83, 5, v84")
    A(f"v_lshl_add_u32 {vA[0]}, v81, 8, v84")
    A(f"v_mul_u32_u24 v83, 1792, v81")
    A(f"v_add_u32 {vA[1]}, v83, v84")
    A(f"v_lshl_add_u32 {vA[2]}, v83, 1, v84")
    for i in range(3): A(f"v_add_u32 {vAH[i]}, {HIB}, {vA[i]}")
    A(f"v_lshl_add_u32 {vN}, v81, 9, v84")
    A(f"v_add_u32 {vNH}, {HIB}, {vN}")
    A(f"v_lshlrev_b32 v83, 4, v80")
    A(f"v_lshl_add_u32 {vGX}, v81, 11, v83")
    A(f"v_lshl_add_u32 {vGM}, v81, 12, v83")
    A(f"v_add_u32 {vLS}, {L_SC}, {vL16}")
    A(f"s_lshl_b32 s91, {sW}, 5")
    A(f"v_add_u32 v83, s91, v80")
    A(f"v_mul_u32_u24 v83, 200, v83")
    A(f"v_lshl_add_u32 v83, v81, 3, v83")
    A(f"v_add_u32 {vPHW}, {L_PHI}, v83")
    A(f"v_and_b32 v82, 15, {vLANE}")
    A(f"v_lshrrev_b32 v83, 2, v82")
    A(f"v_lshrrev_b32 v84, 4, {vLANE}")
    A(f"v_lshl_add_u32 v83, v84, 3, v83")
    A(f"v_mul_u32_u24 v83, 200, v83")
    A(f"v_and_b32 v85, 3, v82")
    A(f"v_lshl_add_u32 v83, v85, 3, v83")
    A(f"v_add_u32 {vPHB}, {L_PHI}, v83")
    A(f"v_add_u32 {vPHA}, s91, {vPHB}")
    A(f"v_and_b32 v83, 1, v84")
    A(f"v_lshlrev_b32 v83, 9, v83")
    A(f"v_lshrrev_b32 v84, 1, v84")
    A(f"v_lshl_add_u32 v83, v84, 3, v83")
    A(f"v_lshl_add_u32 v83, v82, 4, v83")
    A(f"s_lshl_b32 s91, {sW}, 10\n s_add_u32 s91, s91, {L_KVI}")
    A(f"v_add_u32 {vKVW}, s91, v83")
    A(f"v_bfe_u32 v82, v80, 1, 2")
    A(f"v_lshrrev_b32 v83, 4, v80")
    A(f"v_lshl_add_u32 v82, v83, 2, v82")
    A(f"v_xor_b32 v82, v82, v81")
    A(f"v_lshlrev_b32 v84, 7, v80")
    A(f"v_add_u32 v84, s73, v84")
    A(f"v_mul_u32_u24 v83, 26624, v83")
    A(f"v_sub_u32 v83, 24576, v83")
    for u in range(4):
        A(f"v_xor_b32 v85, {2 * u}, v82")
        A(f"v_lshl_add_u32 v{90 + u}, v85, 4, v84")
        A(f"v_add_u32 v{94 + u}, v{90 + u}, v83")

def coop_ops():
    lo, st = [], []
    def guard(n, lim, src):
        A(f"s_cmp_lt_u32 {n}, {lim}\n s_cselect_b64 {sM}, -1, 0\n s_cselect_b32 {sT1}, {sT1}, 0")
        A(f"v_cndmask_b32 v98, v99, {src}, {sM}")
    def blk(n, reg, srd_, st_set, wo):
        def load():
            if wo:
                A(f"s_mul_i32 {sT1}, {sW}, 7\n s_add_u32 {sT1}, {sT1}, {n}\n s_mul_i32 {sT1}, {sT1}, {16 * 896}")
                guard(n, 7, "v87")
            else:
                A(f"s_mul_i32 {sT2}, {n}, 37\n s_lshr_b32 {sT2}, {sT2}, 8")
                A(f"s_mul_i32 {sT1}, {sT2}, 7\n s_sub_u32 {sT1}, {n}, {sT1}")
                A(f"s_mul_i32 {sT3}, {sW}, 7\n s_add_u32 {sT1}, {sT1}, {sT3}\n s_mul_i32 {sT1}, {sT1}, {16 * 2688}")
                A(f"s_add_u32 {sT3}, {sT2}, 1\n s_cmp_eq_u32 {sT2}, 2\n s_cselect_b32 {sT3}, 0, {sT3}\n s_mul_i32 {sT3}, {sT3}, 896")
                A(f"s_add_u32 {sT1}, {sT1}, {sT3}")
                guard(n, 21, vWD)
            A(f"buffer_load_dwordx4 {v(reg,4)}, v98, {srd_}, {sT1} offen")
        def store():
            if wo:
                A(f"s_lshl_b32 {sT1}, {n}, 10\n s_add_u32 {sT1}, {sT1}, {st_set * 16 * 114688 + 3 * 28672}\n s_add_u32 {sT1}, {sT1}, {sIMG}")
                guard(n, 7, vL16)
            else:
                A(f"s_mul_i32 {sT2}, {n}, 37\n s_lshr_b32 {sT2}, {sT2}, 8")
                A(f"s_mul_i32 {sT2}, {sT2}, {28672 - 7168}\n s_lshl_b32 {sT1}, {n}, 10\n s_add_u32 {sT1}, {sT1}, {sT2}")
                A(f"s_add_u32 {sT1}, {sT1}, {st_set * 16 * 114688}\n s_add_u32 {sT1}, {sT1}, {sIMG}")
                guard(n, 21, vL16)
            A(f"buffer_store_dwordx4 {v(reg,4)}, v98, {WS}, {sT1} offen sc1")
        lo.append(load); st.append(store)
    A(f"s_add_u32 s74, {sR}, 16\n s_sub_u32 s75, {sR}, 5")
    A("v_mov_b32 v99, 0x40000000")
    regs = [104, 108, 112, 116, 240, 244]
    for st_set, (w_, wo_) in enumerate(((WA, WOA), (WB, WOB))):
        blk(sR, regs[3 * st_set], w_, st_set, False)
        blk("s74", regs[3 * st_set + 1], w_, st_set, False)
        blk("s75", regs[3 * st_set + 2], wo_, st_set, True)
    return lo, st

def p1():
    nyoung = len(A.vm) - XMARK
    A(f"s_waitcnt vmcnt({nyoung})")
    stamp("x landed")
    def rd(c):
        for u in range(4):
            if c < 6: A(f"ds_read_b128 {v(ACT+16*c+4*u,4)}, v{90+u} offset:{4096*c}")
            else: A(f"ds_read_b128 {v(ACT+16*c+4*u,4)}, v{94+u}")
    def dots(c):
        for i in range(16 * c, 16 * c + 16):
            r = ACT + i
            A(f"v_dot2_f32_bf16 {v(64+(i&1))}, {v(r)}, {v(r)}, {'0' if i < 2 else v(64+(i&1))}")
            A(f"v_dot2_f32_bf16 {v(66+(i&1))}, {v(r)}, {sT0}, {'0' if i < 2 else v(66+(i&1))}")
    A(f"s_mov_b32 {sT0}, 0x3f803f80")
    rd(0); rd(1); rd(2)
    A.wait_regs(v(ACT, 16))
    for rg in range(2, 4):
        A(f"s_add_u32 m0, s73, {1024 * (rg - 2)}")
        A(f"s_add_u32 s75, s72, {768 + 7168 * rg}")
        A(f"buffer_load_dwordx4 v89, {X}, s75 offen lds")
    for c in range(6):
        dots(c)
        if c + 3 < 6: rd(c + 3)
    for i in range(8):
        A(f"v_or_b32 {v(104+2*i)}, {v(104+2*i)}, {v(105+2*i)}")
        A(f"v_accvgpr_write_b32 {a(WP+i)}, {v(104+2*i)}")
    A("s_waitcnt vmcnt(0)")
    rd(6)
    A("v_mov_b32 v80, 0")
    A(f"global_load_dword v123, v80, s[20:21] sc1")
    A.wait_regs(v(ACT + 96, 16))
    A("s_barrier")
    stamp("W landed")
    lo, st = coop_ops()
    for f in lo: f()
    dots(6)
    A("v_add_f32 v120, v66, v67")
    A("v_add_f32 v121, v64, v65")
    wr = colsum_mfma((0, 1), (AK, AV))
    for f in stats_finish_ops("v120", "v121", "v122"): f()
    for f in wr: f()
    stamp("colsum")
    g = Gemm(ksteps_nat(), [(AK, L_K, True, "0"), (AV, L_V, True, "0")])
    yl = [lambda g_=g_: A(f"buffer_load_dwordx2 {v(64+2*g_,2)}, {vXO}, {X}, 0 offen offset:{16*g_}") for g_ in range(4)]
    ops = dma_direct_q() + [lambda: A("s_waitcnt lgkmcnt(0)\n s_barrier")] + colsum_finish_ops(CSA, (0, 1)) + yl + st
    fill = spread(ops, [(s, t) for s in range(0, 27) for t in range(2)], 1)
    fill[(27, 0)] = lambda: rank1(AK, CSA, True)
    g.run(fill, tail=2)
    rank1(AV, CSA + 2, True)
    stamp("p1 gemm")
    for g_ in range(4):
        for j in range(2):
            A(f"v_lshlrev_b32 {v(Y+4*g_+2*j)}, 16, {v(64+2*g_+j)}")
            A(f"v_and_b32 {v(Y+4*g_+2*j+1)}, 0xffff0000, {v(64+2*g_+j)}")
    L = lab("init")
    A(f"v_readfirstlane_b32 {sT0}, v123")
    A(f"s_cmp_lg_u32 {sT0}, 0")
    A(f"s_cbranch_scc1 {L}_go")
    vm_save = list(A.vm)
    A("v_mov_b32 v80, 0")
    A.label(L)
    A(f"global_load_dword v123, v80, s[20:21] sc1")
    A(f"s_sub_u32 {sBUD}, {sBUD}, 1")
    A(f"s_cbranch_scc1 {L}_to")
    A(f"v_readfirstlane_b32 {sT0}, v123")
    A(f"s_cmp_eq_u32 {sT0}, 0")
    A(f"s_cbranch_scc1 {L}")
    A(f"s_branch {L}_go")
    A.label(L + "_to")
    A(f"s_mov_b32 {sBUD}, 0")
    A("s_waitcnt vmcnt(0)")
    A.label(L + "_go")
    A.vm = vm_save

def qkv_act(buf, cs, v_tr):
    g = Gemm(ksteps_act(), [(AK, L_K, True, "0"), (AV, L_V, v_tr, "0")])
    gather_setup(buf)
    g.prefetch()
    wait_row()
    stamp("y ready")
    loads = gather(True)
    ops = stats_gather_ops("v120", "v121") + stats_finish_ops("v120", "v121", "v122")
    ops.append(lambda: rank1(AK, cs, True))
    ops.append(lambda: rank1(AV, cs + 2, v_tr))
    if not v_tr:
        ops.append(lambda: A(f"v_and_b32 v122, 31, {vLANE}"))
        ops.append(lambda: A(f"s_lshl_b32 {sT1}, {sW}, 7\n s_add_u32 {sT1}, {sT1}, {L_RS}"))
        ops.append(lambda: A(f"v_lshl_add_u32 v122, v122, 2, {sT1}"))
        ops.append(lambda: A(f"ds_write_b32 v122, {vRSTD}"))
        ops.append(lambda: A(f"v_lshrrev_b32 v122, 5, {vLANE}"))
        ops.append(lambda: A(f"v_lshl_add_u32 v122, v122, 4, {sT1}"))
        for gi in range(4):
            ops.append(lambda gi=gi: A(f"ds_read_b128 {v(104+4*gi,4)}, v122 offset:{32*gi}"))
    fill = spread(ops, [(s, t) for s in range(3, 26) for t in range(2)], 2)
    g.run(paced(loads, fill, int(OPT.get("ahead", 14))), tail=2)

def a_rest(it):
    nat = it == 0
    stamp("A gemm done")
    A(f"v_mul_f32 v122, {fbits(LOG2E)}, {vRSTD}")
    scale_cvt(80, AK, (122, 0), 8)
    mfma(v(AQ, 16), a(WP, 4), v(80, 4), "0")
    mfma(v(AQ, 16), a(WP + 4, 4), v(84, 4), v(AQ, 16))
    scale_cvt(104, AV, (124, 0), 8)
    exec_set(sHI)
    A("v_mov_b32 v110, 0x00003f80\n v_mov_b32 v111, 0")
    exec_set("-1")
    for gi in range(4): A(f"ds_write_b64 {vPHW}, {v(104+2*gi,2)} offset:{128+16*gi}")
    phi(AQ, 88, 104, 112, 120, lambda sg: [A(f"ds_write_b64 {vPHW}, {v(104+8*sg+2*gi,2)} offset:{64*sg+16*gi}") for gi in range(4)])
    A(f"s_lshl_b32 {sT1}, {sR}, 10")
    A(f"s_add_u32 {sT1}, {sT1}, {sKVP}")
    A(f"s_add_u32 {sT1}, {sT1}, {WS_KVP + it * (1 << 20)}")
    A("s_waitcnt vmcnt(0) lgkmcnt(0)" if nat else "s_waitcnt lgkmcnt(0)")
    A("s_barrier")
    def rd(tb):
        R = RING + 12 * tb
        for q in range(2): A(f"ds_read_b64_tr_b16 {a(R+2*q,2)}, {vPHA} offset:{(tb*32+4*q)*200}")
        for dt in range(2):
            for q in range(2): A(f"ds_read_b64_tr_b16 {a(R+4+4*dt+2*q,2)}, {vPHB} offset:{(tb*32+4*q)*200+128+32*dt}")
    rd(0); rd(1)
    for tb in range(4):
        R = RING + 12 * tb
        for dt in range(2):
            A(f"v_mfma_f32_16x16x32_bf16 {v(36+4*dt,4)}, {a(R,4)}, {a(R+4+4*dt,4)}, {'0' if tb == 0 else v(36+4*dt,4)}")
            if dt == 0 and tb + 2 < 4: rd(tb + 2)
    g = Gemm(ksteps_nat() if nat else ksteps_act(), [(AQ, L_Q, True, "0")])
    if not nat: g.prefetch()
    for i in range(4): A(f"v_cvt_pk_bf16_f32 {v(44+i)}, {v(36+2*i)}, {v(37+2*i)}")
    A(f"buffer_store_dwordx4 {v(44,4)}, {vL16}, {WS}, {sT1} offen sc1")
    stamp("kvp stored")
    ARR = int(OPT.get("arr", 18))
    if nat:
        for f in colsum_mfma((2,), (None, None, AV)): f()
        ops = [lambda: A("s_waitcnt lgkmcnt(0)\n s_barrier")] + colsum_finish_ops(CSA, (2,))
        fill = spread(ops, [(s, 0) for s in range(12, 28)], 2)
        fill[(ARR - 8, 0)] = arrive_col
    else:
        fill = {(ARR, 0): arrive_col}
    g.run(fill)
    rank1(AQ, CSA + 4, True)
    A(f"v_mul_f32 v122, {fbits(LOG2E)}, {vRSTD}")
    A(f"s_add_u32 {sG[0]}, {sKVP}, {WS_KVP + it * (1 << 20)}")
    for i in range(1, 4): A(f"s_add_u32 {sG[i]}, {sG[0]}, {4096*i}")
    scale_cvt(80, AQ, (122, 0), 8)
    mfma(v(AQ, 16), a(WP, 4), v(80, 4), "0")
    mfma(v(AQ, 16), a(WP + 4, 4), v(84, 4), v(AQ, 16))
    phi(AQ, 88, 104, 112, 120, None, lambda: poll_issue(sCOLC))
    stamp("phi_q done")
    wait_col(True)
    stamp("kvp ready")
    for r in range(16):
        A(f"buffer_load_dwordx4 {v(ACT+4*r,4)}, {vL16}, {WS}, {sG[r>>2]} offen offset:{1024*(r&3)} sc1")
    dm = dma_img(0, (3,)) if nat else []
    for r in range(16):
        for i in range(4):
            A(f"v_dot2_f32_bf16 {v(80+2*i)}, {v(ACT+4*r+i)}, {sC10}, {'0' if r == 0 else v(80+2*i)}")
            A(f"v_dot2_f32_bf16 {v(81+2*i)}, {v(ACT+4*r+i)}, {sC01}, {'0' if r == 0 else v(81+2*i)}")
        if r >= 8 and dm: dm.pop(0)()
    for i in range(4): A(f"v_cvt_pk_bf16_f32 {v(88+i)}, {v(80+2*i)}, {v(81+2*i)}")
    for dt in range(2): A(f"ds_write_b64 {vKVW}, {v(88+2*dt,2)} offset:{256*dt}")
    A("s_waitcnt lgkmcnt(0)")
    A("s_barrier")
    for u in range(4): A(f"ds_read_b128 {a(WR+4*u,4)}, {vLS} offset:{L_KVI - L_SC + 1024*u}")
    for u in range(4): mfma(v(AK, 16), a(WR + 4 * u, 4), v(104 + 4 * u, 4), "0" if u == 0 else v(AK, 16))
    normalize_publish(AK, 4 * it + 0, 1e-6, None, T=120, F=88)
    stamp("o stored")
    arrive_row()
    if nat: A("s_barrier")
    for f in dma_img(1, (0, 1, 2) if nat else (0, 1)): f()

def outproj(buf, last):
    g = Gemm(ksteps_act(), [(Y, L_WO, True, v(Y, 16))])
    gather_setup(buf)
    g.prefetch()
    wait_row()
    stamp("o ready")
    g.run(paced(gather(False), None, int(OPT.get("ahead2", 14))))
    F = 88
    if last:
        for i in range(8): A(f"v_cvt_pk_bf16_f32 {v(F+i)}, {v(Y+2*i)}, {v(Y+2*i+1)}")
        for gi in range(3): A(f"buffer_store_dwordx2 {v(F+2*gi,2)}, {vXO}, {OUT}, 0 offen offset:{16*gi}")
        exec_set(sLO)
        A(f"buffer_store_dwordx2 {v(F+6,2)}, {vXO}, {OUT}, 0 offen offset:48")
        exec_set("-1")
        return
    A(f"s_add_u32 {sT1}, {sPUB}, {WS_ACT + (buf + 1) * (2 << 20)}")
    for i in range(4): A(f"v_cvt_pk_bf16_f32 {v(F+i)}, {v(Y+2*i)}, {v(Y+2*i+1)}")
    A(f"buffer_store_dwordx4 {v(F,4)}, {vL16}, {WS}, {sT1} offen sc1")
    A(f"v_pk_add_f32 v[104:105], {v(Y,2)}, {v(Y+2,2)}")
    A(f"v_pk_mul_f32 v[106:107], {v(Y,2)}, {v(Y,2)}")
    A(f"v_pk_fma_f32 v[106:107], {v(Y+2,2)}, {v(Y+2,2)}, v[106:107]")
    for i in range(2, 8):
        if i == 6: exec_set(sLO)
        A(f"v_pk_add_f32 v[104:105], v[104:105], {v(Y+2*i,2)}")
        A(f"v_pk_fma_f32 v[106:107], {v(Y+2*i,2)}, {v(Y+2*i,2)}, v[106:107]")
    exec_set("-1")
    A("v_add_f32 v104, v104, v105")
    A("v_add_f32 v106, v106, v107")
    for i in range(4, 8): A(f"v_cvt_pk_bf16_f32 {v(F+i)}, {v(Y+2*i)}, {v(Y+2*i+1)}")
    A("v_permlane32_swap_b32 v105, v104")
    A("v_permlane32_swap_b32 v107, v106")
    exec_set(sHI)
    A(f"v_add_f32 {v(F+6)}, v104, v105")
    A(f"v_add_f32 {v(F+7)}, v106, v107")
    exec_set(sEVEN)
    A(f"v_swap_b32 {v(F+4)}, {v(F+6)}")
    A(f"v_swap_b32 {v(F+5)}, {v(F+7)}")
    exec_set("-1")
    A(f"buffer_store_dwordx4 {v(F+4,4)}, {vL16}, {WS}, {sT1} offen offset:1024 sc1")
    stamp("y stored")
    arrive_row()
    A("s_barrier")

KF, VF, QF, O, S0, S1, P = 80, 88, 104, 128, 32, 48, 64
def qreg(j, i): return v(QF + 4 * i, 4) if j == 0 else a(QA + 8 * (j - 1) + 4 * i, 4)

def attention(it):
    last = it == 1
    stamp("B gemm done")
    scale_cvt(KF, AK, (124, 0), 8)
    exec_set(sHI)
    A(f"v_mov_b32 {v(KF+6)}, 0x3f803f80\n v_mov_b32 {v(KF+7)}, 0x00003f80")
    exec_set("-1")
    A(f"s_lshl_b32 {sT1}, {sR}, 12")
    A(f"s_add_u32 {sT1}, {sT1}, {sKV}")
    A(f"s_add_u32 {sT1}, {sT1}, {WS_KV + it * (4 << 20)}")
    A(f"buffer_store_dwordx4 {v(KF,4)}, {vL16}, {WS}, {sT1} offen sc1")
    A(f"buffer_store_dwordx4 {v(KF+4,4)}, {vL16}, {WS}, {sT1} offen offset:1024 sc1")
    for i in range(8): A(f"v_pk_mul_f32 {v(AV+2*i,2)}, {v(AV+2*i,2)}, {v(104+2*i,2)}")
    for i in range(8): A(f"v_cvt_pk_bf16_f32 {v(VF+i)}, {v(AV+2*i)}, {v(AV+2*i+1)}")
    exec_set(sONE28)
    for i in range(8): A(f"v_mov_b32 {v(VF+i)}, 0x3f803f80")
    exec_set("-1")
    A(f"buffer_store_dwordx4 {v(VF,4)}, {vL16}, {WS}, {sT1} offen offset:2048 sc1")
    A(f"buffer_store_dwordx4 {v(VF+4,4)}, {vL16}, {WS}, {sT1} offen offset:3072 sc1")
    stamp("kv stored")
    if it == 1: A("s_barrier")
    g = Gemm(ksteps_act(), [(AQ, L_Q, True, "0")])
    g.run({(int(OPT.get("arr", 18)), 0): arrive_col, (8, 0): lambda: rank1(AQ, CSB + 4, True)})
    A(f"v_mul_f32 v122, {fbits(28 ** -0.5 * LOG2E)}, {vRSTD}")
    scale_cvt(QF, AQ, (122, 0), 8)
    exec_set(sHI)
    A(f"v_mov_b32 {v(QF+6)}, 0\n v_mov_b32 {v(QF+7)}, 0")
    exec_set("-1")
    mfma(v(S0, 16), v(KF, 4), v(QF, 4), "0")
    mfma(v(S0, 16), v(KF + 4, 4), v(QF + 4, 4), v(S0, 16))
    A(f"s_mov_b32 {sPASS}, 0")
    A(f"v_max3_f32 {vMX}, {v(S0)}, {v(S0+1)}, {v(S0+2)}")
    for i in range(3, 15, 2): A(f"v_max3_f32 {vMX}, {vMX}, {v(S0+i)}, {v(S0+i+1)}")
    A(f"v_max_f32 {vMX}, {vMX}, {v(S0+15)}")
    A(f"v_mov_b32 v72, {vMX}")
    A(f"v_permlane32_swap_b32 v72, {vMX}")
    A(f"v_max_f32 {vMX}, {vMX}, v72")
    A("s_waitcnt lgkmcnt(0)")
    A.settle()
    Lre = lab("attn")
    A.label(Lre)
    A(f"v_cvt_pk_bf16_f32 v72, -{vMX}, 0")
    A(f"v_lshlrev_b32 v73, 16, v72")
    A(f"v_sub_f32_e64 v73, -{vMX}, v73")
    A(f"v_cvt_pk_bf16_f32 v72, -{vMX}, v73")
    A(f"v_and_b32 v74, 0xffff0000, v72")
    A(f"v_sub_f32 v73, v73, v74")
    exec_set(sHI)
    A(f"v_mov_b32 {v(QF+6)}, v72")
    A(f"v_cvt_pk_bf16_f32 {v(QF+7)}, v73, 0")
    exec_set("-1")
    A(f"s_lshl_b32 {sT1}, {sW}, 11\n s_add_u32 {sT1}, {sT1}, {L_QX}")
    A(f"v_add_u32 v72, {sT1}, {vL16}")
    A(f"ds_write_b128 v72, {v(QF,4)}")
    A(f"ds_write_b128 v72, {v(QF+4,4)} offset:1024")
    for j in range(1, 4):
        A(f"s_add_u32 {sT1}, {sW}, {j}\n s_and_b32 {sT1}, {sT1}, 3\n s_lshl_b32 {sT2}, {sT1}, 11\n s_add_u32 {sT2}, {sT2}, {L_QX}")
        A(f"v_add_u32 {v(72+j)}, {sT2}, {vL16}")
        A(f"s_mul_i32 {sT2}, {sT1}, 12288\n s_add_u32 {sT2}, {sT2}, {L_RED + 4096*(j-1)}")
        A(f"v_add_u32 {v(76+j)}, {sT2}, {vL16}")
    A(f"s_mul_i32 {sT2}, {sW}, 12288\n s_add_u32 {sT2}, {sT2}, {L_RED}")
    A(f"v_add_u32 v76, {sT2}, {vL16}")
    A("s_waitcnt lgkmcnt(0)")
    poll_issue(sCOLC)
    A("s_barrier")
    for j in range(1, 4):
        A(f"ds_read_b128 {qreg(j,0)}, {v(72+j)}")
        A(f"ds_read_b128 {qreg(j,1)}, {v(72+j)} offset:1024")
    A("s_waitcnt lgkmcnt(0)")
    A("s_barrier")
    stamp("q ready")
    wait_col(True)
    stamp("kv ready")
    def kreg(kt, i): return v(KF + 4 * i, 4) if kt == 0 else a(RING + 16 * ((kt - 1) % 8) + 4 * i, 4)
    def vreg(kt, i): return v(VF + 4 * i, 4) if kt == 0 else a(RING + 16 * ((kt - 1) % 8) + 8 + 4 * i, 4)
    loads = []
    for kt in range(1, 16):
        for i in range(4):
            def f(kt=kt, i=i):
                if i == 0:
                    A(f"s_add_u32 {sT2}, {sR}, {kt}\n s_and_b32 {sT2}, {sT2}, 15\n s_lshl_b32 {sT2}, {sT2}, 12\n s_add_u32 {sT2}, {sT2}, {sT3}")
                A(f"buffer_load_dwordx4 {a(RING+16*((kt-1)%8)+4*i,4)}, {vL16}, {WS}, {sT2} offen offset:{1024*i} sc1")
            loads.append(f)
    dm = []
    A(f"s_add_u32 {sT3}, {sKV}, {WS_KV + it * (4 << 20)}")
    PRE = int(OPT.get("pre", 8))
    for f in loads[:PRE]: f()
    li = [PRE]; di = [0]
    def next_load(n):
        if li[0] < len(loads):
            kt = li[0] // 4 + 1
            if kt < 9 or n > 4 * (kt - 8) + 5:
                loads[li[0]](); li[0] += 1; return True
        return False
    def next_dma():
        if di[0] < len(dm): dm[di[0]](); di[0] += 1
    Sb = (S0, S1)
    def S_(n, i):
        kt, j = n >> 2, n & 3
        mfma(v(Sb[n & 1], 16), kreg(kt, i), qreg(j, i), "0" if i == 0 else v(Sb[n & 1], 16))
    def PV(n, i):
        kt, j = n >> 2, n & 3
        mfma(v(O + 16 * j, 16), vreg(kt, i), v(P + 4 * i, 4), "0" if (kt == 0 and i == 0) else v(O + 16 * j, 16))
    S_(0, 0); S_(0, 1)
    for n in range(64):
        s = Sb[n & 1]
        e = lambda i: A(f"v_exp_f32 {v(s+i)}, {v(s+i)}")
        c = lambda i: A(f"v_cvt_pk_bf16_f32 {v(P+i)}, {v(s+2*i)}, {v(s+2*i+1)}")
        if n + 1 < 64: S_(n + 1, 0)
        next_load(n)
        e(0); e(1); e(2); c(0); e(3)
        if n > 0: PV(n - 1, 1)
        if n < 12: next_load(n)
        elif n >= 16: next_dma()
        c(1); e(4); e(5); e(6); c(2); e(7)
        if n + 1 < 64: S_(n + 1, 1)
        A.wait_regs(vreg(n >> 2, 0), vreg(n >> 2, 1))
        c(3); e(8); e(9); e(10); c(4); e(11)
        PV(n, 0)
        if n + 2 < 64: A.wait_regs(kreg((n + 2) >> 2, 0), kreg((n + 2) >> 2, 1))
        c(5); e(12); e(13); e(14); e(15); c(6); c(7)
    PV(63, 1)
    assert li[0] == len(loads) and di[0] == len(dm)
    stamp("attn loop done")
    for j in range(1, 4):
        for i in range(4): A(f"ds_write_b128 {v(76+j)}, {v(O+16*j+4*i,4)} offset:{1024*i}")
    A("s_waitcnt vmcnt(0) lgkmcnt(0)")
    A("s_barrier")
    for j in range(3):
        for i in range(4): A(f"ds_read_b128 {v(192+16*j+4*i,4)}, v76 offset:{4096*j+1024*i}")
    for j in range(3):
        for i in range(8): A(f"v_pk_add_f32 {v(O+2*i,2)}, {v(O+2*i,2)}, {v(192+16*j+2*i,2)}")
    def check(den):
        A(f"v_pk_mul_f32 v[72:73], {v(O,2)}, 0")
        for i in range(1, 8): A(f"v_pk_fma_f32 v[72:73], {v(O+2*i,2)}, 0, v[72:73]")
        A(f"v_add_f32 v72, v72, v73")
        A(f"v_add_f32 v72, v72, {den}")
        A(f"s_mov_b32 {sT1}, {fbits(2.0**60)}")
        A(f"v_cmp_nle_f32 {sM}, v72, {sT1}")
        A(f"s_mov_b32 {sT1}, {fbits(2.0**-60)}")
        A(f"v_cmp_nge_f32 vcc, v72, {sT1}")
        A(f"s_or_b64 {sM}, {sM}, vcc")
        A(f"s_or_b32 {sT1}, s98, s99")
        A(f"v_mov_b32 v72, {sT1}")
        A(f"s_mul_i32 {sT2}, {sW}, 12288\n s_add_u32 {sT2}, {sT2}, {L_RED}")
        A(f"v_mov_b32 v73, {sT2}")
        A("ds_write_b32 v73, v72")
    normalize_publish(O, 4 * it + 2, None, check, T=200, F=192)
    A(f"v_mov_b32 v73, {L_RED}")
    A("s_waitcnt lgkmcnt(0)")
    A("s_barrier")
    for w in range(4): A(f"ds_read_b32 {v(72+w) if w != 1 else 'v71'}, v73 offset:{12288*w}")
    A("v_or_b32 v72, v72, v71")
    A("v_or3_b32 v72, v72, v74, v75")
    A(f"v_readfirstlane_b32 {sT1}, v72")
    A(f"s_andn2_b32 {sT1}, {sT1}, {sPASS}")
    A(f"s_cmp_lg_u32 {sT1}, 0")
    Lslow = lab("slow")
    A(f"s_cbranch_scc1 {Lslow}")
    slow.append((Lslow, Lre, it))
    stamp("o voted")
    arrive_row()
    if not last:
        for f in dma_img(0, (0, 1)): f()

slow = []
def slow_path(L, Lre, it):
    A.hist = []; A.vm = []; A.lg = []; A.sm = []
    A.label(L)
    A("s_waitcnt vmcnt(0) lgkmcnt(0)")
    A(f"s_mov_b32 {sPASS}, -1")
    A(f"s_add_u32 {sT3}, {sKV}, {WS_KV + it * (4 << 20)}")
    A(f"s_mov_b32 {sT2}, 16")
    for j in range(4): A(f"v_mov_b32 {v(72+j)}, 0xff800000")
    Ll = lab("mx")
    A.label(Ll)
    A(f"buffer_load_dwordx4 {a(RING,4)}, {vL16}, {WS}, {sT3} offen sc1")
    A(f"buffer_load_dwordx4 {a(RING+4,4)}, {vL16}, {WS}, {sT3} offen offset:1024 sc1")
    for j in range(4):
        mfma(v(S0, 16), a(RING, 4), qreg(j, 0), "0")
        mfma(v(S0, 16), a(RING + 4, 4), qreg(j, 1), v(S0, 16))
        for i in range(0, 16, 2): A(f"v_max3_f32 {v(72+j)}, {v(72+j)}, {v(S0+i)}, {v(S0+i+1)}")
    A(f"s_add_u32 {sT3}, {sT3}, 4096")
    A(f"s_sub_u32 {sT2}, {sT2}, 1")
    A(f"s_cmp_lg_u32 {sT2}, 0")
    A.settle()
    A(f"s_cbranch_scc1 {Ll}")
    A("s_barrier")
    for j in range(4):
        A(f"s_add_u32 {sT1}, {sW}, {j}\n s_and_b32 {sT1}, {sT1}, 3\n s_lshl_b32 {sT1}, {sT1}, 10\n s_add_u32 {sT1}, {sT1}, {L_RED + 256*j}")
        A(f"v_lshl_add_u32 v71, {vLANE}, 2, {sT1}")
        A(f"ds_write_b32 v71, {v(72+j)}")
    A(f"s_lshl_b32 {sT1}, {sW}, 10\n s_add_u32 {sT1}, {sT1}, {L_RED}")
    A(f"v_lshl_add_u32 v71, {vLANE}, 2, {sT1}")
    A("s_waitcnt lgkmcnt(0)")
    A("s_barrier")
    for j in range(4): A(f"ds_read_b32 {v(72+j)}, v71 offset:{256*j}")
    A("v_max3_f32 v72, v72, v73, v74")
    A("v_max_f32 v72, v72, v75")
    A("v_mov_b32 v73, v72")
    A("v_permlane32_swap_b32 v73, v72")
    A("v_max_f32 v72, v72, v73")
    A(f"v_add_f32 {vMX}, {vMX}, v72")
    A("s_waitcnt lgkmcnt(0)")
    A("s_barrier")
    A.settle()
    A(f"s_branch {Lre}")

def epilogue():
    if STAMPS:
        stamp("end")
        A(f"s_lshl_b32 {sT1}, s2, 2\n s_add_u32 {sT1}, {sT1}, {sW}\n s_lshl_b32 {sT1}, {sT1}, 8\n s_add_u32 {sT1}, {sT1}, {WS_DBG}")
        A(f"v_lshlrev_b32 v72, 2, {vLANE}")
        A(f"buffer_store_dword v125, v72, {WS}, {sT1} offen")
        if DBG_SEL is not None:
            A("s_mov_b64 exec, 1\n v_not_b32 v125, v125")
            A(f"s_mov_b64 exec, {(1 << len(DBG_SEL)) - 1}")
            A("v_add_u32 v72, 4, v72")
            A("global_atomic_umax v72, v125, s[20:21]")
            A("s_mov_b64 exec, -1")
    A("s_waitcnt vmcnt(0)")
    A.label("L_end")
    A("s_endpgm")
    for args in slow: slow_path(*args)
    A.label("L_code_end")
    A.raw(f""".section .rodata,"a"
.p2align 6
.amdhsa_kernel {NAME}_kernel
  .amdhsa_next_free_vgpr 464
  .amdhsa_next_free_sgpr 102
  .amdhsa_accum_offset 256
  .amdhsa_group_segment_fixed_size 0
  .amdhsa_kernarg_size 80
  .amdhsa_user_sgpr_count 2
  .amdhsa_user_sgpr_kernarg_segment_ptr 1
  .amdhsa_system_sgpr_workgroup_id_x 1
  .amdhsa_float_denorm_mode_32 3
.end_amdhsa_kernel""")

prologue()
p1()
for it in range(2):
    a_rest(it)
    outproj(4 * it + 0, False)
    if it == 0:
        for f in dma_img(1, (3,)): f()
        for f in colsum_mfma((0, 1, 2), (AK, AV, AQ)): f()
        A("s_waitcnt lgkmcnt(0)\n s_barrier")
        for f in colsum_finish_ops(CSB, (0, 1, 2)): f()
    else:
        for f in dma_img(1, (2, 3)): f()
    qkv_act(4 * it + 1, CSB, False)
    attention(it)
    outproj(4 * it + 2, it == 1)
    if it == 0:
        for f in dma_img(0, (2, 3)): f()
        qkv_act(3, CSA, True)
epilogue()

out = OUTF[0] if OUTF else f"cdna_kernels/{NAME}.s"
open(out, "w").write(A.text())
if STAMPS: open(out + ".stamps", "w").write("\n".join(stamp_names))
print(f"wrote {out}: {A.nins} instructions, {A.nnop} nop states")
```

```python
import sys, struct, math
sys.path.insert(0, "work")
from asmgen import Asm

NAME = "interleave_layers__linear_kernel_hedgehog__mha_block__prompt"
STAMPS = "--stamps" in sys.argv
OUTF = [a for a in sys.argv[1:] if not a.startswith("--")]
OPT = {a.split("=")[0][2:]: (a.split("=") + ["1"])[1] for a in sys.argv[1:] if a.startswith("--")}

def fbits(x): return "0x%08x" % struct.unpack("<I", struct.pack("<f", x))[0]
LOG2E = math.log2(math.e)

WS_CTR = 0
WS_ACT = 1 << 20
WS_KV = WS_ACT + 7 * (2 << 20)
WS_KVP = WS_KV + 2 * (4 << 20)
WS_IMG = WS_KVP + 2 * (1 << 20)
WS_DBG = WS_IMG + (4 << 20)
WS_END = WS_DBG + (1 << 20)
L_K, L_V, L_Q, L_WO, L_SC = 0, 28672, 57344, 86016, 114688
L_PHI = L_SC
L_KVI = L_SC + 28672
L_CS = L_SC + 32768
L_RS = L_SC + 34816
L_QX = L_SC + 36864
L_MX = L_SC + 45056
L_RED = L_SC
LDS_BYTES = 163840
HIB = 57344
X, WA, WPHI, WOA, WB, WOB, OUT, WS, CODE = ("s[%d:%d]" % (i, i + 3) for i in range(24, 60, 4))
sR, sH, sW = "s60", "s61", "s62"
sBUD = "s63"
sROWC, sCOLC = "s[64:65]", "s[66:67]"
sACT, sPUB, sKV, sKVP = "s68", "s69", "s70", "s71"
sG = ["s%d" % i for i in range(72, 80)]
sHI, sLO, sONE28, sEVEN = "s[80:81]", "s[82:83]", "s[84:85]", "s[86:87]"
sONE, sT0, sT1, sT2, sT3 = "s88", "s89", "s90", "s91", "s92"
sC10, sC01 = "s93", "s94"
sPASS = "s95"
sST = "s[96:97]"
sM = "s[98:99]"
sIMG, sW7, sPOLL = "s3", "s100", "s101"
vLANE, vL16 = "v0", "v1"
vA = ["v2", "v3", "v4"]; vAH = ["v5", "v6", "v7"]
vN, vNH = "v86", "v15"
vGX, vGM, vWD, vXO = "v10", "v11", "v12", "v14"
vPHW, vPHA, vPHB, vKVW, vLS = "v8", "v9", "v13", "v103", "v102"
vMX = "v15"
Y, AK, AV, AQ = 16, 32, 48, 64
ACT = 128
vRSTD, vMB0 = "v124", 126
vSTAMP = "a250"
RING = 0
WR = 128
CSA, CSB = 160, 166
WP = 172
QA = 180

def v(i, n=1): return "v%d" % i if n == 1 else "v[%d:%d]" % (i, i + n - 1)
def a(i, n=1): return "a%d" % i if n == 1 else "a[%d:%d]" % (i, i + n - 1)

A = Asm()
nstamp = [0]
stamp_names = []
DBG_SEL = [int(x) for x in OPT["dbg"].split(",")] if "dbg" in OPT else None
allst = [0]
def stamp(name):
    if not STAMPS: return
    allst[0] += 1
    if DBG_SEL is not None and allst[0] - 1 not in DBG_SEL: return
    i = nstamp[0]; nstamp[0] += 1
    stamp_names.append(name)
    A(f"{'s_memtime' if 'cyc' in OPT else 's_memrealtime'} {sST}")
    A("s_waitcnt lgkmcnt(0)")
    A(f"v_writelane_b32 v125, s96, {i}")

uid = [0]
def lab(p):
    uid[0] += 1
    return f"L_{p}_{uid[0]}"

def mfma(d, x, y, c, k16=True):
    A(f"v_mfma_f32_32x32x16_bf16 {d}, {x}, {y}, {c}")

def exec_set(m): A(f"s_mov_b64 exec, {m}")

def arrive(ctr, n=0):
    A(f"s_waitcnt vmcnt({n})")
    A(f"s_atomic_add {sONE}, {ctr}, 0")

def poll_issue(ctr):
    A(f"s_mov_b32 {sPOLL}, 0")
    A(f"s_atomic_add {sPOLL}, {ctr}, 0 glc")

def wait_ctr(ctr, target, issued=False):
    L, Lo = lab("poll"), lab("go")
    if not issued:
        A.wait_regs(sPOLL)
        poll_issue(ctr)
    A("s_waitcnt lgkmcnt(0)")
    A(f"s_cmp_ge_u32 {sPOLL}, {target}")
    A(f"s_cbranch_scc1 {Lo}")
    A.label(L)
    poll_issue(ctr)
    A(f"s_sub_u32 {sBUD}, {sBUD}, 1")
    A(f"s_cbranch_scc1 {Lo}_to")
    A("s_waitcnt lgkmcnt(0)")
    A(f"s_cmp_lt_u32 {sPOLL}, {target}")
    A(f"s_cbranch_scc1 {L}")
    A(f"s_branch {Lo}")
    A.label(Lo + "_to")
    A(f"s_mov_b32 {sBUD}, 0")
    A("s_waitcnt lgkmcnt(0)")
    A.label(Lo)

def ksteps_act():
    out = []
    for Q in range(4):
        out.append((ACT + 32 * Q + 26, 2, 7 * (4 * Q) + 5, 7 * (4 * Q + 1) + 5))
    for Q in range(4):
        for i in range(4):
            out.append((ACT + 32 * Q + 4 * i, 0, 7 * (4 * Q + i), 7 * (4 * Q + i) + 2))
        for j in range(2):
            out.append((ACT + 32 * Q + 16 + 4 * j, 1, 7 * (4 * Q + 2 * j) + 4, 7 * (4 * Q + 2 * j) + 6))
    return out
def ksteps_nat():
    return [(ACT + 4 * s, None, 4 * s, 4 * s + 1) for s in range(28)]

def tr_read(dst, ks, tile_off):
    _, b, g0, g1 = ks
    hi = tile_off >= HIB
    base = (vNH if hi else vN) if b is None else (vAH[b] if hi else vA[b])
    off = tile_off - (HIB if hi else 0)
    A(f"ds_read_b64_tr_b16 {a(dst,2)}, {base} offset:{off + g0*256}")
    A(f"ds_read_b64_tr_b16 {a(dst+2,2)}, {base} offset:{off + g1*256}")

class Gemm:
    def __init__(self, ks, tiles):
        self.ks, self.tiles = ks, tiles
        self.nt = len(tiles)
        self.depth = min(8 // self.nt, 15 // (2 * self.nt) + 1, 4 if self.nt > 1 else 6)
        self.issued = 0
    def slot(self, s, t): return WR + 4 * ((s % (8 // self.nt)) * self.nt + t)
    def prefetch(self):
        while self.issued < self.depth - 1:
            self.issue()
    def issue(self):
        s = self.issued
        if s < len(self.ks):
            for t, (acc, off, tr, c0) in enumerate(self.tiles):
                tr_read(self.slot(s, t), self.ks[s], off)
        self.issued += 1
    def run(self, fill=None, tail=0):
        fill = fill or {}
        self.prefetch()
        n = len(self.ks)
        order = [(s, t) for s in range(n - tail) for t in range(self.nt)]
        order += [(s, t) for t in range(self.nt) for s in range(n - tail, n)]
        for s, t in order:
            k = self.ks[s]
            acc, off, tr, c0 = self.tiles[t]
            wf, af = a(self.slot(s, t), 4), v(k[0], 4)
            c = c0 if s == 0 else v(acc, 16)
            if tr: mfma(v(acc, 16), wf, af, c)
            else: mfma(v(acc, 16), af, wf, c)
            if t == 0: self.issue()
            f = fill.get((s, t))
            if f: f()

def rank1(acc, cs, tr):
    if tr: A(f"v_mfma_f32_32x32x8_bf16 {v(acc,16)}, {a(cs,2)}, {v(vMB0,2)}, {v(acc,16)}")
    else: A(f"v_mfma_f32_32x32x8_bf16 {v(acc,16)}, {v(vMB0,2)}, {a(cs,2)}, {v(acc,16)}")

def gather_setup(buf):
    A(f"s_add_u32 {sG[0]}, {sACT}, {WS_ACT + buf * (2 << 20)}")
    for i in range(1, 8): A(f"s_add_u32 {sG[i]}, {sG[0]}, {4096 * i}")

def gather(stats):
    out = []
    P = lambda txt: out.append(lambda: A(txt))
    for Q in range(4):
        R = ACT + 32 * Q
        if stats:
            P(f"buffer_load_dwordx4 {v(R+24,4)}, {vGM}, {WS}, {sG[2*Q]} offen offset:1536 sc1")
            P(f"buffer_load_dwordx4 {v(R+28,4)}, {vGM}, {WS}, {sG[2*Q]} offen offset:3584 sc1")
        else:
            P(f"buffer_load_dwordx2 {v(R+26,2)}, {vGM}, {WS}, {sG[2*Q]} offen offset:1544 sc1")
            P(f"buffer_load_dwordx2 {v(R+28,2)}, {vGM}, {WS}, {sG[2*Q]} offen offset:3584 sc1")
    for Q in range(4):
        R = ACT + 32 * Q
        for i in range(4):
            P(f"buffer_load_dwordx4 {v(R+4*i,4)}, {vL16}, {WS}, {sG[2*Q+(i>>1)]} offen offset:{2048*(i&1)} sc1")
        for j in range(2):
            P(f"buffer_load_dwordx4 {v(R+16+4*j,4)}, {vGX}, {WS}, {sG[2*Q+j]} offen offset:1024 sc1")
    return out

def paced(loads, fill, ahead):
    for f in loads[:ahead]: f()
    rest = loads[ahead:]
    fill = dict(fill or {})
    s = 0
    while rest:
        n = 2 if s < 4 else 1
        chunk, rest = rest[:n], rest[n:]
        old = fill.get((s, 0))
        fill[(s, 0)] = (lambda ch=chunk, old=old: ([f() for f in ch], old() if old else None))
        s += 1
    return fill

def dma_img(st, tiles):
    out = []
    for t in tiles:
        for i in range(7):
            def f(t=t, i=i):
                if i in (0, 4):
                    A(f"s_add_u32 m0, {sW7}, {t * 28672 + i * 1024}")
                    A(f"s_add_u32 {sT1}, {sIMG}, {st * 16 * 114688 + t * 28672 + i * 1024}")
                A(f"buffer_load_dwordx4 {vL16}, {WS}, {sT1} offen offset:{1024 * (i % 4)} sc1 lds")
            out.append(f)
    return out

def dma_direct_q():
    out = []
    for i in range(7):
        def f(i=i):
            A(f"s_add_u32 m0, {sW7}, {L_Q + i * 1024}")
            A(f"s_mul_i32 {sT1}, {sW}, {7 * 16 * 2688}")
            A(f"s_add_u32 {sT1}, {sT1}, {i * 16 * 2688}")
            A(f"buffer_load_dwordx4 {vWD}, {WA}, {sT1} offen lds")
        out.append(f)
    return out

def both_halves_sum(x, t):
    A(f"v_mov_b32 {t}, {x}")
    A(f"v_permlane32_swap_b32 {t}, {x}")
    A(f"v_add_f32 {x}, {x}, {t}")

def stats_finish_ops(s, q, t):
    ops = []
    P = lambda txt: ops.append(lambda: A(txt))
    P(f"v_mov_b32 {t}, {s}")
    P(f"v_permlane32_swap_b32 {t}, {s}")
    P(f"v_add_f32 {s}, {s}, {t}")
    P(f"v_mov_b32 {t}, {q}")
    P(f"v_permlane32_swap_b32 {t}, {q}")
    P(f"v_add_f32 {q}, {q}, {t}")
    P(f"v_mul_f32 {s}, {fbits(-1.0/448)}, {s}")
    P(f"v_mul_f32 {q}, {fbits(1.0/448)}, {q}")
    P(f"v_fma_f32 {q}, -{s}, {s}, {q}")
    P(f"v_max_f32 {q}, 0, {q}")
    P(f"v_add_f32 {q}, {fbits(1e-5)}, {q}")
    P(f"v_rsq_f32 {vRSTD}, {q}")
    P(f"v_cndmask_b32 {s}, {s}, 0, {sHI}")
    P(f"v_cvt_pk_bf16_f32 {v(vMB0+1)}, {s}, 0")
    P(f"v_lshlrev_b32 {t}, 16, {v(vMB0+1)}")
    P(f"v_sub_f32 {t}, {s}, {t}")
    P(f"v_cvt_pk_bf16_f32 {v(vMB0)}, {s}, {t}")
    return ops

def stats_gather_ops(s, q):
    ops = []
    P = lambda txt: ops.append(lambda: A(txt))
    P(f"v_add_f32 {s}, {v(ACT+24)}, {v(ACT+30)}")
    P(f"v_add_f32 {q}, {v(ACT+25)}, {v(ACT+31)}")
    for Q in range(1, 4):
        R = ACT + 32 * Q
        P(f"v_add_f32 {s}, {s}, {v(R+24)}")
        P(f"v_add_f32 {q}, {q}, {v(R+25)}")
        P(f"v_add_f32 {s}, {s}, {v(R+30)}")
        P(f"v_add_f32 {q}, {q}, {v(R+31)}")
    return ops

def spread(ops, slots, per):
    fill = {}
    i = 0
    for sl in slots:
        chunk = ops[i:i + per]; i += per
        if chunk: fill[sl] = (lambda ch=chunk: [f() for f in ch])
    assert i >= len(ops), (i, len(ops))
    return fill

def scale_cvt(dst, acc, sc, n=8):
    reg, sel = sc
    for i in range(n):
        A(f"v_pk_mul_f32 {v(acc+2*i,2)}, {v(acc+2*i,2)}, {v(reg,2)} op_sel:[0,{sel}] op_sel_hi:[1,{sel}]")
    for i in range(n):
        A(f"v_cvt_pk_bf16_f32 {v(dst+i)}, {v(acc+2*i)}, {v(acc+2*i+1)}")

def nat_base(dst):
    A(f"v_lshrrev_b32 {dst}, 5, {vLANE}")
    A(f"v_lshl_add_u32 {dst}, {dst}, 8, {vA[0]}")

def colsum_mfma(tiles, accs):
    ones = 80
    for i in range(4): A(f"v_mov_b32 {v(ones+i)}, 0x3f803f80")
    nat_base("v84")
    A(f"v_add_u32 v84, {sW7}, v84")
    A(f"v_add_u32 v85, {HIB}, v84")
    seq = [(i, t) for i in range(7) for t in tiles]
    offs = (L_K, L_V, L_Q)
    def rd(n):
        if n >= len(seq): return
        i, t = seq[n]
        base, off = ("v85", offs[t] - HIB) if offs[t] >= HIB else ("v84", offs[t])
        A(f"ds_read_b64_tr_b16 {a(WR+4*(n%8),2)}, {base} offset:{off + i*1024}")
        A(f"ds_read_b64_tr_b16 {a(WR+4*(n%8)+2,2)}, {base} offset:{off + i*1024 + 256}")
    for n in range(5): rd(n)
    for n, (i, t) in enumerate(seq):
        mfma(v(accs[t], 16), v(ones, 4), a(WR + 4 * (n % 8), 4), "0" if i == 0 else v(accs[t], 16))
        rd(n + 5)
    A(f"v_and_b32 v84, 31, {vLANE}")
    A(f"s_mul_i32 {sT1}, {sW}, 384")
    A(f"s_add_u32 {sT1}, {sT1}, {L_CS}")
    A(f"v_lshl_add_u32 v85, v84, 2, {sT1}")
    return [lambda t=t: A(f"ds_write_b32 v85, {v(accs[t])} offset:{128*t}") for t in tiles]

def colsum_finish_ops(cs, tiles):
    ops = []
    P = lambda txt: ops.append(lambda: A(txt))
    P(f"v_and_b32 v84, 31, {vLANE}")
    P(f"v_lshlrev_b32 v84, 2, v84")
    P(f"v_add_u32 v84, {L_CS}, v84")
    for t in tiles:
        for w in range(4): P(f"ds_read_b32 {v(88+4*t+w)}, v84 offset:{384*w+128*t}")
    for t in tiles:
        r = 88 + 4 * t
        P(f"v_add_f32 {v(r)}, {v(r)}, {v(r+1)}")
        P(f"v_add_f32 {v(r+2)}, {v(r+2)}, {v(r+3)}")
        P(f"v_add_f32 {v(r)}, {v(r)}, {v(r+2)}")
        P(f"v_cvt_pk_bf16_f32 {v(r+1)}, {v(r)}, {v(r)}")
        P(f"v_and_b32 {v(r+2)}, 0xffff0000, {v(r+1)}")
        P(f"v_sub_f32 {v(r+2)}, {v(r)}, {v(r+2)}")
        P(f"v_cvt_pk_bf16_f32 {v(r+2)}, {v(r+2)}, 0")
        P(f"v_accvgpr_write_b32 {a(cs+2*t)}, {v(r+1)}")
        P(f"v_accvgpr_write_b32 {a(cs+2*t+1)}, {v(r+2)}")
    return ops

def phi(P, E, dp, dm, T, after=None, mid=None):
    mx, nm, t0, t1 = v(T), v(T + 1), v(T + 2), v(T + 3)
    A(f"v_max3_f32 {mx}, {v(P)}, {v(P+1)}, {v(P+2)}")
    A(f"v_max3_f32 {nm}, -{v(P)}, -{v(P+1)}, -{v(P+2)}")
    for i in range(3, 13, 2):
        A(f"v_max3_f32 {mx}, {mx}, {v(P+i)}, {v(P+i+1)}")
        A(f"v_max3_f32 {nm}, {nm}, -{v(P+i)}, -{v(P+i+1)}")
    A(f"v_max_f32 {mx}, {mx}, {v(P+13)}")
    A(f"v_max_f32_e64 {nm}, {nm}, -{v(P+13)}")
    A(f"v_permlane32_swap_b32 {mx}, {nm}")
    A(f"v_max_f32 {nm}, {mx}, {nm}")
    A(f"v_mov_b32 {mx}, {nm}")
    A(f"v_permlane32_swap_b32 {mx}, {nm}")
    for i in range(7):
        A(f"v_pk_add_f32 {v(E+2*i,2)}, {v(P+2*i,2)}, {v(T,2)} op_sel:[0,0] op_sel_hi:[1,0] neg_lo:[0,1] neg_hi:[0,1]")
        A(f"v_pk_add_f32 {v(P+2*i,2)}, {v(P+2*i,2)}, {v(T,2)} op_sel:[0,1] op_sel_hi:[1,1] neg_lo:[1,1] neg_hi:[1,1]")
    for i in range(14):
        A(f"v_exp_f32 {v(E+i)}, {v(E+i)}")
        A(f"v_exp_f32 {v(P+i)}, {v(P+i)}")
    if mid: mid()
    A(f"v_pk_add_f32 {v(T,2)}, {v(E,2)}, {v(E+2,2)}")
    A(f"v_pk_add_f32 {v(T+2,2)}, {v(P,2)}, {v(P+2,2)}")
    for i in range(2, 7):
        A(f"v_pk_add_f32 {v(T,2)}, {v(T,2)}, {v(E+2*i,2)}")
        A(f"v_pk_add_f32 {v(T+2,2)}, {v(T+2,2)}, {v(P+2*i,2)}")
    A(f"v_add_f32 {mx}, {mx}, {nm}")
    A(f"v_add_f32 {nm}, {t0}, {t1}")
    A(f"v_mov_b32 {v(dp+7)}, 0")
    A(f"v_permlane32_swap_b32 {mx}, {nm}")
    A(f"v_add_f32 {nm}, {mx}, {nm}")
    A(f"v_rcp_f32 {nm}, {nm}")
    A(f"v_mov_b32 {v(dm+7)}, 0")
    A(f"v_mov_b32 {mx}, {nm}")
    A(f"v_permlane32_swap_b32 {mx}, {nm}")
    scale_cvt(dp, E, (T, 0), 7)
    if after: after(0)
    scale_cvt(dm, P, (T, 1), 7)
    if after: after(1)

def publish_act(F, buf):
    A(f"s_add_u32 {sT1}, {sPUB}, {WS_ACT + buf * (2 << 20)}")
    A(f"buffer_store_dwordx4 {v(F,4)}, {vL16}, {WS}, {sT1} offen sc1")
    A(f"buffer_store_dwordx4 {v(F+4,4)}, {vL16}, {WS}, {sT1} offen offset:1024 sc1")

def normalize_publish(D, buf, eps, pre=None, T=104, F=96):
    A(f"v_mov_b32 {v(T)}, {v(D+12)}")
    A(f"v_mov_b32 {v(T+1)}, {v(D+12)}")
    A(f"v_permlane32_swap_b32 {v(T)}, {v(T+1)}")
    if eps: A(f"v_add_f32 {v(T+1)}, {fbits(eps)}, {v(T+1)}")
    if pre: pre(v(T + 1))
    A(f"v_rcp_f32 {v(T)}, {v(T+1)}")
    scale_cvt(F, D, (T, 0), 8)
    exec_set(sEVEN)
    A(f"v_mov_b32 {v(F+6)}, {v(F+4)}")
    A(f"v_mov_b32 {v(F+7)}, {v(F+5)}")
    exec_set("-1")
    publish_act(F, buf)

rowc, colc = [0], [0]
def arrive_row(n=0): arrive(sROWC, n); rowc[0] += 16
def arrive_col(n=0): arrive(sCOLC, n); colc[0] += 16
def wait_row(issued=False): wait_ctr(sROWC, rowc[0], issued)
def wait_col(issued=False): wait_ctr(sCOLC, colc[0], issued)

def prologue():
    A.raw(f"""; @launch grid=(256,1,1) block=(256,1,1) lds={LDS_BYTES}
.amdgcn_target "amdgcn-amd-amdhsa--gfx950"
.text
.globl {NAME}_kernel
.p2align 8
.type {NAME}_kernel,@function
{NAME}_kernel:""")
    A("s_cmp_ge_u32 s2, 256")
    A("s_cbranch_scc1 L_end")
    A("s_load_dwordx16 s[4:19], s[0:1], 0")
    A("s_load_dwordx4 s[20:23], s[0:1], 64")
    A("s_getpc_b64 s[56:57]")
    A("s_and_b32 s56, s56, 0xffffff00")
    A("s_and_b32 s57, s57, 0xffff")
    A(f"s_mov_b32 s58, L_code_end-{NAME}_kernel")
    A("s_mov_b32 s59, 0x20000")
    A("v_lshlrev_b32 v2, 7, v0")
    A(f"buffer_load_dword v250, v2, {CODE}, 0 offen")
    A("v_add_u32 v2, 0x8000, v2")
    A(f"buffer_load_dword v251, v2, {CODE}, 0 offen")
    A("v_lshrrev_b32 v1, 6, v0")
    A(f"v_readfirstlane_b32 {sW}, v1")
    A("v_and_b32 v0, 63, v0")
    if STAMPS: A("v_mov_b32 v125, 0")
    stamp("start")
    if OPT.get("map", "2") == "0":
        A("s_and_b32 s89, s2, 7")
        A("s_lshl_b32 s89, s89, 1")
        A("s_bfe_u32 s90, s2, 0x10003")
        A(f"s_add_u32 {sR}, s89, s90")
        A(f"s_lshr_b32 {sH}, s2, 4")
    elif OPT.get("map", "2") == "2":
        A("s_bfe_u32 s89, s2, 0x20001\n s_lshl_b32 s89, s89, 2\n s_bfe_u32 s90, s2, 0x20003")
        A(f"s_add_u32 {sR}, s89, s90")
        A("s_and_b32 s89, s2, 1\n s_lshl_b32 s89, s89, 3\n s_lshr_b32 s90, s2, 5")
        A(f"s_add_u32 {sH}, s89, s90")
    elif OPT["map"] == "3":
        A("s_bfe_u32 s89, s2, 0x10002\n s_lshl_b32 s89, s89, 3\n s_bfe_u32 s90, s2, 0x30003")
        A(f"s_add_u32 {sR}, s89, s90")
        A("s_and_b32 s89, s2, 3\n s_lshl_b32 s89, s89, 2\n s_lshr_b32 s90, s2, 6")
        A(f"s_add_u32 {sH}, s89, s90")
    A(f"s_mov_b32 {sBUD}, 0x40000")
    A(f"s_mov_b32 {sONE}, 1")
    A(f"s_mov_b32 {sC10}, 0x00003f80")
    A(f"s_mov_b32 {sC01}, 0x3f800000")
    A("s_mov_b32 s80, 0\n s_mov_b32 s81, -1\n s_mov_b32 s82, -1\n s_mov_b32 s83, 0")
    A("s_mov_b32 s84, 0x10000000\n s_mov_b32 s85, 0x10000000")
    A(f"s_bitcmp1_b32 {sH}, 0")
    A(f"s_cselect_b64 {sEVEN}, 0, {sHI}")
    A(f"s_lshl_b32 s89, {sR}, 2\n s_add_u32 s89, s89, {sW}")
    A(f"s_lshl_b32 s90, {sH}, 2\n s_add_u32 s90, s90, {sW}")
    A(f"s_lshl_b32 {sACT}, s89, 15")
    A(f"s_lshl_b32 s91, {sH}, 11\n s_add_u32 {sPUB}, {sACT}, s91")
    A(f"s_lshl_b32 {sKV}, s90, 16")
    A(f"s_lshl_b32 {sKVP}, s90, 14")
    A(f"s_mul_i32 {sW7}, {sW}, 7168")
    A(f"s_mul_i32 {sIMG}, {sH}, 114688\n s_add_u32 {sIMG}, {sIMG}, {sW7}\n s_add_u32 {sIMG}, {sIMG}, {WS_IMG}")
    A(f"v_lshlrev_b32 {vL16}, 4, {vLANE}")
    A(f"v_lshrrev_b32 v83, 3, {vLANE}")
    A(f"v_and_b32 v84, 7, {vLANE}")
    A(f"v_lshrrev_b32 v85, 1, v83")
    A(f"v_xor_b32 v84, v84, v85")
    A(f"v_mul_u32_u24 v83, 896, v83")
    A(f"v_lshl_add_u32 v88, v84, 4, v83")
    A(f"v_xor_b32 v89, 64, v88")
    A(f"s_mul_i32 s92, {sH}, 56")
    A(f"v_lshrrev_b32 v83, 2, {vLANE}")
    A(f"v_and_b32 v84, 3, {vLANE}")
    A(f"v_lshl_add_u32 v84, v84, 4, s92")
    A(f"v_mul_u32_u24 {vWD}, 2688, v83")
    A(f"v_add_u32 {vWD}, {vWD}, v84")
    A(f"v_mul_u32_u24 v87, 896, v83")
    A(f"v_add_u32 v87, v87, v84")
    A(f"s_mul_i32 s72, s89, 28672")
    A(f"s_mul_i32 s73, {sW}, 26624\n s_add_u32 s73, s73, {L_Q}")
    A(f"s_mul_i32 s74, {sH}, 6\n s_lshr_b32 s74, s74, 4")
    A("s_waitcnt lgkmcnt(0)")
    stamp("kernargs")
    def srd(n, p, size):
        A(f"s_mov_b32 s{n}, s{p}\n s_and_b32 s{n+1}, s{p+1}, 0xffff\n s_mov_b32 s{n+2}, {size}\n s_mov_b32 s{n+3}, 0x20000")
    srd(24, 4, 1835008); srd(52, 22, WS_END)
    A(f"s_or_b32 s91, s2, {sW}")
    A("s_cmp_lg_u32 s91, 0")
    A("s_cbranch_scc1 L_noinit")
    vm_save = list(A.vm)
    A(f"v_lshlrev_b32 v84, 7, {vLANE}")
    A("v_mov_b32 v85, 0")
    A(f"buffer_store_dword v85, v84, {WS}, 0 offen sc1")
    A("v_add_u32 v84, 8192, v84")
    A(f"buffer_store_dword v85, v84, {WS}, 0 offen sc1")
    A("s_waitcnt vmcnt(0)")
    A(f"s_atomic_add {sONE}, s[20:21], 0")
    A.settle()
    A.label("L_noinit")
    A.vm = vm_save
    def xdma(rg, soff):
        A(f"buffer_load_dwordx4 v{88 + (rg >> 1)}, {X}, {soff} offen lds")
    for c in range(6):
        A("s_lshl_b32 s75, s74, 7\n s_add_u32 s75, s75, s72\n s_lshl_b32 s76, s74, 12\n s_add_u32 s76, s76, s73")
        for rg in range(4):
            A(f"s_add_u32 m0, s76, {1024 * rg}")
            if rg: A(f"s_add_u32 s75, s75, 7168")
            xdma(rg, "s75")
        A("s_add_u32 s74, s74, 1\n s_cmp_eq_u32 s74, 6\n s_cselect_b32 s74, 0, s74")
    for rg in range(2):
        A(f"s_add_u32 m0, s73, {24576 + 1024 * rg}")
        A(f"s_add_u32 s75, s72, {768 + 7168 * rg}")
        xdma(rg, "s75")
    global XMARK
    XMARK = len(A.vm)
    srd(28, 6, 1204224)
    A(f"s_mul_i32 s74, {sR}, 7\n s_lshr_b32 s74, s74, 4")
    A(f"s_and_b32 s77, {sR}, 1")
    for t in range(2):
        A(f"s_xor_b32 s78, s77, {t}")
        A(f"s_mul_i32 s76, s78, 28672\n s_add_u32 s76, s76, {sW7}")
        A(f"s_mul_i32 s78, s78, 896\n s_mul_i32 s79, {sW}, {7 * 16 * 2688}\n s_add_u32 s78, s78, s79\n s_add_u32 s78, s78, 896")
        for i in range(7):
            A("s_lshl_b32 s75, s74, 10\n s_add_u32 m0, s75, s76")
            A(f"s_mul_i32 s75, s74, {16 * 2688}\n s_add_u32 s75, s75, s78")
            A(f"buffer_load_dwordx4 {vWD}, {WA}, s75 offen lds")
            A("s_add_u32 s74, s74, 1\n s_cmp_eq_u32 s74, 7\n s_cselect_b32 s74, 0, s74")
    stamp("loads issued")
    srd(32, 8, 25088); srd(36, 10, 401408); srd(40, 14, 1204224); srd(44, 16, 401408); srd(48, 18, 1835008)
    A(f"s_lshl_b32 s91, s89, 7\n s_add_u32 s64, s22, s91\n s_addc_u32 s65, s23, 0")
    A(f"s_lshl_b32 s91, s90, 7\n s_add_u32 s91, s91, 8192\n s_add_u32 s66, s22, s91\n s_addc_u32 s67, s23, 0")
    A(f"v_and_b32 v80, 31, {vLANE}")
    A(f"v_lshrrev_b32 v81, 5, {vLANE}")
    A(f"v_lshrrev_b32 v83, 3, v80")
    A(f"v_and_b32 v84, 3, v80")
    A(f"v_lshl_add_u32 v83, v83, 2, v84")
    A(f"v_bfe_u32 v84, v80, 2, 1")
    A(f"v_mad_u32_u24 v84, v84, 14, v83")
    A(f"s_mul_i32 s91, {sH}, 1568")
    A(f"v_lshl_add_u32 v84, v84, 1, s91")
    A(f"v_mul_u32_u24 v85, 224, v81")
    A(f"v_add_u32 v84, v84, v85")
    A(f"v_mov_b32 v82, 0x40000000")
    A(f"v_cmp_gt_u32 {sM}, 14, v83")
    A(f"v_cndmask_b32 v84, v82, v84, {sM}")
    A(f"v_cndmask_b32 v85, v84, v82, {sHI}")
    for u in range(2):
        for e in range(8):
            d0 = 16 * u + 8 * (e >> 2) + (e & 3)
            ad = "v85" if (u == 1 and e >= 4) else "v84"
            op = "buffer_load_short_d16_hi" if e & 1 else "buffer_load_ushort"
            A(f"{op} {v(104+8*u+e)}, {ad}, {WPHI}, 0 offen offset:{56*d0}")
    A(f"s_lshl_b32 s91, s89, 5")
    A(f"v_add_u32 v82, s91, v80")
    A(f"v_mul_u32_u24 v82, 896, v82")
    A(f"v_lshl_add_u32 {vXO}, v81, 3, v82")
    A(f"v_add_u32 {vXO}, s92, {vXO}")
    A(f"v_and_b32 v83, 15, {vLANE}")
    A(f"v_lshrrev_b32 v84, 2, v83")
    A(f"v_lshlrev_b32 v84, 6, v84")
    A(f"v_and_b32 v83, 3, v83")
    A(f"v_lshl_add_u32 v84, v83, 3, v84")
    A(f"v_bfe_u32 v83, {vLANE}, 4, 1")
    A(f"v_lshl_add_u32 v84, v83, 5, v84")
    A(f"v_lshl_add_u32 {vA[0]}, v81, 8, v84")
    A(f"v_mul_u32_u24 v83, 1792, v81")
    A(f"v_add_u32 {vA[1]}, v83, v84")
    A(f"v_lshl_add_u32 {vA[2]}, v83, 1, v84")
    for i in range(3): A(f"v_add_u32 {vAH[i]}, {HIB}, {vA[i]}")
    A(f"v_lshl_add_u32 {vN}, v81, 9, v84")
    A(f"v_add_u32 {vNH}, {HIB}, {vN}")
    A(f"v_lshlrev_b32 v83, 4, v80")
    A(f"v_lshl_add_u32 {vGX}, v81, 11, v83")
    A(f"v_lshl_add_u32 {vGM}, v81, 12, v83")
    A(f"v_add_u32 {vLS}, {L_SC}, {vL16}")
    A(f"s_lshl_b32 s91, {sW}, 5")
    A(f"v_add_u32 v83, s91, v80")
    A(f"v_mul_u32_u24 v83, 200, v83")
    A(f"v_lshl_add_u32 v83, v81, 3, v83")
    A(f"v_add_u32 {vPHW}, {L_PHI}, v83")
    A(f"v_and_b32 v82, 15, {vLANE}")
    A(f"v_lshrrev_b32 v83, 2, v82")
    A(f"v_lshrrev_b32 v84, 4, {vLANE}")
    A(f"v_lshl_add_u32 v83, v84, 3, v83")
    A(f"v_mul_u32_u24 v83, 200, v83")
    A(f"v_and_b32 v85, 3, v82")
    A(f"v_lshl_add_u32 v83, v85, 3, v83")
    A(f"v_add_u32 {vPHB}, {L_PHI}, v83")
    A(f"v_add_u32 {vPHA}, s91, {vPHB}")
    A(f"v_and_b32 v83, 1, v84")
    A(f"v_lshlrev_b32 v83, 9, v83")
    A(f"v_lshrrev_b32 v84, 1, v84")
    A(f"v_lshl_add_u32 v83, v84, 3, v83")
    A(f"v_lshl_add_u32 v83, v82, 4, v83")
    A(f"s_lshl_b32 s91, {sW}, 10\n s_add_u32 s91, s91, {L_KVI}")
    A(f"v_add_u32 {vKVW}, s91, v83")
    A(f"v_bfe_u32 v82, v80, 1, 2")
    A(f"v_lshrrev_b32 v83, 4, v80")
    A(f"v_lshl_add_u32 v82, v83, 2, v82")
    A(f"v_xor_b32 v82, v82, v81")
    A(f"v_lshlrev_b32 v84, 7, v80")
    A(f"v_add_u32 v84, s73, v84")
    A(f"v_mul_u32_u24 v83, 26624, v83")
    A(f"v_sub_u32 v83, 24576, v83")
    for u in range(4):
        A(f"v_xor_b32 v85, {2 * u}, v82")
        A(f"v_lshl_add_u32 v{90 + u}, v85, 4, v84")
        A(f"v_add_u32 v{94 + u}, v{90 + u}, v83")

def coop_ops():
    lo, st = [], []
    def guard(n, lim, src):
        A(f"s_cmp_lt_u32 {n}, {lim}\n s_cselect_b64 {sM}, -1, 0\n s_cselect_b32 {sT1}, {sT1}, 0")
        A(f"v_cndmask_b32 v98, v99, {src}, {sM}")
    def blk(n, reg, srd_, st_set, wo):
        def load():
            if wo:
                A(f"s_mul_i32 {sT1}, {sW}, 7\n s_add_u32 {sT1}, {sT1}, {n}\n s_mul_i32 {sT1}, {sT1}, {16 * 896}")
                guard(n, 7, "v87")
            else:
                A(f"s_mul_i32 {sT2}, {n}, 37\n s_lshr_b32 {sT2}, {sT2}, 8")
                A(f"s_mul_i32 {sT1}, {sT2}, 7\n s_sub_u32 {sT1}, {n}, {sT1}")
                A(f"s_mul_i32 {sT3}, {sW}, 7\n s_add_u32 {sT1}, {sT1}, {sT3}\n s_mul_i32 {sT1}, {sT1}, {16 * 2688}")
                A(f"s_add_u32 {sT3}, {sT2}, 1\n s_cmp_eq_u32 {sT2}, 2\n s_cselect_b32 {sT3}, 0, {sT3}\n s_mul_i32 {sT3}, {sT3}, 896")
                A(f"s_add_u32 {sT1}, {sT1}, {sT3}")
                guard(n, 21, vWD)
            A(f"buffer_load_dwordx4 {v(reg,4)}, v98, {srd_}, {sT1} offen")
        def store():
            if wo:
                A(f"s_lshl_b32 {sT1}, {n}, 10\n s_add_u32 {sT1}, {sT1}, {st_set * 16 * 114688 + 3 * 28672}\n s_add_u32 {sT1}, {sT1}, {sIMG}")
                guard(n, 7, vL16)
            else:
                A(f"s_mul_i32 {sT2}, {n}, 37\n s_lshr_b32 {sT2}, {sT2}, 8")
                A(f"s_mul_i32 {sT2}, {sT2}, {28672 - 7168}\n s_lshl_b32 {sT1}, {n}, 10\n s_add_u32 {sT1}, {sT1}, {sT2}")
                A(f"s_add_u32 {sT1}, {sT1}, {st_set * 16 * 114688}\n s_add_u32 {sT1}, {sT1}, {sIMG}")
                guard(n, 21, vL16)
            A(f"buffer_store_dwordx4 {v(reg,4)}, v98, {WS}, {sT1} offen sc1")
        lo.append(load); st.append(store)
    A(f"s_add_u32 s74, {sR}, 16\n s_sub_u32 s75, {sR}, 5")
    A("v_mov_b32 v99, 0x40000000")
    regs = [104, 108, 112, 116, 240, 244]
    for st_set, (w_, wo_) in enumerate(((WA, WOA), (WB, WOB))):
        blk(sR, regs[3 * st_set], w_, st_set, False)
        blk("s74", regs[3 * st_set + 1], w_, st_set, False)
        blk("s75", regs[3 * st_set + 2], wo_, st_set, True)
    return lo, st

def p1():
    nyoung = len(A.vm) - XMARK
    A(f"s_waitcnt vmcnt({nyoung})")
    stamp("x landed")
    def rd(c):
        for u in range(4):
            if c < 6: A(f"ds_read_b128 {v(ACT+16*c+4*u,4)}, v{90+u} offset:{4096*c}")
            else: A(f"ds_read_b128 {v(ACT+16*c+4*u,4)}, v{94+u}")
    def dots(c):
        for i in range(16 * c, 16 * c + 16):
            r = ACT + i
            A(f"v_dot2_f32_bf16 {v(64+(i&1))}, {v(r)}, {v(r)}, {'0' if i < 2 else v(64+(i&1))}")
            A(f"v_dot2_f32_bf16 {v(66+(i&1))}, {v(r)}, {sT0}, {'0' if i < 2 else v(66+(i&1))}")
    A(f"s_mov_b32 {sT0}, 0x3f803f80")
    rd(0); rd(1); rd(2)
    A.wait_regs(v(ACT, 16))
    for rg in range(2, 4):
        A(f"s_add_u32 m0, s73, {1024 * (rg - 2)}")
        A(f"s_add_u32 s75, s72, {768 + 7168 * rg}")
        A(f"buffer_load_dwordx4 v89, {X}, s75 offen lds")
    for c in range(6):
        dots(c)
        if c + 3 < 6: rd(c + 3)
    for i in range(8):
        A(f"v_or_b32 {v(104+2*i)}, {v(104+2*i)}, {v(105+2*i)}")
        A(f"v_accvgpr_write_b32 {a(WP+i)}, {v(104+2*i)}")
    A("s_waitcnt vmcnt(0)")
    rd(6)
    A("v_mov_b32 v80, 0")
    A(f"global_load_dword v123, v80, s[20:21] sc1")
    A.wait_regs(v(ACT + 96, 16))
    A("s_barrier")
    stamp("W landed")
    lo, st = coop_ops()
    for f in lo: f()
    dots(6)
    A("v_add_f32 v120, v66, v67")
    A("v_add_f32 v121, v64, v65")
    wr = colsum_mfma((0, 1), (AK, AV))
    for f in stats_finish_ops("v120", "v121", "v122"): f()
    for f in wr: f()
    stamp("colsum")
    g = Gemm(ksteps_nat(), [(AK, L_K, True, "0"), (AV, L_V, True, "0")])
    yl = [lambda g_=g_: A(f"buffer_load_dwordx2 {v(64+2*g_,2)}, {vXO}, {X}, 0 offen offset:{16*g_}") for g_ in range(4)]
    ops = dma_direct_q() + [lambda: A("s_waitcnt lgkmcnt(0)\n s_barrier")] + colsum_finish_ops(CSA, (0, 1)) + yl + st
    fill = spread(ops, [(s, t) for s in range(0, 27) for t in range(2)], 1)
    fill[(27, 0)] = lambda: rank1(AK, CSA, True)
    g.run(fill, tail=2)
    rank1(AV, CSA + 2, True)
    stamp("p1 gemm")
    for g_ in range(4):
        for j in range(2):
            A(f"v_lshlrev_b32 {v(Y+4*g_+2*j)}, 16, {v(64+2*g_+j)}")
            A(f"v_and_b32 {v(Y+4*g_+2*j+1)}, 0xffff0000, {v(64+2*g_+j)}")
    L = lab("init")
    A(f"v_readfirstlane_b32 {sT0}, v123")
    A(f"s_cmp_lg_u32 {sT0}, 0")
    A(f"s_cbranch_scc1 {L}_go")
    vm_save = list(A.vm)
    A("v_mov_b32 v80, 0")
    A.label(L)
    A(f"global_load_dword v123, v80, s[20:21] sc1")
    A(f"s_sub_u32 {sBUD}, {sBUD}, 1")
    A(f"s_cbranch_scc1 {L}_to")
    A(f"v_readfirstlane_b32 {sT0}, v123")
    A(f"s_cmp_eq_u32 {sT0}, 0")
    A(f"s_cbranch_scc1 {L}")
    A(f"s_branch {L}_go")
    A.label(L + "_to")
    A(f"s_mov_b32 {sBUD}, 0")
    A("s_waitcnt vmcnt(0)")
    A.label(L + "_go")
    A.vm = vm_save

def qkv_act(buf, cs, v_tr):
    g = Gemm(ksteps_act(), [(AK, L_K, True, "0"), (AV, L_V, v_tr, "0")])
    gather_setup(buf)
    g.prefetch()
    wait_row()
    stamp("y ready")
    loads = gather(True)
    ops = stats_gather_ops("v120", "v121") + stats_finish_ops("v120", "v121", "v122")
    ops.append(lambda: rank1(AK, cs, True))
    ops.append(lambda: rank1(AV, cs + 2, v_tr))
    if not v_tr:
        ops.append(lambda: A(f"v_and_b32 v122, 31, {vLANE}"))
        ops.append(lambda: A(f"s_lshl_b32 {sT1}, {sW}, 7\n s_add_u32 {sT1}, {sT1}, {L_RS}"))
        ops.append(lambda: A(f"v_lshl_add_u32 v122, v122, 2, {sT1}"))
        ops.append(lambda: A(f"ds_write_b32 v122, {vRSTD}"))
        ops.append(lambda: A(f"v_lshrrev_b32 v122, 5, {vLANE}"))
        ops.append(lambda: A(f"v_lshl_add_u32 v122, v122, 4, {sT1}"))
        for gi in range(4):
            ops.append(lambda gi=gi: A(f"ds_read_b128 {v(104+4*gi,4)}, v122 offset:{32*gi}"))
    fill = spread(ops, [(s, t) for s in range(3, 26) for t in range(2)], 2)
    g.run(paced(loads, fill, int(OPT.get("ahead", 14))), tail=2)

def a_rest(it):
    nat = it == 0
    stamp("A gemm done")
    A(f"v_mul_f32 v122, {fbits(LOG2E)}, {vRSTD}")
    scale_cvt(80, AK, (122, 0), 8)
    mfma(v(AQ, 16), a(WP, 4), v(80, 4), "0")
    mfma(v(AQ, 16), a(WP + 4, 4), v(84, 4), v(AQ, 16))
    scale_cvt(104, AV, (124, 0), 8)
    exec_set(sHI)
    A("v_mov_b32 v110, 0x00003f80\n v_mov_b32 v111, 0")
    exec_set("-1")
    for gi in range(4): A(f"ds_write_b64 {vPHW}, {v(104+2*gi,2)} offset:{128+16*gi}")
    phi(AQ, 88, 104, 112, 120, lambda sg: [A(f"ds_write_b64 {vPHW}, {v(104+8*sg+2*gi,2)} offset:{64*sg+16*gi}") for gi in range(4)])
    A(f"s_lshl_b32 {sT1}, {sR}, 10")
    A(f"s_add_u32 {sT1}, {sT1}, {sKVP}")
    A(f"s_add_u32 {sT1}, {sT1}, {WS_KVP + it * (1 << 20)}")
    A("s_waitcnt vmcnt(0) lgkmcnt(0)" if nat else "s_waitcnt lgkmcnt(0)")
    A("s_barrier")
    def rd(tb):
        R = RING + 12 * tb
        for q in range(2): A(f"ds_read_b64_tr_b16 {a(R+2*q,2)}, {vPHA} offset:{(tb*32+4*q)*200}")
        for dt in range(2):
            for q in range(2): A(f"ds_read_b64_tr_b16 {a(R+4+4*dt+2*q,2)}, {vPHB} offset:{(tb*32+4*q)*200+128+32*dt}")
    rd(0); rd(1)
    for tb in range(4):
        R = RING + 12 * tb
        for dt in range(2):
            A(f"v_mfma_f32_16x16x32_bf16 {v(36+4*dt,4)}, {a(R,4)}, {a(R+4+4*dt,4)}, {'0' if tb == 0 else v(36+4*dt,4)}")
            if dt == 0 and tb + 2 < 4: rd(tb + 2)
    g = Gemm(ksteps_nat() if nat else ksteps_act(), [(AQ, L_Q, True, "0")])
    if not nat: g.prefetch()
    for i in range(4): A(f"v_cvt_pk_bf16_f32 {v(44+i)}, {v(36+2*i)}, {v(37+2*i)}")
    A(f"buffer_store_dwordx4 {v(44,4)}, {vL16}, {WS}, {sT1} offen sc1")
    stamp("kvp stored")
    ARR = int(OPT.get("arr", 18))
    if nat:
        for f in colsum_mfma((2,), (None, None, AV)): f()
        ops = [lambda: A("s_waitcnt lgkmcnt(0)\n s_barrier")] + colsum_finish_ops(CSA, (2,))
        fill = spread(ops, [(s, 0) for s in range(12, 28)], 2)
        fill[(ARR - 8, 0)] = arrive_col
    else:
        fill = {(ARR, 0): arrive_col}
    g.run(fill)
    rank1(AQ, CSA + 4, True)
    A(f"v_mul_f32 v122, {fbits(LOG2E)}, {vRSTD}")
    A(f"s_add_u32 {sG[0]}, {sKVP}, {WS_KVP + it * (1 << 20)}")
    for i in range(1, 4): A(f"s_add_u32 {sG[i]}, {sG[0]}, {4096*i}")
    scale_cvt(80, AQ, (122, 0), 8)
    mfma(v(AQ, 16), a(WP, 4), v(80, 4), "0")
    mfma(v(AQ, 16), a(WP + 4, 4), v(84, 4), v(AQ, 16))
    phi(AQ, 88, 104, 112, 120, None, lambda: poll_issue(sCOLC))
    stamp("phi_q done")
    wait_col(True)
    stamp("kvp ready")
    for r in range(16):
        A(f"buffer_load_dwordx4 {v(ACT+4*r,4)}, {vL16}, {WS}, {sG[r>>2]} offen offset:{1024*(r&3)} sc1")
    dm = dma_img(0, (3,)) if nat else []
    for r in range(16):
        for i in range(4):
            A(f"v_dot2_f32_bf16 {v(80+2*i)}, {v(ACT+4*r+i)}, {sC10}, {'0' if r == 0 else v(80+2*i)}")
            A(f"v_dot2_f32_bf16 {v(81+2*i)}, {v(ACT+4*r+i)}, {sC01}, {'0' if r == 0 else v(81+2*i)}")
        if r >= 8 and dm: dm.pop(0)()
    for i in range(4): A(f"v_cvt_pk_bf16_f32 {v(88+i)}, {v(80+2*i)}, {v(81+2*i)}")
    for dt in range(2): A(f"ds_write_b64 {vKVW}, {v(88+2*dt,2)} offset:{256*dt}")
    A("s_waitcnt lgkmcnt(0)")
    A("s_barrier")
    for u in range(4): A(f"ds_read_b128 {a(WR+4*u,4)}, {vLS} offset:{L_KVI - L_SC + 1024*u}")
    for u in range(4): mfma(v(AK, 16), a(WR + 4 * u, 4), v(104 + 4 * u, 4), "0" if u == 0 else v(AK, 16))
    normalize_publish(AK, 4 * it + 0, 1e-6, None, T=120, F=88)
    stamp("o stored")
    arrive_row()
    if nat: A("s_barrier")
    for f in dma_img(1, (0, 1, 2) if nat else (0, 1)): f()

def outproj(buf, last):
    g = Gemm(ksteps_act(), [(Y, L_WO, True, v(Y, 16))])
    gather_setup(buf)
    g.prefetch()
    wait_row()
    stamp("o ready")
    g.run(paced(gather(False), None, int(OPT.get("ahead2", 14))))
    F = 88
    if last:
        for i in range(8): A(f"v_cvt_pk_bf16_f32 {v(F+i)}, {v(Y+2*i)}, {v(Y+2*i+1)}")
        for gi in range(3): A(f"buffer_store_dwordx2 {v(F+2*gi,2)}, {vXO}, {OUT}, 0 offen offset:{16*gi} {OPT.get('ost','').replace('+',' ')}")
        exec_set(sLO)
        A(f"buffer_store_dwordx2 {v(F+6,2)}, {vXO}, {OUT}, 0 offen offset:48 {OPT.get('ost','').replace('+',' ')}")
        exec_set("-1")
        return
    A(f"s_add_u32 {sT1}, {sPUB}, {WS_ACT + (buf + 1) * (2 << 20)}")
    for i in range(4): A(f"v_cvt_pk_bf16_f32 {v(F+i)}, {v(Y+2*i)}, {v(Y+2*i+1)}")
    A(f"buffer_store_dwordx4 {v(F,4)}, {vL16}, {WS}, {sT1} offen sc1")
    A(f"v_pk_add_f32 v[104:105], {v(Y,2)}, {v(Y+2,2)}")
    A(f"v_pk_mul_f32 v[106:107], {v(Y,2)}, {v(Y,2)}")
    A(f"v_pk_fma_f32 v[106:107], {v(Y+2,2)}, {v(Y+2,2)}, v[106:107]")
    for i in range(2, 8):
        if i == 6: exec_set(sLO)
        A(f"v_pk_add_f32 v[104:105], v[104:105], {v(Y+2*i,2)}")
        A(f"v_pk_fma_f32 v[106:107], {v(Y+2*i,2)}, {v(Y+2*i,2)}, v[106:107]")
    exec_set("-1")
    A("v_add_f32 v104, v104, v105")
    A("v_add_f32 v106, v106, v107")
    for i in range(4, 8): A(f"v_cvt_pk_bf16_f32 {v(F+i)}, {v(Y+2*i)}, {v(Y+2*i+1)}")
    A("v_permlane32_swap_b32 v105, v104")
    A("v_permlane32_swap_b32 v107, v106")
    exec_set(sHI)
    A(f"v_add_f32 {v(F+6)}, v104, v105")
    A(f"v_add_f32 {v(F+7)}, v106, v107")
    exec_set(sEVEN)
    A(f"v_swap_b32 {v(F+4)}, {v(F+6)}")
    A(f"v_swap_b32 {v(F+5)}, {v(F+7)}")
    exec_set("-1")
    A(f"buffer_store_dwordx4 {v(F+4,4)}, {vL16}, {WS}, {sT1} offen offset:1024 sc1")
    stamp("y stored")
    arrive_row()
    A("s_barrier")

KF, VF, QF, O, S0, S1, P = 80, 88, 104, 128, 32, 48, 64
def qreg(j, i): return v(QF + 4 * i, 4) if j == 0 else a(QA + 8 * (j - 1) + 4 * i, 4)

def attention(it):
    last = it == 1
    stamp("B gemm done")
    scale_cvt(KF, AK, (124, 0), 8)
    exec_set(sHI)
    A(f"v_mov_b32 {v(KF+6)}, 0x3f803f80\n v_mov_b32 {v(KF+7)}, 0x00003f80")
    exec_set("-1")
    A(f"s_lshl_b32 {sT1}, {sR}, 12")
    A(f"s_add_u32 {sT1}, {sT1}, {sKV}")
    A(f"s_add_u32 {sT1}, {sT1}, {WS_KV + it * (4 << 20)}")
    A(f"buffer_store_dwordx4 {v(KF,4)}, {vL16}, {WS}, {sT1} offen sc1")
    A(f"buffer_store_dwordx4 {v(KF+4,4)}, {vL16}, {WS}, {sT1} offen offset:1024 sc1")
    for i in range(8): A(f"v_pk_mul_f32 {v(AV+2*i,2)}, {v(AV+2*i,2)}, {v(104+2*i,2)}")
    for i in range(8): A(f"v_cvt_pk_bf16_f32 {v(VF+i)}, {v(AV+2*i)}, {v(AV+2*i+1)}")
    exec_set(sONE28)
    for i in range(8): A(f"v_mov_b32 {v(VF+i)}, 0x3f803f80")
    exec_set("-1")
    A(f"buffer_store_dwordx4 {v(VF,4)}, {vL16}, {WS}, {sT1} offen offset:2048 sc1")
    A(f"buffer_store_dwordx4 {v(VF+4,4)}, {vL16}, {WS}, {sT1} offen offset:3072 sc1")
    stamp("kv stored")
    if it == 1: A("s_barrier")
    g = Gemm(ksteps_act(), [(AQ, L_Q, True, "0")])
    g.run({(int(OPT.get("arr", 18)), 0): arrive_col, (8, 0): lambda: rank1(AQ, CSB + 4, True)})
    A(f"v_mul_f32 v122, {fbits(28 ** -0.5 * LOG2E)}, {vRSTD}")
    scale_cvt(QF, AQ, (122, 0), 8)
    exec_set(sHI)
    A(f"v_mov_b32 {v(QF+6)}, 0\n v_mov_b32 {v(QF+7)}, 0")
    exec_set("-1")
    mfma(v(S0, 16), v(KF, 4), v(QF, 4), "0")
    mfma(v(S0, 16), v(KF + 4, 4), v(QF + 4, 4), v(S0, 16))
    A(f"s_mov_b32 {sPASS}, 0")
    A(f"v_max3_f32 {vMX}, {v(S0)}, {v(S0+1)}, {v(S0+2)}")
    for i in range(3, 15, 2): A(f"v_max3_f32 {vMX}, {vMX}, {v(S0+i)}, {v(S0+i+1)}")
    A(f"v_max_f32 {vMX}, {vMX}, {v(S0+15)}")
    A(f"v_mov_b32 v72, {vMX}")
    A(f"v_permlane32_swap_b32 v72, {vMX}")
    A(f"v_max_f32 {vMX}, {vMX}, v72")
    A("s_waitcnt lgkmcnt(0)")
    A.settle()
    Lre = lab("attn")
    A.label(Lre)
    A(f"v_cvt_pk_bf16_f32 v72, -{vMX}, 0")
    A(f"v_lshlrev_b32 v73, 16, v72")
    A(f"v_sub_f32_e64 v73, -{vMX}, v73")
    A(f"v_cvt_pk_bf16_f32 v72, -{vMX}, v73")
    A(f"v_and_b32 v74, 0xffff0000, v72")
    A(f"v_sub_f32 v73, v73, v74")
    exec_set(sHI)
    A(f"v_mov_b32 {v(QF+6)}, v72")
    A(f"v_cvt_pk_bf16_f32 {v(QF+7)}, v73, 0")
    exec_set("-1")
    A(f"s_lshl_b32 {sT1}, {sW}, 11\n s_add_u32 {sT1}, {sT1}, {L_QX}")
    A(f"v_add_u32 v72, {sT1}, {vL16}")
    A(f"ds_write_b128 v72, {v(QF,4)}")
    A(f"ds_write_b128 v72, {v(QF+4,4)} offset:1024")
    for j in range(1, 4):
        A(f"s_add_u32 {sT1}, {sW}, {j}\n s_and_b32 {sT1}, {sT1}, 3\n s_lshl_b32 {sT2}, {sT1}, 11\n s_add_u32 {sT2}, {sT2}, {L_QX}")
        A(f"v_add_u32 {v(72+j)}, {sT2}, {vL16}")
        A(f"s_mul_i32 {sT2}, {sT1}, 12288\n s_add_u32 {sT2}, {sT2}, {L_RED + 4096*(j-1)}")
        A(f"v_add_u32 {v(76+j)}, {sT2}, {vL16}")
    A(f"s_mul_i32 {sT2}, {sW}, 12288\n s_add_u32 {sT2}, {sT2}, {L_RED}")
    A(f"v_add_u32 v76, {sT2}, {vL16}")
    A("s_waitcnt lgkmcnt(0)")
    poll_issue(sCOLC)
    A("s_barrier")
    for j in range(1, 4):
        A(f"ds_read_b128 {qreg(j,0)}, {v(72+j)}")
        A(f"ds_read_b128 {qreg(j,1)}, {v(72+j)} offset:1024")
    A("s_waitcnt lgkmcnt(0)")
    A("s_barrier")
    stamp("q ready")
    wait_col(True)
    stamp("kv ready")
    def kreg(kt, i): return v(KF + 4 * i, 4) if kt == 0 else a(RING + 16 * ((kt - 1) % 8) + 4 * i, 4)
    def vreg(kt, i): return v(VF + 4 * i, 4) if kt == 0 else a(RING + 16 * ((kt - 1) % 8) + 8 + 4 * i, 4)
    loads = []
    for kt in range(1, 16):
        for i in range(4):
            def f(kt=kt, i=i):
                if i == 0:
                    A(f"s_add_u32 {sT2}, {sR}, {kt}\n s_and_b32 {sT2}, {sT2}, 15\n s_lshl_b32 {sT2}, {sT2}, 12\n s_add_u32 {sT2}, {sT2}, {sT3}")
                A(f"buffer_load_dwordx4 {a(RING+16*((kt-1)%8)+4*i,4)}, {vL16}, {WS}, {sT2} offen offset:{1024*i} sc1")
            loads.append(f)
    dm = []
    A(f"s_add_u32 {sT3}, {sKV}, {WS_KV + it * (4 << 20)}")
    PRE = int(OPT.get("pre", 8))
    for f in loads[:PRE]: f()
    li = [PRE]; di = [0]
    def next_load(n):
        if li[0] < len(loads):
            kt = li[0] // 4 + 1
            if kt < 9 or n > 4 * (kt - 8) + 5:
                loads[li[0]](); li[0] += 1; return True
        return False
    def next_dma():
        if di[0] < len(dm): dm[di[0]](); di[0] += 1
    Sb = (S0, S1)
    def S_(n, i):
        kt, j = n >> 2, n & 3
        mfma(v(Sb[n & 1], 16), kreg(kt, i), qreg(j, i), "0" if i == 0 else v(Sb[n & 1], 16))
    def PV(n, i):
        kt, j = n >> 2, n & 3
        mfma(v(O + 16 * j, 16), vreg(kt, i), v(P + 4 * i, 4), "0" if (kt == 0 and i == 0) else v(O + 16 * j, 16))
    S_(0, 0); S_(0, 1)
    for n in range(64):
        s = Sb[n & 1]
        e = lambda i: A(f"v_exp_f32 {v(s+i)}, {v(s+i)}")
        c = lambda i: A(f"v_cvt_pk_bf16_f32 {v(P+i)}, {v(s+2*i)}, {v(s+2*i+1)}")
        if n + 1 < 64: S_(n + 1, 0)
        next_load(n)
        e(0); e(1); e(2); c(0); e(3)
        if n > 0: PV(n - 1, 1)
        if n < 12: next_load(n)
        elif n >= 16: next_dma()
        c(1); e(4); e(5); e(6); c(2); e(7)
        if n + 1 < 64: S_(n + 1, 1)
        A.wait_regs(vreg(n >> 2, 0), vreg(n >> 2, 1))
        c(3); e(8); e(9); e(10); c(4); e(11)
        PV(n, 0)
        if n + 2 < 64: A.wait_regs(kreg((n + 2) >> 2, 0), kreg((n + 2) >> 2, 1))
        c(5); e(12); e(13); e(14); e(15); c(6); c(7)
    PV(63, 1)
    assert li[0] == len(loads) and di[0] == len(dm)
    stamp("attn loop done")
    for j in range(1, 4):
        for i in range(4): A(f"ds_write_b128 {v(76+j)}, {v(O+16*j+4*i,4)} offset:{1024*i}")
    A("s_waitcnt vmcnt(0) lgkmcnt(0)")
    A("s_barrier")
    for j in range(3):
        for i in range(4): A(f"ds_read_b128 {v(192+16*j+4*i,4)}, v76 offset:{4096*j+1024*i}")
    for j in range(3):
        for i in range(8): A(f"v_pk_add_f32 {v(O+2*i,2)}, {v(O+2*i,2)}, {v(192+16*j+2*i,2)}")
    def check(den):
        A(f"v_pk_mul_f32 v[72:73], {v(O,2)}, 0")
        for i in range(1, 8): A(f"v_pk_fma_f32 v[72:73], {v(O+2*i,2)}, 0, v[72:73]")
        A(f"v_add_f32 v72, v72, v73")
        A(f"v_add_f32 v72, v72, {den}")
        A(f"s_mov_b32 {sT1}, {fbits(2.0**60)}")
        A(f"v_cmp_nle_f32 {sM}, v72, {sT1}")
        A(f"s_mov_b32 {sT1}, {fbits(2.0**-60)}")
        A(f"v_cmp_nge_f32 vcc, v72, {sT1}")
        A(f"s_or_b64 {sM}, {sM}, vcc")
        A(f"s_or_b32 {sT1}, s98, s99")
        A(f"v_mov_b32 v72, {sT1}")
        A(f"s_mul_i32 {sT2}, {sW}, 12288\n s_add_u32 {sT2}, {sT2}, {L_RED}")
        A(f"v_mov_b32 v73, {sT2}")
        A("ds_write_b32 v73, v72")
    normalize_publish(O, 4 * it + 2, None, check, T=200, F=192)
    A(f"v_mov_b32 v73, {L_RED}")
    A("s_waitcnt lgkmcnt(0)")
    A("s_barrier")
    for w in range(4): A(f"ds_read_b32 {v(72+w) if w != 1 else 'v71'}, v73 offset:{12288*w}")
    A("v_or_b32 v72, v72, v71")
    A("v_or3_b32 v72, v72, v74, v75")
    A(f"v_readfirstlane_b32 {sT1}, v72")
    A(f"s_andn2_b32 {sT1}, {sT1}, {sPASS}")
    A(f"s_cmp_lg_u32 {sT1}, 0")
    Lslow = lab("slow")
    A(f"s_cbranch_scc1 {Lslow}")
    slow.append((Lslow, Lre, it))
    stamp("o voted")
    arrive_row()
    if not last:
        for f in dma_img(0, (0, 1)): f()

slow = []
def slow_path(L, Lre, it):
    A.hist = []; A.vm = []; A.lg = []; A.sm = []
    A.label(L)
    A("s_waitcnt vmcnt(0) lgkmcnt(0)")
    A(f"s_mov_b32 {sPASS}, -1")
    A(f"s_add_u32 {sT3}, {sKV}, {WS_KV + it * (4 << 20)}")
    A(f"s_mov_b32 {sT2}, 16")
    for j in range(4): A(f"v_mov_b32 {v(72+j)}, 0xff800000")
    Ll = lab("mx")
    A.label(Ll)
    A(f"buffer_load_dwordx4 {a(RING,4)}, {vL16}, {WS}, {sT3} offen sc1")
    A(f"buffer_load_dwordx4 {a(RING+4,4)}, {vL16}, {WS}, {sT3} offen offset:1024 sc1")
    for j in range(4):
        mfma(v(S0, 16), a(RING, 4), qreg(j, 0), "0")
        mfma(v(S0, 16), a(RING + 4, 4), qreg(j, 1), v(S0, 16))
        for i in range(0, 16, 2): A(f"v_max3_f32 {v(72+j)}, {v(72+j)}, {v(S0+i)}, {v(S0+i+1)}")
    A(f"s_add_u32 {sT3}, {sT3}, 4096")
    A(f"s_sub_u32 {sT2}, {sT2}, 1")
    A(f"s_cmp_lg_u32 {sT2}, 0")
    A.settle()
    A(f"s_cbranch_scc1 {Ll}")
    A("s_barrier")
    for j in range(4):
        A(f"s_add_u32 {sT1}, {sW}, {j}\n s_and_b32 {sT1}, {sT1}, 3\n s_lshl_b32 {sT1}, {sT1}, 10\n s_add_u32 {sT1}, {sT1}, {L_RED + 256*j}")
        A(f"v_lshl_add_u32 v71, {vLANE}, 2, {sT1}")
        A(f"ds_write_b32 v71, {v(72+j)}")
    A(f"s_lshl_b32 {sT1}, {sW}, 10\n s_add_u32 {sT1}, {sT1}, {L_RED}")
    A(f"v_lshl_add_u32 v71, {vLANE}, 2, {sT1}")
    A("s_waitcnt lgkmcnt(0)")
    A("s_barrier")
    for j in range(4): A(f"ds_read_b32 {v(72+j)}, v71 offset:{256*j}")
    A("v_max3_f32 v72, v72, v73, v74")
    A("v_max_f32 v72, v72, v75")
    A("v_mov_b32 v73, v72")
    A("v_permlane32_swap_b32 v73, v72")
    A("v_max_f32 v72, v72, v73")
    A(f"v_add_f32 {vMX}, {vMX}, v72")
    A("s_waitcnt lgkmcnt(0)")
    A("s_barrier")
    A.settle()
    A(f"s_branch {Lre}")

def epilogue():
    if STAMPS:
        stamp("end")
        A(f"s_lshl_b32 {sT1}, s2, 2\n s_add_u32 {sT1}, {sT1}, {sW}\n s_lshl_b32 {sT1}, {sT1}, 8\n s_add_u32 {sT1}, {sT1}, {WS_DBG}")
        A(f"v_lshlrev_b32 v72, 2, {vLANE}")
        A(f"buffer_store_dword v125, v72, {WS}, {sT1} offen")
        if DBG_SEL is not None:
            A("s_mov_b64 exec, 1\n v_not_b32 v125, v125")
            A(f"s_mov_b64 exec, {(1 << len(DBG_SEL)) - 1}")
            A("v_add_u32 v72, 4, v72")
            A("global_atomic_umax v72, v125, s[20:21]")
            A("s_mov_b64 exec, -1")
    A("s_waitcnt vmcnt(0)")
    A.label("L_end")
    A("s_endpgm")
    for args in slow: slow_path(*args)
    A.label("L_code_end")
    A.raw(f""".section .rodata,"a"
.p2align 6
.amdhsa_kernel {NAME}_kernel
  .amdhsa_next_free_vgpr 464
  .amdhsa_next_free_sgpr 102
  .amdhsa_accum_offset 256
  .amdhsa_group_segment_fixed_size 0
  .amdhsa_kernarg_size 80
  .amdhsa_user_sgpr_count 2
  .amdhsa_user_sgpr_kernarg_segment_ptr 1
  .amdhsa_system_sgpr_workgroup_id_x 1
  .amdhsa_float_denorm_mode_32 3
.end_amdhsa_kernel""")

prologue()
p1()
for it in range(2):
    a_rest(it)
    outproj(4 * it + 0, False)
    if it == 0:
        for f in dma_img(1, (3,)): f()
        for f in colsum_mfma((0, 1, 2), (AK, AV, AQ)): f()
        A("s_waitcnt lgkmcnt(0)\n s_barrier")
        for f in colsum_finish_ops(CSB, (0, 1, 2)): f()
    else:
        for f in dma_img(1, (2, 3)): f()
    qkv_act(4 * it + 1, CSB, False)
    attention(it)
    outproj(4 * it + 2, it == 1)
    if it == 0:
        for f in dma_img(0, (2, 3)): f()
        qkv_act(3, CSA, True)
epilogue()

out = OUTF[0] if OUTF else f"cdna_kernels/{NAME}.s"
open(out, "w").write(A.text())
if STAMPS: open(out + ".stamps", "w").write("\n".join(stamp_names))
print(f"wrote {out}: {A.nins} instructions, {A.nnop} nop states")
```

```python
import sys, struct, math
sys.path.insert(0, "work")
from asmgen import Asm

NAME = "interleave_layers__linear_kernel_hedgehog__mha_block__prompt"
STAMPS = "--stamps" in sys.argv
OUTF = [a for a in sys.argv[1:] if not a.startswith("--")]
OPT = {a.split("=")[0][2:]: (a.split("=") + ["1"])[1] for a in sys.argv[1:] if a.startswith("--")}

def fbits(x): return "0x%08x" % struct.unpack("<I", struct.pack("<f", x))[0]
LOG2E = math.log2(math.e)

WS_CTR = 0
WS_ACT = 1 << 20
WS_KV = WS_ACT + 7 * (2 << 20)
WS_KVP = WS_KV + 2 * (4 << 20)
WS_IMG = WS_KVP + 2 * (1 << 20)
WS_DBG = WS_IMG + (4 << 20)
WS_END = WS_DBG + (1 << 20)
L_K, L_V, L_Q, L_WO, L_SC = 0, 28672, 57344, 86016, 114688
L_PHI = L_SC
L_KVI = L_SC + 28672
L_CS = L_SC + 32768
L_RS = L_SC + 34816
L_QX = L_SC + 36864
L_MX = L_SC + 45056
L_RED = L_K
L_VOTE = L_SC + 47104
LDS_BYTES = 163840
HIB = 57344
X, WA, WPHI, WOA, WB, WOB, OUT, WS, CODE = ("s[%d:%d]" % (i, i + 3) for i in range(24, 60, 4))
sR, sH, sW = "s60", "s61", "s62"
sBUD = "s63"
sROWC, sCOLC = "s[64:65]", "s[66:67]"
sACT, sPUB, sKV, sKVP = "s68", "s69", "s70", "s71"
sG = ["s%d" % i for i in range(72, 80)]
sHI, sLO, sONE28, sEVEN = "s[80:81]", "s[82:83]", "s[84:85]", "s[86:87]"
sONE, sT0, sT1, sT2, sT3 = "s88", "s89", "s90", "s91", "s92"
sC10, sC01 = "s93", "s94"
sPASS = "s95"
sST = "s[96:97]"
sM = "s[98:99]"
sIMG, sW7, sPOLL = "s3", "s100", "s101"
vLANE, vL16 = "v0", "v1"
vLH = "v2"
vTR = "v3"
vN, vNH = "v3", "v4"
vGX, vGM, vWD, vXO = "v10", "v11", "v12", "v14"
vGO = "v5"
vPHW, vPHA, vPHB, vKVW, vLS = "v8", "v9", "v13", "v103", "v102"
vMX = "v15"
Y, AK, AV, AQ = 16, 32, 48, 64
ACT = 128
vRSTD, vMB0 = "v124", 126
vSTAMP = "a250"
RING = 0
WR = 128
CSA, CSB = 160, 166
WP = 172
QA = 180

def v(i, n=1): return "v%d" % i if n == 1 else "v[%d:%d]" % (i, i + n - 1)
def a(i, n=1): return "a%d" % i if n == 1 else "a[%d:%d]" % (i, i + n - 1)

A = Asm()
nstamp = [0]
stamp_names = []
DBG_SEL = [int(x) for x in OPT["dbg"].split(",")] if "dbg" in OPT else None
allst = [0]
def stamp(name):
    if not STAMPS: return
    allst[0] += 1
    if DBG_SEL is not None and allst[0] - 1 not in DBG_SEL: return
    if 1 < allst[0] <= int(OPT.get("from", 0)): return
    if nstamp[0] >= 63 and name != "end": return
    i = nstamp[0]; nstamp[0] += 1
    stamp_names.append(name)
    A(f"{'s_memtime' if 'cyc' in OPT else 's_memrealtime'} {sST}")
    A("s_waitcnt lgkmcnt(0)")
    A(f"v_writelane_b32 v125, s96, {i}")

uid = [0]
def lab(p):
    uid[0] += 1
    return f"L_{p}_{uid[0]}"

def mfma(d, x, y, c, k16=True):
    A(f"v_mfma_f32_32x32x16_bf16 {d}, {x}, {y}, {c}")

def exec_set(m): A(f"s_mov_b64 exec, {m}")

def arrive(ctr, n=0):
    A(f"s_waitcnt vmcnt({n})")
    A(f"s_atomic_add {sONE}, {ctr}, 0")

def poll_issue(ctr):
    A(f"s_mov_b32 {sPOLL}, 0")
    A(f"s_atomic_add {sPOLL}, {ctr}, 0 glc")

def wait_ctr(ctr, target, issued=False, bias=0):
    L, Lo = lab("poll"), lab("go")
    if not issued:
        A.wait_regs(sPOLL)
        poll_issue(ctr)
    A("s_waitcnt lgkmcnt(0)")
    A(f"s_cmp_ge_u32 {sPOLL}, {target - bias}")
    A(f"s_cbranch_scc1 {Lo}")
    A.label(L)
    if "psleep" in OPT: A(f"s_sleep {OPT['psleep']}")
    poll_issue(ctr)
    A(f"s_sub_u32 {sBUD}, {sBUD}, 1")
    A(f"s_cbranch_scc1 {Lo}_to")
    A("s_waitcnt lgkmcnt(0)")
    A(f"s_cmp_lt_u32 {sPOLL}, {target}")
    A(f"s_cbranch_scc1 {L}")
    A(f"s_branch {Lo}")
    A.label(Lo + "_to")
    A(f"s_mov_b32 {sBUD}, 0")
    A("s_waitcnt lgkmcnt(0)")
    A.label(Lo)

def act_order():
    lead = int(OPT.get("lead", 6))
    norm = [(Q, k) for Q in range(4) for k in range(6)]
    return norm[:lead] + [(Q, 6) for Q in range(4)] + norm[lead:]
def ksteps_act():
    out = []
    for Q, k in act_order():
        out.append((ACT + 32 * Q + (26 if k == 6 else 4 * k), 7 * Q + k))
    return out
def ksteps_nat():
    return [(ACT + 4 * s, None, 4 * s, 4 * s + 1) for s in range(28)]

def tr_read(dst, ks, tile_off):
    hi = tile_off >= HIB
    off = tile_off - (HIB if hi else 0)
    if ks[1] is None:
        base = vNH if hi else vN
        A(f"ds_read_b64_tr_b16 {a(dst,2)}, {base} offset:{off + ks[2]*256}")
        A(f"ds_read_b64_tr_b16 {a(dst+2,2)}, {base} offset:{off + ks[3]*256}")
    else:
        A(f"ds_read_b128 {a(dst,4)}, {vLH if hi else vL16} offset:{off + ks[1]*1024}")

class Gemm:
    def __init__(self, ks, tiles):
        self.ks, self.tiles = ks, tiles
        self.nt = len(tiles)
        self.depth = min(8 // self.nt, 15 // (2 * self.nt) + 1, 4 if self.nt > 1 else 6)
        self.issued = 0
    def slot(self, s, t): return WR + 4 * ((s % (8 // self.nt)) * self.nt + t)
    def prefetch(self):
        while self.issued < self.depth - 1:
            self.issue()
    def issue(self):
        s = self.issued
        if s < len(self.ks):
            for t, (acc, off, tr, c0) in enumerate(self.tiles):
                tr_read(self.slot(s, t), self.ks[s], off)
        self.issued += 1
    def run(self, fill=None, tail=0):
        fill = fill or {}
        self.prefetch()
        n = len(self.ks)
        order = [(s, t) for s in range(n - tail) for t in range(self.nt)]
        order += [(s, t) for t in range(self.nt) for s in range(n - tail, n)]
        for s, t in order:
            k = self.ks[s]
            acc, off, tr, c0 = self.tiles[t]
            wf, af = a(self.slot(s, t), 4), v(k[0], 4)
            if t == 0 and self.nt > 1 and s < n - tail: A.wait_regs(af, *[a(self.slot(s, u), 4) for u in range(self.nt)])
            c = c0 if s == 0 else v(acc, 16)
            if tr: mfma(v(acc, 16), wf, af, c)
            else: mfma(v(acc, 16), af, wf, c)
            if t == 0: self.issue()
            f = fill.get((s, t))
            if f: f()

def rank1(acc, cs, tr):
    if tr: A(f"v_mfma_f32_32x32x8_bf16 {v(acc,16)}, {a(cs,2)}, {v(vMB0,2)}, {v(acc,16)}")
    else: A(f"v_mfma_f32_32x32x8_bf16 {v(acc,16)}, {v(vMB0,2)}, {a(cs,2)}, {v(acc,16)}")

def gather_setup(buf):
    A(f"s_add_u32 {sG[0]}, {sACT}, {WS_ACT + buf * (2 << 20)}")
    for i in range(1, 8): A(f"s_add_u32 {sG[i]}, {sG[0]}, {4096 * i}")

def gather(stats):
    out = []
    for Q, k in act_order():
        R = ACT + 32 * Q
        if k == 6 and stats:
            t = [f"buffer_load_dwordx4 {v(R+24,4)}, {vGM}, {WS}, {sG[2*Q]} offen offset:1536 sc1",
                 f"buffer_load_dwordx4 {v(R+28,4)}, {vGM}, {WS}, {sG[2*Q]} offen offset:3584 sc1"]
        elif k == 6:
            t = [f"buffer_load_dwordx2 {v(R+26,2)}, {vGO}, {WS}, {sG[2*Q]} offen offset:1536 sc1",
                 f"buffer_load_dwordx2 {v(R+28,2)}, {vGO}, {WS}, {sG[2*Q]} offen offset:3584 sc1"]
        elif k < 4:
            t = [f"buffer_load_dwordx4 {v(R+4*k,4)}, {vL16}, {WS}, {sG[2*Q+(k>>1)]} offen offset:{2048*(k&1)} sc1"]
        else:
            t = [f"buffer_load_dwordx4 {v(R+16+4*(k-4),4)}, {vGX}, {WS}, {sG[2*Q+k-4]} offen offset:1024 sc1"]
        out.append([lambda x=x: A(x) for x in t])
    return out

def paced(loads, fill, ahead, dist):
    for ch in loads[:ahead]:
        for f in ch: f()
    fill = dict(fill or {})
    nxt = ahead
    for s in range(len(loads)):
        chunk = []
        while nxt < len(loads) and nxt <= s + dist and len(chunk) < 2:
            chunk += loads[nxt]; nxt += 1
        if chunk:
            old = fill.get((s, 0))
            fill[(s, 0)] = (lambda ch=chunk, old=old: ([f() for f in ch], old() if old else None))
    assert nxt == len(loads)
    return fill

def dma_img(st, tiles):
    out = []
    if "nodma" in OPT and rowc[0] >= 32: return out
    for t in tiles:
        for i in range(7):
            def f(t=t, i=i):
                if i in (0, 4):
                    A(f"s_add_u32 m0, {sW7}, {t * 28672 + i * 1024}")
                    A(f"s_add_u32 {sT1}, {sIMG}, {st * 16 * 114688 + t * 28672 + i * 1024}")
                A(f"buffer_load_dwordx4 {vL16}, {WS}, {sT1} offen offset:{1024 * (i % 4)} sc1 lds")
            out.append(f)
    return out

def dma_direct_q():
    out = []
    for i in range(7):
        def f(i=i):
            A(f"s_add_u32 m0, {sW7}, {L_Q + i * 1024}")
            A(f"s_mul_i32 {sT1}, {sW}, {7 * 16 * 2688}")
            A(f"s_add_u32 {sT1}, {sT1}, {i * 16 * 2688}")
            A(f"buffer_load_dwordx4 {vWD}, {WA}, {sT1} offen lds")
        out.append(f)
    return out

def both_halves_sum(x, t):
    A(f"v_mov_b32 {t}, {x}")
    A(f"v_permlane32_swap_b32 {t}, {x}")
    A(f"v_add_f32 {x}, {x}, {t}")

def stats_finish_ops(s, q, t):
    ops = []
    P = lambda txt: ops.append(lambda: A(txt))
    P(f"v_mov_b32 {t}, {s}")
    P(f"v_permlane32_swap_b32 {t}, {s}")
    P(f"v_add_f32 {s}, {s}, {t}")
    P(f"v_mov_b32 {t}, {q}")
    P(f"v_permlane32_swap_b32 {t}, {q}")
    P(f"v_add_f32 {q}, {q}, {t}")
    P(f"v_mul_f32 {s}, {fbits(-1.0/448)}, {s}")
    P(f"v_mul_f32 {q}, {fbits(1.0/448)}, {q}")
    P(f"v_fma_f32 {q}, -{s}, {s}, {q}")
    P(f"v_max_f32 {q}, 0, {q}")
    P(f"v_add_f32 {q}, {fbits(1e-5)}, {q}")
    P(f"v_rsq_f32 {vRSTD}, {q}")
    P(f"v_cndmask_b32 {s}, {s}, 0, {sHI}")
    P(f"v_cvt_pk_bf16_f32 {v(vMB0+1)}, {s}, 0")
    P(f"v_lshlrev_b32 {t}, 16, {v(vMB0+1)}")
    P(f"v_sub_f32 {t}, {s}, {t}")
    P(f"v_cvt_pk_bf16_f32 {v(vMB0)}, {s}, {t}")
    return ops

def stats_gather_ops(s, q):
    ops = []
    P = lambda txt: ops.append(lambda: A(txt))
    P(f"v_add_f32 {s}, {v(ACT+24)}, {v(ACT+30)}")
    P(f"v_add_f32 {q}, {v(ACT+25)}, {v(ACT+31)}")
    for Q in range(1, 4):
        R = ACT + 32 * Q
        P(f"v_add_f32 {s}, {s}, {v(R+24)}")
        P(f"v_add_f32 {q}, {q}, {v(R+25)}")
        P(f"v_add_f32 {s}, {s}, {v(R+30)}")
        P(f"v_add_f32 {q}, {q}, {v(R+31)}")
    return ops

def add(fill, key, fn):
    old = fill.get(key)
    fill[key] = fn if old is None else (lambda: (old(), fn()))

def spread(ops, slots, per):
    fill = {}
    i = 0
    for sl in slots:
        chunk = ops[i:i + per]; i += per
        if chunk: fill[sl] = (lambda ch=chunk: [f() for f in ch])
    assert i >= len(ops), (i, len(ops))
    return fill

def scale_cvt(dst, acc, sc, n=8):
    reg, sel = sc
    for i in range(n):
        A(f"v_pk_mul_f32 {v(acc+2*i,2)}, {v(acc+2*i,2)}, {v(reg,2)} op_sel:[0,{sel}] op_sel_hi:[1,{sel}]")
    for i in range(n):
        A(f"v_cvt_pk_bf16_f32 {v(dst+i)}, {v(acc+2*i)}, {v(acc+2*i+1)}")

def colsum_items(tiles, accs, nat):
    ones = 80
    def setup():
        for i in range(4): A(f"v_mov_b32 {v(ones+i)}, 0x3f803f80")
        A(f"v_add_u32 v84, {sW7}, {vN if nat else vL16}")
        A(f"v_add_u32 v85, {HIB}, v84")
        A(f"v_and_b32 v86, 31, {vLANE}")
        A(f"s_mul_i32 {sT1}, {sW}, 384")
        A(f"s_add_u32 {sT1}, {sT1}, {L_CS}")
        A(f"v_lshl_add_u32 v86, v86, 2, {sT1}")
    seq = [(i, t) for i in range(7) for t in tiles]
    offs = (L_K, L_V, L_Q)
    def rd(n):
        if n >= len(seq): return
        i, t = seq[n]
        base, off = ("v85", offs[t] - HIB) if offs[t] >= HIB else ("v84", offs[t])
        R = RING + 4 * (n % 8)
        if nat:
            A(f"ds_read_b64_tr_b16 {a(R,2)}, {base} offset:{off + i*1024}")
            A(f"ds_read_b64_tr_b16 {a(R+2,2)}, {base} offset:{off + i*1024 + 256}")
        else:
            A(f"ds_read_b128 {a(R,4)}, {base} offset:{off + i*1024}")
    def mm(n):
        i, t = seq[n]
        mfma(v(accs[t], 16), v(ones, 4), a(RING + 4 * (n % 8), 4), "0" if i == 0 else v(accs[t], 16))
    wr = [lambda t=t: A(f"ds_write_b32 v86, {v(accs[t])} offset:{128*t}") for t in tiles]
    return setup, rd, mm, len(seq), wr

def colsum_mfma(tiles, accs, nat):
    setup, rd, mm, n, wr = colsum_items(tiles, accs, nat)
    setup()
    for i in range(5): rd(i)
    for i in range(n):
        mm(i); rd(i + 5)
    return wr

def colsum_finish_ops(cs, tiles):
    ops = []
    P = lambda txt: ops.append(lambda: A(txt))
    P(f"v_and_b32 v84, 31, {vLANE}")
    P(f"v_lshlrev_b32 v84, 2, v84")
    P(f"v_add_u32 v84, {L_CS}, v84")
    for t in tiles:
        for w in range(4): P(f"ds_read_b32 {v(88+4*t+w)}, v84 offset:{384*w+128*t}")
    for t in tiles:
        r = 88 + 4 * t
        P(f"v_add_f32 {v(r)}, {v(r)}, {v(r+1)}")
        P(f"v_add_f32 {v(r+2)}, {v(r+2)}, {v(r+3)}")
        P(f"v_add_f32 {v(r)}, {v(r)}, {v(r+2)}")
        P(f"v_cvt_pk_bf16_f32 {v(r+1)}, {v(r)}, {v(r)}")
        P(f"v_and_b32 {v(r+2)}, 0xffff0000, {v(r+1)}")
        P(f"v_sub_f32 {v(r+2)}, {v(r)}, {v(r+2)}")
        P(f"v_cvt_pk_bf16_f32 {v(r+2)}, {v(r+2)}, 0")
        P(f"v_accvgpr_write_b32 {a(cs+2*t)}, {v(r+1)}")
        P(f"v_accvgpr_write_b32 {a(cs+2*t+1)}, {v(r+2)}")
    return ops

def phi(P, E, dp, dm, T, after=None, mid=None):
    mx, nm, t0, t1 = v(T), v(T + 1), v(T + 2), v(T + 3)
    A(f"v_max3_f32 {mx}, {v(P)}, {v(P+1)}, {v(P+2)}")
    A(f"v_max3_f32 {nm}, -{v(P)}, -{v(P+1)}, -{v(P+2)}")
    for i in range(3, 13, 2):
        A(f"v_max3_f32 {mx}, {mx}, {v(P+i)}, {v(P+i+1)}")
        A(f"v_max3_f32 {nm}, {nm}, -{v(P+i)}, -{v(P+i+1)}")
    A(f"v_max_f32 {mx}, {mx}, {v(P+13)}")
    A(f"v_max_f32_e64 {nm}, {nm}, -{v(P+13)}")
    A(f"v_permlane32_swap_b32 {mx}, {nm}")
    A(f"v_max_f32 {nm}, {mx}, {nm}")
    A(f"v_mov_b32 {mx}, {nm}")
    A(f"v_permlane32_swap_b32 {mx}, {nm}")
    for i in range(7):
        A(f"v_pk_add_f32 {v(E+2*i,2)}, {v(P+2*i,2)}, {v(T,2)} op_sel:[0,0] op_sel_hi:[1,0] neg_lo:[0,1] neg_hi:[0,1]")
        A(f"v_pk_add_f32 {v(P+2*i,2)}, {v(P+2*i,2)}, {v(T,2)} op_sel:[0,1] op_sel_hi:[1,1] neg_lo:[1,1] neg_hi:[1,1]")
    for i in range(14):
        A(f"v_exp_f32 {v(E+i)}, {v(E+i)}")
        A(f"v_exp_f32 {v(P+i)}, {v(P+i)}")
    if mid: mid()
    A(f"v_pk_add_f32 {v(T,2)}, {v(E,2)}, {v(E+2,2)}")
    A(f"v_pk_add_f32 {v(T+2,2)}, {v(P,2)}, {v(P+2,2)}")
    for i in range(2, 7):
        A(f"v_pk_add_f32 {v(T,2)}, {v(T,2)}, {v(E+2*i,2)}")
        A(f"v_pk_add_f32 {v(T+2,2)}, {v(T+2,2)}, {v(P+2*i,2)}")
    A(f"v_add_f32 {mx}, {mx}, {nm}")
    A(f"v_add_f32 {nm}, {t0}, {t1}")
    A(f"v_mov_b32 {v(dp+7)}, 0")
    A(f"v_permlane32_swap_b32 {mx}, {nm}")
    A(f"v_add_f32 {nm}, {mx}, {nm}")
    A(f"v_rcp_f32 {nm}, {nm}")
    A(f"v_mov_b32 {v(dm+7)}, 0")
    A(f"v_mov_b32 {mx}, {nm}")
    A(f"v_permlane32_swap_b32 {mx}, {nm}")
    scale_cvt(dp, E, (T, 0), 7)
    if after: after(0)
    scale_cvt(dm, P, (T, 1), 7)
    if after: after(1)

def publish_act(F, buf):
    A(f"s_add_u32 {sT1}, {sPUB}, {WS_ACT + buf * (2 << 20)}")
    A(f"buffer_store_dwordx4 {v(F,4)}, {vL16}, {WS}, {sT1} offen sc1")
    A(f"buffer_store_dwordx4 {v(F+4,4)}, {vL16}, {WS}, {sT1} offen offset:1024 sc1")

def normalize_publish(D, buf, eps, pre=None, T=104, F=96):
    A(f"s_add_u32 {sT1}, {sPUB}, {WS_ACT + buf * (2 << 20)}")
    A(f"s_sub_u32 {sT2}, {sT1}, 4096")
    A(f"v_mov_b32 {v(T)}, {v(D+12)}")
    A(f"v_mov_b32 {v(T+1)}, {v(D+12)}")
    A(f"v_permlane32_swap_b32 {v(T)}, {v(T+1)}")
    if eps: A(f"v_add_f32 {v(T+1)}, {fbits(eps)}, {v(T+1)}")
    if pre: pre(v(T + 1))
    A(f"v_rcp_f32 {v(T)}, {v(T+1)}")
    scale_cvt(F, D, (T, 0), 8)
    A(f"buffer_store_dwordx4 {v(F,4)}, {vL16}, {WS}, {sT1} offen sc1")
    exec_set(sLO)
    A(f"buffer_store_dwordx4 {v(F+4,4)}, {vL16}, {WS}, {sT1} offen offset:1024 sc1")
    exec_set(sHI)
    A(f"buffer_store_dwordx2 {v(F+4,2)}, {vGO}, {WS}, {sT2} offen offset:1536 sc1")
    exec_set("-1")

rowc, colc = [0], [0]
def arrive_row(pre=()):
    pre = list(pre)
    if "pre" not in OPT:
        if "noretarr" not in OPT:
            A("s_waitcnt vmcnt(0)")
            A.wait_regs(sPOLL)
            A(f"s_mov_b32 {sPOLL}, 1")
            A(f"s_atomic_add {sPOLL}, {sROWC}, 0 glc")
        else:
            arrive(sROWC, 0)
        rowc[0] += 16
        for f in pre: f()
        return
    for f in pre: f()
    arrive(sROWC, len(pre)); rowc[0] += 16
    if "ackst" in OPT: stamp("  acked")
    A.wait_regs(sPOLL)
    poll_issue(sROWC)
def arrive_col(n=0): arrive(sCOLC, n); colc[0] += 16
def wait_row():
    if "noretarr" not in OPT: wait_ctr(sROWC, rowc[0], True, 1)
    else: wait_ctr(sROWC, rowc[0], "pre" in OPT)
def wait_col(issued=False): wait_ctr(sCOLC, colc[0], issued)

def prologue():
    A.raw(f"""; @launch grid=(256,1,1) block=(256,1,1) lds={LDS_BYTES}
.amdgcn_target "amdgcn-amd-amdhsa--gfx950"
.text
.globl {NAME}_kernel
.p2align 8
.type {NAME}_kernel,@function
{NAME}_kernel:""")
    A("s_cmp_ge_u32 s2, 256")
    A("s_cbranch_scc1 L_end")
    A("s_load_dwordx16 s[4:19], s[0:1], 0")
    A("s_load_dwordx4 s[20:23], s[0:1], 64")
    A("s_getpc_b64 s[56:57]")
    A("s_and_b32 s56, s56, 0xffffff00")
    A("s_and_b32 s57, s57, 0xffff")
    A(f"s_mov_b32 s58, L_code_end-{NAME}_kernel")
    A("s_mov_b32 s59, 0x20000")
    A("v_lshrrev_b32 v1, 6, v0")
    A(f"v_readfirstlane_b32 {sW}, v1")
    A("v_and_b32 v0, 63, v0")
    A(f"s_lshr_b32 s89, s2, 3\n s_lshl_b32 s89, s89, 2\n s_add_u32 s89, s89, {sW}\n s_mul_i32 s89, s89, 640")
    A("v_lshlrev_b32 v2, 7, v0")
    A("s_mov_b64 exec, 31")
    A(f"buffer_load_dword v250, v2, {CODE}, s89 offen")
    A("s_mov_b64 exec, -1")
    if STAMPS: A("v_mov_b32 v125, 0")
    stamp("start")
    if OPT.get("map", "2") == "0":
        A("s_and_b32 s89, s2, 7")
        A("s_lshl_b32 s89, s89, 1")
        A("s_bfe_u32 s90, s2, 0x10003")
        A(f"s_add_u32 {sR}, s89, s90")
        A(f"s_lshr_b32 {sH}, s2, 4")
    elif OPT.get("map", "2") == "2":
        A("s_bfe_u32 s89, s2, 0x20001\n s_lshl_b32 s89, s89, 2\n s_bfe_u32 s90, s2, 0x20003")
        A(f"s_add_u32 {sR}, s89, s90")
        A("s_and_b32 s89, s2, 1\n s_lshl_b32 s89, s89, 3\n s_lshr_b32 s90, s2, 5")
        A(f"s_add_u32 {sH}, s89, s90")
    elif OPT["map"] == "3":
        A("s_bfe_u32 s89, s2, 0x10002\n s_lshl_b32 s89, s89, 3\n s_bfe_u32 s90, s2, 0x30003")
        A(f"s_add_u32 {sR}, s89, s90")
        A("s_and_b32 s89, s2, 3\n s_lshl_b32 s89, s89, 2\n s_lshr_b32 s90, s2, 6")
        A(f"s_add_u32 {sH}, s89, s90")
    A(f"s_mov_b32 {sBUD}, 0x40000")
    A(f"s_mov_b32 {sONE}, 1")
    A(f"s_mov_b32 {sC10}, 0x00003f80")
    A(f"s_mov_b32 {sC01}, 0x3f800000")
    A("s_mov_b32 s80, 0\n s_mov_b32 s81, -1\n s_mov_b32 s82, -1\n s_mov_b32 s83, 0")
    A("s_mov_b32 s84, 0xf0000000\n s_mov_b32 s85, 0xf0000000")
    A(f"s_bitcmp1_b32 {sH}, 0")
    A(f"s_cselect_b64 {sEVEN}, 0, {sHI}")
    A(f"s_lshl_b32 s89, {sR}, 2\n s_add_u32 s89, s89, {sW}")
    A(f"s_lshl_b32 s90, {sH}, 2\n s_add_u32 s90, s90, {sW}")
    A(f"s_lshl_b32 {sACT}, s89, 15")
    A(f"s_lshl_b32 s91, {sH}, 11\n s_add_u32 {sPUB}, {sACT}, s91")
    A(f"s_lshl_b32 {sKV}, s90, 16")
    A(f"s_lshl_b32 {sKVP}, s90, 14")
    A(f"s_mul_i32 {sW7}, {sW}, 7168")
    A(f"s_mul_i32 {sIMG}, {sH}, 114688\n s_add_u32 {sIMG}, {sIMG}, {sW7}\n s_add_u32 {sIMG}, {sIMG}, {WS_IMG}")
    A(f"v_lshlrev_b32 {vL16}, 4, {vLANE}")
    A(f"v_lshrrev_b32 v83, 3, {vLANE}")
    A(f"v_and_b32 v84, 7, {vLANE}")
    A(f"v_lshrrev_b32 v85, 1, v83")
    A(f"v_xor_b32 v84, v84, v85")
    A(f"v_mul_u32_u24 v83, 896, v83")
    A(f"v_lshl_add_u32 v88, v84, 4, v83")
    A(f"v_xor_b32 v89, 64, v88")
    A(f"s_mul_i32 s92, {sH}, 56")
    A(f"v_lshrrev_b32 v83, 2, {vLANE}")
    A(f"v_and_b32 v84, 3, {vLANE}")
    A(f"v_lshl_add_u32 v84, v84, 4, s92")
    A(f"v_mul_u32_u24 {vWD}, 2688, v83")
    A(f"v_add_u32 {vWD}, {vWD}, v84")
    A(f"v_mul_u32_u24 v87, 896, v83")
    A(f"v_add_u32 v87, v87, v84")
    A(f"s_mul_i32 s72, s89, 28672")
    A(f"s_mul_i32 s73, {sW}, 26624\n s_add_u32 s73, s73, {L_Q}")
    A(f"s_mul_i32 s74, {sH}, 6\n s_lshr_b32 s74, s74, 4")
    A("s_waitcnt lgkmcnt(0)")
    stamp("kernargs")
    def srd(n, p, size):
        A(f"s_mov_b32 s{n}, s{p}\n s_and_b32 s{n+1}, s{p+1}, 0xffff\n s_mov_b32 s{n+2}, {size}\n s_mov_b32 s{n+3}, 0x20000")
    srd(24, 4, 1835008); srd(52, 22, WS_END)
    A(f"s_or_b32 s91, s2, {sW}")
    A("s_cmp_lg_u32 s91, 0")
    A("s_cbranch_scc1 L_noinit")
    vm_save = list(A.vm)
    A(f"v_lshlrev_b32 v84, 7, {vLANE}")
    A("v_mov_b32 v85, 0")
    A(f"buffer_store_dword v85, v84, {WS}, 0 offen sc1")
    A("v_add_u32 v84, 8192, v84")
    A(f"buffer_store_dword v85, v84, {WS}, 0 offen sc1")
    A.settle()
    A.label("L_noinit")
    A.vm = vm_save
    pend = []
    real_A = A.emit
    def defer(fn):
        A.emit = lambda text: pend.append(text)
        fn()
        A.emit = real_A
    def drain(n):
        for _ in range(n):
            if pend: real_A(pend.pop(0))
    defer(lambda: lane_consts(srd))
    defer(coop_prepare)
    def xdma(rg, soff):
        A(f"buffer_load_dwordx4 v{88 + (rg >> 1)}, {X}, {soff} offen lds")
    srd(28, 6, 1204224)
    for c in range(6):
        A("s_lshl_b32 s75, s74, 7\n s_add_u32 s75, s75, s72\n s_lshl_b32 s76, s74, 12\n s_add_u32 s76, s76, s73")
        for rg in range(4):
            A(f"s_add_u32 m0, s76, {1024 * rg}")
            if rg: A(f"s_add_u32 s75, s75, 7168")
            xdma(rg, "s75")
        A("s_add_u32 s74, s74, 1\n s_cmp_eq_u32 s74, 6\n s_cselect_b32 s74, 0, s74")
    for rg in range(2):
        A(f"s_add_u32 m0, s73, {24576 + 1024 * rg}")
        A(f"s_add_u32 s75, s72, {768 + 7168 * rg}")
        xdma(rg, "s75")
    global XMARK, WDMA
    XMARK = len(A.vm)
    A(f"s_mul_i32 s74, {sR}, 7\n s_lshr_b32 s74, s74, 4")
    A(f"s_and_b32 s77, {sR}, 1")
    WDMA = []
    for t in range(2):
        for i in range(7):
            def f(t=t, i=i):
                if i == 0:
                    A(f"s_xor_b32 s78, s77, {t}")
                    A(f"s_mul_i32 s76, s78, 28672\n s_add_u32 s76, s76, {sW7}")
                    A(f"s_mul_i32 s78, s78, 896\n s_mul_i32 s79, {sW}, {7 * 16 * 2688}\n s_add_u32 s78, s78, s79\n s_add_u32 s78, s78, 896")
                A("s_lshl_b32 s75, s74, 10\n s_add_u32 m0, s75, s76")
                A(f"s_mul_i32 s75, s74, {16 * 2688}\n s_add_u32 s75, s75, s78")
                A(f"buffer_load_dwordx4 {vWD}, {WA}, s75 offen lds")
                A("s_add_u32 s74, s74, 1\n s_cmp_eq_u32 s74, 7\n s_cselect_b32 s74, 0, s74")
            WDMA.append(f)
    NW0 = int(OPT.get("nw0", 6))
    for _ in range(NW0): WDMA.pop(0)()
    drain(10 ** 6)
    if "nowarm" not in OPT:
        A("v_mov_b32 v123, 0\n v_mov_b32 v87, 0")
        A("s_mov_b64 vcc, 0")
        A("s_branch L_page_base")
        A.raw(".p2align 12")
        A.label("L_page_base")
    stamp("loads issued")

def page_walk(first, ret):
    if "nowarm" in OPT: return
    A.settle()
    A("s_mov_b64 vcc, -1")
    for w in range(3):
        A(f"s_cmp_eq_u32 {sW}, {w}")
        A(f"s_cbranch_scc1 L_page_{first + w}")
    A(f"s_branch L_page_{first + 3}")
    A.label(ret)
    A("s_mov_b64 vcc, 0")

def lane_consts(srd):
    srd(32, 8, 25088); srd(36, 10, 401408); srd(40, 14, 1204224); srd(44, 16, 401408); srd(48, 18, 1835008)
    A(f"s_lshl_b32 s91, s89, 7\n s_add_u32 s64, s22, s91\n s_addc_u32 s65, s23, 0")
    A(f"s_lshl_b32 s91, s90, 7\n s_add_u32 s91, s91, 8192\n s_add_u32 s66, s22, s91\n s_addc_u32 s67, s23, 0")
    A(f"v_and_b32 v80, 31, {vLANE}")
    A(f"v_lshrrev_b32 v81, 5, {vLANE}")
    A(f"v_lshrrev_b32 v83, 3, v80")
    A(f"v_and_b32 v84, 3, v80")
    A(f"v_lshl_add_u32 v83, v83, 2, v84")
    A(f"v_bfe_u32 v84, v80, 2, 1")
    A(f"v_mad_u32_u24 v84, v84, 14, v83")
    A(f"s_lshl_b32 s91, {sW}, 11\n s_add_u32 s91, s91, {L_QX}")
    A(f"v_lshl_add_u32 v84, v84, 1, s91")
    A(f"v_mul_u32_u24 v85, 224, v81")
    A(f"v_add_u32 v100, v84, v85")
    A(f"v_cmp_lt_u32 s[16:17], 13, v83")
    A(f"s_lshl_b32 s91, s89, 5")
    A(f"v_add_u32 v82, s91, v80")
    A(f"v_mul_u32_u24 v82, 896, v82")
    A(f"v_lshl_add_u32 {vXO}, v81, 3, v82")
    A(f"v_add_u32 {vXO}, s92, {vXO}")
    A(f"v_and_b32 v83, 15, {vLANE}")
    A(f"v_lshrrev_b32 v84, 2, v83")
    A(f"v_lshlrev_b32 v84, 6, v84")
    A(f"v_and_b32 v83, 3, v83")
    A(f"v_lshl_add_u32 v84, v83, 3, v84")
    A(f"v_bfe_u32 v83, {vLANE}, 4, 1")
    A(f"v_lshl_add_u32 v84, v83, 5, v84")
    A(f"v_lshl_add_u32 {vN}, v81, 9, v84")
    A(f"v_add_u32 {vNH}, {HIB}, {vN}")
    A(f"v_add_u32 {vLH}, {HIB}, {vL16}")
    A(f"v_lshlrev_b32 v83, 3, v80")
    A(f"v_lshl_add_u32 {vGO}, v81, 12, v83")
    A(f"v_lshlrev_b32 v83, 4, v80")
    A(f"v_lshl_add_u32 {vGX}, v81, 11, v83")
    A(f"v_lshl_add_u32 {vGM}, v81, 12, v83")
    A(f"v_add_u32 {vLS}, {L_SC}, {vL16}")
    A(f"s_lshl_b32 s91, {sW}, 5")
    A(f"v_add_u32 v83, s91, v80")
    A(f"v_mul_u32_u24 v83, 200, v83")
    A(f"v_lshl_add_u32 v83, v81, 3, v83")
    A(f"v_add_u32 {vPHW}, {L_PHI}, v83")
    A(f"v_and_b32 v82, 15, {vLANE}")
    A(f"v_lshrrev_b32 v83, 2, v82")
    A(f"v_lshrrev_b32 v84, 4, {vLANE}")
    A(f"v_lshl_add_u32 v83, v84, 3, v83")
    A(f"v_mul_u32_u24 v83, 200, v83")
    A(f"v_and_b32 v85, 3, v82")
    A(f"v_lshl_add_u32 v83, v85, 3, v83")
    A(f"v_add_u32 {vPHB}, {L_PHI}, v83")
    A(f"v_add_u32 {vPHA}, s91, {vPHB}")
    A(f"v_and_b32 v83, 1, v84")
    A(f"v_lshlrev_b32 v83, 9, v83")
    A(f"v_lshrrev_b32 v84, 1, v84")
    A(f"v_lshl_add_u32 v83, v84, 3, v83")
    A(f"v_lshl_add_u32 v83, v82, 4, v83")
    A(f"s_lshl_b32 s91, {sW}, 10\n s_add_u32 s91, s91, {L_KVI}")
    A(f"v_add_u32 {vKVW}, s91, v83")
    A(f"v_bfe_u32 v82, v80, 1, 2")
    A(f"v_lshrrev_b32 v83, 4, v80")
    A(f"v_lshl_add_u32 v82, v83, 2, v82")
    A(f"v_xor_b32 v82, v82, v81")
    A(f"v_lshlrev_b32 v84, 7, v80")
    A(f"v_add_u32 v84, s73, v84")
    A(f"v_mul_u32_u24 v83, 26624, v83")
    A(f"v_sub_u32 v83, 24576, v83")
    A(f"v_xor_b32 v6, v82, v81")
    for g_ in range(4):
        A(f"v_lshl_add_u32 v85, v81, 3, s92")
        A(f"v_add_u32 v85, {16 * g_}, v85")
        A(f"v_lshrrev_b32 v7, 7, v85")
        A(f"v_bfe_u32 v98, v85, 4, 3")
        A(f"v_xor_b32 v98, v98, v6")
        A(f"v_lshl_add_u32 v98, v98, 4, v84")
        A(f"v_and_b32 v85, 8, v85")
        A(f"v_add_u32 v98, v98, v85")
        A(f"v_lshl_add_u32 {v(104 + g_)}, v7, 12, v98")
        A(f"v_add_u32 v98, v98, v83")
        A(f"v_cmp_eq_u32 {sM}, 6, v7")
        A(f"v_cndmask_b32 {v(108 + g_)}, 0, v98, {sM}")
        A(f"v_cmp_gt_u32 {sM}, 6, v7")
        A(f"v_cndmask_b32 {v(104 + g_)}, 0, {v(104 + g_)}, {sM}")
    for u in range(4):
        A(f"v_xor_b32 v85, {2 * u}, v82")
        A(f"v_lshl_add_u32 v{90 + u}, v85, 4, v84")
        A(f"v_add_u32 v{94 + u}, v{90 + u}, v83")

def wphi_dma():
    A(f"s_lshl_b32 {sT1}, {sW}, 11\n s_add_u32 m0, {sT1}, {L_QX}")
    A(f"s_mul_i32 {sT1}, {sH}, 1568")
    A(f"buffer_load_dwordx4 {vL16}, {WPHI}, {sT1} offen lds")
    A(f"buffer_load_dwordx4 {vL16}, {WPHI}, {sT1} offen offset:1024 lds")

def wphi_ops():
    ops = []
    P = lambda txt: ops.append(lambda: A(txt))
    for u in range(2):
        for e in range(8):
            d0 = 16 * u + 8 * (e >> 2) + (e & 3)
            P(f"ds_read_u16 {v(104+8*u+e)}, v100 offset:{56*d0}")
    for i in range(8):
        P(f"v_lshl_or_b32 {v(104+2*i)}, {v(105+2*i)}, 16, {v(104+2*i)}")
        P(f"v_cndmask_b32 {v(104+2*i)}, {v(104+2*i)}, 0, s[16:17]")
        if i >= 6: P(f"v_cndmask_b32 {v(104+2*i)}, {v(104+2*i)}, 0, {sHI}")
        P(f"v_accvgpr_write_b32 {a(WP+i)}, {v(104+2*i)}")
    return ops

COOP_REGS = [64, 68, 72, 76, 240, 244]
def coop_prepare():
    A(f"s_add_u32 s10, {sR}, 16\n s_sub_u32 s11, {sR}, 5")
    A("v_mov_b32 v99, 0x40000000")
    A(f"v_lshrrev_b32 v6, 5, {vLANE}")
    A(f"v_bfe_u32 v7, {vLANE}, 4, 1")
    A(f"v_bfe_u32 v82, {vLANE}, 2, 2")
    A(f"v_and_b32 v83, 3, {vLANE}")
    A(f"s_mul_i32 {sT1}, {sH}, 56")
    A(f"v_lshl_add_u32 v83, v83, 4, {sT1}")
    for kk, (n, lim, stride) in enumerate(((sR, None, 2688), ("s10", 21, 2688), ("s11", 7, 896))):
        if kk < 2:
            A(f"s_mul_i32 {sT2}, {n}, 37\n s_lshr_b32 {sT2}, {sT2}, 8")
            A(f"s_mul_i32 {sT1}, {sT2}, 7\n s_sub_u32 s15, {n}, {sT1}")
            A(f"s_add_u32 {sT3}, {sT2}, 1\n s_cmp_eq_u32 {sT2}, 2\n s_cselect_b32 {sT3}, 0, {sT3}\n s_mul_i32 s{4 + kk}, {sT3}, 896")
            A(f"s_mul_i32 {sT2}, {sT2}, {28672 - 7168}\n s_lshl_b32 {sT1}, {n}, 10\n s_add_u32 {sT1}, {sT1}, {sT2}")
            A(f"s_add_u32 s{7 + kk}, {sT1}, {sIMG}")
        else:
            A(f"s_and_b32 s15, {n}, 7")
            A(f"s_lshl_b32 {sT1}, s15, 10\n s_add_u32 {sT1}, {sT1}, {3 * 28672}\n s_add_u32 s9, {sT1}, {sIMG}")
        A(f"s_mul_i32 {sT1}, s15, 7\n s_mov_b32 {sT2}, 1\n s_mov_b32 {sT3}, 2")
        A(f"s_mul_i32 s18, s15, 14\n s_sub_u32 s18, s18, 52")
        A(f"s_cmp_ge_u32 s15, 4\n s_cselect_b32 {sT1}, s18, {sT1}\n s_cselect_b32 {sT2}, 7, {sT2}")
        A(f"s_cmp_ge_u32 s15, 6\n s_cselect_b32 {sT1}, 5, {sT1}\n s_cselect_b32 {sT2}, 14, {sT2}\n s_cselect_b32 {sT3}, 7, {sT3}")
        A(f"s_mul_i32 s18, {sW}, 28\n s_add_u32 {sT1}, {sT1}, s18")
        A(f"v_mul_u32_u24 v84, {sT2}, v6")
        A(f"v_mad_u32_u24 v84, v7, {sT3}, v84")
        A(f"v_add_u32 v84, {sT1}, v84")
        A(f"v_lshl_add_u32 v84, v84, 2, v82")
        A(f"v_mul_u32_u24 v84, {stride}, v84")
        A(f"v_add_u32 {v(248 + kk)}, v84, v83")
        if lim:
            A(f"s_cmp_lt_u32 {n}, {lim}\n s_cselect_b64 {sM}, -1, 0\n s_cselect_b32 s{7 + kk}, s{7 + kk}, 0")
            if kk == 1: A("s_cselect_b32 s5, s5, 0")
            A(f"v_cndmask_b32 {v(248 + kk)}, v99, {v(248 + kk)}, {sM}")
            A(f"v_cndmask_b32 {v(251 + 2 * kk)}, v99, {vL16}, {sM}")
    A("s_mov_b32 s6, 0")
    for k in range(3): A(f"s_add_u32 s{12 + k}, s{7 + k}, {16 * 114688}")
    A(f"s_mul_i32 s15, {sW}, 6144\n s_add_u32 s15, s15, {L_WO}")
    A(f"v_add_u32 v252, s15, {vN}")

def coop_ops():
    lo, rd, st = [], [], []
    for st_set, (w_, wo_) in enumerate(((WA, WOA), (WB, WOB))):
        for k, (srd_, vs) in enumerate(((w_, vL16), (w_, "v253"), (wo_, "v255"))):
            n = 3 * st_set + k
            reg = COOP_REGS[n]
            lo.append(lambda srd_=srd_, k=k, n=n: A(f"s_add_u32 m0, s15, {1024 * n}\n buffer_load_dwordx4 {v(248 + k)}, {srd_}, s{4 + k} offen lds"))
            rd.append(lambda reg=reg, n=n: A(f"ds_read_b64_tr_b16 {v(reg,2)}, v252 offset:{1024 * n}\n ds_read_b64_tr_b16 {v(reg+2,2)}, v252 offset:{1024 * n + 256}"))
            so = f"s{(12 if st_set else 7) + k}"
            st.append(lambda reg=reg, vs=vs, so=so: A(f"buffer_store_dwordx4 {v(reg,4)}, {vs}, {WS}, {so} offen sc1"))
    return lo, rd, st

def p1():
    nyoung = len(A.vm) - XMARK
    A(f"s_waitcnt vmcnt({nyoung})")
    A(f"s_or_b32 {sT1}, s2, {sW}")
    A(f"s_cmp_lg_u32 {sT1}, 0")
    A("s_cbranch_scc1 L_noflag")
    A(f"s_atomic_add {sONE}, s[20:21], 0")
    A.label("L_noflag")
    stamp("x landed")
    def rd(c):
        for u in range(4):
            if c < 6: A(f"ds_read_b128 {v(ACT+16*c+4*u,4)}, v{90+u} offset:{4096*c}")
            else: A(f"ds_read_b128 {v(ACT+16*c+4*u,4)}, v{94+u}")
    def dots(c, between=None):
        for i in range(16 * c, 16 * c + 16):
            r = ACT + i
            A(f"v_dot2_f32_bf16 {v(32+(i&1))}, {v(r)}, {v(r)}, {'0' if i < 2 else v(32+(i&1))}")
            A(f"v_dot2_f32_bf16 {v(34+(i&1))}, {v(r)}, {sT0}, {'0' if i < 2 else v(34+(i&1))}")
            if between and i % 8 == 7 and between: between.pop(0)()
    A(f"s_mov_b32 {sT0}, 0x3f803f80")
    rd(0)
    for g_ in range(4): A(f"ds_read_b64 {v(112+2*g_,2)}, {v(104+g_)}")
    rd(1); rd(2)
    A.wait_regs(v(ACT, 16), v(112, 8))
    for rg in range(2, 4):
        A(f"s_add_u32 m0, s73, {1024 * (rg - 2)}")
        A(f"s_add_u32 {sT1}, s72, {768 + 7168 * rg}")
        A(f"buffer_load_dwordx4 v89, {X}, {sT1} offen lds")
    xl = len(A.vm)
    for c in range(6):
        dots(c, WDMA)
        if c + 3 < 6: rd(c + 3)
    while WDMA: WDMA.pop(0)()
    A(f"s_waitcnt vmcnt({len(A.vm) - xl})")
    rd(6)
    for g_ in range(4): A(f"ds_read_b64 {v(64+2*g_,2)}, {v(108+g_)}")
    dots(6)
    A("v_add_f32 v120, v34, v35")
    A("v_add_f32 v121, v32, v33")
    for f in stats_finish_ops("v120", "v121", "v122"): f()
    for i in range(8):
        if i % 2 == 0: A(f"v_cmp_ne_u32 {sM}, 0, {v(108+i//2)}")
        A(f"v_cndmask_b32 {v(112+i)}, {v(112+i)}, {v(64+i)}, {sM}")
        A(f"v_lshlrev_b32 {v(Y+2*i)}, 16, {v(112+i)}")
        A(f"v_and_b32 {v(Y+2*i+1)}, 0xffff0000, {v(112+i)}")
    page_walk(0, "L_page_ret0")
    A("s_waitcnt vmcnt(0)")
    A("s_barrier")
    stamp("W landed")
    lo, crd, st = coop_ops()
    wphi_dma()
    for f in lo: f()
    A("v_mov_b32 v87, 0")
    A(f"global_load_dword v123, v87, s[20:21] sc1")
    wr = colsum_mfma((0, 1), (AK, AV), True)
    for f in wr: f()
    stamp("colsum")
    g = Gemm(ksteps_nat(), [(AK, L_K, True, "0"), (AV, L_V, True, "0")])
    dq = dma_direct_q()
    ops = [lambda: A("s_waitcnt lgkmcnt(0)\n s_barrier")] + colsum_finish_ops(CSA, (0, 1))
    fill = spread(ops, [(s, 1) for s in range(1, 9)], 4)
    DQ = int(OPT.get("dq", 3))
    for n, f in enumerate(dq): add(fill, (1 + DQ * n, 0), f)
    nq = lambda s_: sum(1 for n in range(7) if 1 + DQ * n <= s_)
    ops = [lambda: A(f"s_waitcnt vmcnt({nq(9) + 7})")] + wphi_ops()
    for k_, f in spread(ops, [(s, 1) for s in range(9, 26)], 3).items(): add(fill, k_, f)
    add(fill, (20, 0), lambda: A(f"s_waitcnt vmcnt({nq(20)})"))
    for n, f in enumerate(crd): add(fill, (20 + n // 2, 0), f)
    for n, f in enumerate(st): add(fill, (23 + n // 2, 0), f)
    fill[(27, 0)] = lambda: rank1(AK, CSA, True)
    g.run(fill, tail=2)
    rank1(AV, CSA + 2, True)
    stamp("p1 gemm")
    L = lab("init")
    A(f"v_readfirstlane_b32 {sT0}, v123")
    A(f"s_cmp_lg_u32 {sT0}, 0")
    A(f"s_cbranch_scc1 {L}_go")
    vm_save = list(A.vm)
    A("v_mov_b32 v80, 0")
    A.label(L)
    A(f"global_load_dword v123, v80, s[20:21] sc1")
    A(f"s_sub_u32 {sBUD}, {sBUD}, 1")
    A(f"s_cbranch_scc1 {L}_to")
    A(f"v_readfirstlane_b32 {sT0}, v123")
    A(f"s_cmp_eq_u32 {sT0}, 0")
    A(f"s_cbranch_scc1 {L}")
    A(f"s_branch {L}_go")
    A.label(L + "_to")
    A(f"s_mov_b32 {sBUD}, 0")
    A("s_waitcnt vmcnt(0)")
    A.label(L + "_go")
    A.vm = vm_save

def qkv_act(buf, cs, v_tr):
    g = Gemm(ksteps_act(), [(AK, L_K, True, "0"), (AV, L_V, v_tr, "0")])
    gather_setup(buf)
    g.prefetch()
    wait_row()
    stamp("y ready")
    loads = gather(True)
    ops = stats_gather_ops("v120", "v121") + stats_finish_ops("v120", "v121", "v122")
    ops.append(lambda: rank1(AK, cs, True))
    ops.append(lambda: rank1(AV, cs + 2, v_tr))
    if not v_tr:
        ops.append(lambda: A(f"v_and_b32 v122, 31, {vLANE}"))
        ops.append(lambda: A(f"s_lshl_b32 {sT1}, {sW}, 7\n s_add_u32 {sT1}, {sT1}, {L_RS}"))
        ops.append(lambda: A(f"v_lshl_add_u32 v122, v122, 2, {sT1}"))
        ops.append(lambda: A(f"ds_write_b32 v122, {vRSTD}"))
        ops.append(lambda: A(f"v_lshrrev_b32 v122, 5, {vLANE}"))
        ops.append(lambda: A(f"v_lshl_add_u32 v122, v122, 4, {sT1}"))
        for gi in range(4):
            ops.append(lambda gi=gi: A(f"ds_read_b128 {v(104+4*gi,4)}, v122 offset:{32*gi}"))
        ops.append(lambda: A(f"v_and_b32 v123, 31, {vLANE}"))
        ops.append(lambda: A(f"v_cmp_eq_u32 {sM}, 28, v123"))
        ops.append(lambda: A(f"v_mov_b32 v123, 0x3f803f80"))
        ops.append(lambda: A(f"v_cndmask_b32 v123, 0, v123, {sM}"))
    fill = spread(ops, [(s, t) for s in range(int(OPT.get("lead", 6)) + 3, 26) for t in range(2)], 2)
    if "fine" in OPT: fill[(0, 1)] = lambda: stamp("  first")
    g.run(paced(loads, fill, int(OPT.get("ahead", 6)), int(OPT.get("dist", 10))), tail=2)

def a_rest(it):
    nat = it == 0
    stamp("A gemm done")
    A(f"v_mul_f32 v122, {fbits(LOG2E)}, {vRSTD}")
    scale_cvt(80, AK, (122, 0), 8)
    mfma(v(AQ, 16), a(WP, 4), v(80, 4), "0")
    for i in range(6): A(f"v_mul_f32 {v(AV+i)}, {v(AV+i)}, {vRSTD}")
    mfma(v(AQ, 16), a(WP + 4, 4), v(84, 4), v(AQ, 16))
    for i in range(6, 16): A(f"v_mul_f32 {v(AV+i)}, {v(AV+i)}, {vRSTD}")
    for i in range(8): A(f"v_cvt_pk_bf16_f32 {v(104+i)}, {v(AV+2*i)}, {v(AV+2*i+1)}")
    exec_set(sHI)
    A("v_mov_b32 v110, 0x00003f80\n v_mov_b32 v111, 0")
    exec_set("-1")
    for gi in range(4): A(f"ds_write_b64 {vPHW}, {v(104+2*gi,2)} offset:{128+16*gi}")
    if "fine" in OPT: stamp("  v written")
    phi(AQ, 88, 104, 112, 120, lambda sg: [A(f"ds_write_b64 {vPHW}, {v(104+8*sg+2*gi,2)} offset:{64*sg+16*gi}") for gi in range(4)])
    A(f"s_lshl_b32 {sT1}, {sR}, 10")
    A(f"s_add_u32 {sT1}, {sT1}, {sKVP}")
    A(f"s_add_u32 {sT1}, {sT1}, {WS_KVP + it * (1 << 20)}")
    A("s_waitcnt vmcnt(0) lgkmcnt(0)" if nat else "s_waitcnt lgkmcnt(0)")
    if "fine" in OPT: stamp("  phi written")
    A("s_barrier")
    if "fine" in OPT: stamp("  barrier")
    def rd(tb):
        R = RING + 12 * tb
        for q in range(2): A(f"ds_read_b64_tr_b16 {a(R+2*q,2)}, {vPHA} offset:{(tb*32+4*q)*200}")
        for dt in range(2):
            for q in range(2): A(f"ds_read_b64_tr_b16 {a(R+4+4*dt+2*q,2)}, {vPHB} offset:{(tb*32+4*q)*200+128+32*dt}")
    rd(0); rd(1)
    for tb in range(4):
        R = RING + 12 * tb
        for dt in range(2):
            A(f"v_mfma_f32_16x16x32_bf16 {v(36+4*dt,4)}, {a(R,4)}, {a(R+4+4*dt,4)}, {'0' if tb == 0 else v(36+4*dt,4)}")
            if dt == 0 and tb + 2 < 4: rd(tb + 2)
    g = Gemm(ksteps_nat() if nat else ksteps_act(), [(AQ, L_Q, True, "0")])
    if not nat: g.prefetch()
    for i in range(4): A(f"v_cvt_pk_bf16_f32 {v(44+i)}, {v(36+2*i)}, {v(37+2*i)}")
    A(f"buffer_store_dwordx4 {v(44,4)}, {vL16}, {WS}, {sT1} offen sc1")
    stamp("kvp stored")
    ARR = int(OPT.get("arr", 14))
    if nat:
        for f in colsum_mfma((2,), (None, None, AV), True): f()
        ops = [lambda: A("s_waitcnt lgkmcnt(0)\n s_barrier")] + colsum_finish_ops(CSA, (2,))
        fill = spread(ops, [(s, 0) for s in range(12, 28)], 2)
        add(fill, (ARR - 8, 0), arrive_col)
    else:
        fill = {(ARR, 0): arrive_col}
    g.run(fill)
    if "fine" in OPT: stamp("  q gemm")
    rank1(AQ, CSA + 4, True)
    A(f"v_mul_f32 v122, {fbits(LOG2E)}, {vRSTD}")
    A(f"s_add_u32 {sG[0]}, {sKVP}, {WS_KVP + it * (1 << 20)}")
    for i in range(1, 4): A(f"s_add_u32 {sG[i]}, {sG[0]}, {4096*i}")
    scale_cvt(80, AQ, (122, 0), 8)
    mfma(v(AQ, 16), a(WP, 4), v(80, 4), "0")
    mfma(v(AQ, 16), a(WP + 4, 4), v(84, 4), v(AQ, 16))
    phi(AQ, 88, 104, 112, 120, None, lambda: poll_issue(sCOLC))
    stamp("phi_q done")
    wait_col(True)
    stamp("kvp ready")
    for r in range(16):
        A(f"buffer_load_dwordx4 {v(ACT+4*r,4)}, {vL16}, {WS}, {sG[r>>2]} offen offset:{1024*(r&3)} sc1")
    dm = dma_img(0, (3,)) if nat else []
    for r in range(16):
        for i in range(4):
            A(f"v_dot2_f32_bf16 {v(80+2*i)}, {v(ACT+4*r+i)}, {sC10}, {'0' if r == 0 else v(80+2*i)}")
            A(f"v_dot2_f32_bf16 {v(81+2*i)}, {v(ACT+4*r+i)}, {sC01}, {'0' if r == 0 else v(81+2*i)}")
        if r >= 8 and dm: dm.pop(0)()
        if "fine" in OPT and r in (0, 15): stamp("  kvp %d" % r)
    for i in range(4): A(f"v_cvt_pk_bf16_f32 {v(88+i)}, {v(80+2*i)}, {v(81+2*i)}")
    for dt in range(2): A(f"ds_write_b64 {vKVW}, {v(88+2*dt,2)} offset:{256*dt}")
    A("s_waitcnt lgkmcnt(0)")
    A("s_barrier")
    if "fine" in OPT: stamp("  kv barrier")
    for u in range(4): A(f"ds_read_b128 {a(WR+4*u,4)}, {vLS} offset:{L_KVI - L_SC + 1024*u}")
    for u in range(4): mfma(v(AK, 16), a(WR + 4 * u, 4), v(104 + 4 * u, 4), "0" if u == 0 else v(AK, 16))
    normalize_publish(AK, 4 * it + 0, 1e-6, None, T=120, F=88)
    stamp("o stored")
    arrive_row(dma_img(1, (0,)))
    if nat: A("s_barrier")
    for f in dma_img(1, (1, 2) if nat else (1,)): f()
    if nat: page_walk(4, "L_page_ret1")

def outproj(buf, last):
    g = Gemm(ksteps_act(), [(Y, L_WO, True, v(Y, 16))])
    if buf == 0:
        setup, rd, mm, n, wr = colsum_items((0, 1, 2), (AK, AV, AQ), False)
        setup()
    gather_setup(buf)
    g.prefetch()
    wait_row()
    stamp("o ready")
    fl = {(0, 0): lambda: stamp("  first"), (27, 0): lambda: stamp("  last")} if "fine" in OPT else {}
    if buf == 0:
        fl[(0, 0)] = lambda: (A("s_barrier"), [rd(i) for i in range(3)])
        for i in range(n): fl[(1 + i, 0)] = lambda i=i: (mm(i), rd(i + 3))
        fl[(25, 0)] = lambda: [f() for f in wr]
        fl[(27, 0)] = lambda: A("s_waitcnt lgkmcnt(0)")
    g.run(paced(gather(False), fl, int(OPT.get("ahead2", 10)), int(OPT.get("dist2", 12))))
    F = 88
    if last:
        for i in range(8): A(f"v_cvt_pk_bf16_f32 {v(F+i)}, {v(Y+2*i)}, {v(Y+2*i+1)}")
        for gi in range(3): A(f"buffer_store_dwordx2 {v(F+2*gi,2)}, {vXO}, {OUT}, 0 offen offset:{16*gi} {OPT.get('ost','').replace('+',' ')}")
        exec_set(sLO)
        A(f"buffer_store_dwordx2 {v(F+6,2)}, {vXO}, {OUT}, 0 offen offset:48 {OPT.get('ost','').replace('+',' ')}")
        exec_set("-1")
        return
    A(f"s_add_u32 {sT1}, {sPUB}, {WS_ACT + (buf + 1) * (2 << 20)}")
    for i in range(4): A(f"v_cvt_pk_bf16_f32 {v(F+i)}, {v(Y+2*i)}, {v(Y+2*i+1)}")
    A(f"buffer_store_dwordx4 {v(F,4)}, {vL16}, {WS}, {sT1} offen sc1")
    A(f"v_pk_add_f32 v[104:105], {v(Y,2)}, {v(Y+2,2)}")
    A(f"v_pk_mul_f32 v[106:107], {v(Y,2)}, {v(Y,2)}")
    A(f"v_pk_fma_f32 v[106:107], {v(Y+2,2)}, {v(Y+2,2)}, v[106:107]")
    for i in range(2, 8):
        if i == 6: exec_set(sLO)
        A(f"v_pk_add_f32 v[104:105], v[104:105], {v(Y+2*i,2)}")
        A(f"v_pk_fma_f32 v[106:107], {v(Y+2*i,2)}, {v(Y+2*i,2)}, v[106:107]")
    exec_set("-1")
    A("v_add_f32 v104, v104, v105")
    A("v_add_f32 v106, v106, v107")
    for i in range(4, 8): A(f"v_cvt_pk_bf16_f32 {v(F+i)}, {v(Y+2*i)}, {v(Y+2*i+1)}")
    A("v_permlane32_swap_b32 v105, v104")
    A("v_permlane32_swap_b32 v107, v106")
    exec_set(sHI)
    A(f"v_add_f32 {v(F+6)}, v104, v105")
    A(f"v_add_f32 {v(F+7)}, v106, v107")
    exec_set(sEVEN)
    A(f"v_swap_b32 {v(F+4)}, {v(F+6)}")
    A(f"v_swap_b32 {v(F+5)}, {v(F+7)}")
    exec_set("-1")
    A(f"buffer_store_dwordx4 {v(F+4,4)}, {vL16}, {WS}, {sT1} offen offset:1024 sc1")
    stamp("y stored")
    nxt = 1 - (buf >> 1) % 2
    arrive_row([] if buf == 0 else dma_img(nxt, (2,)))
    A("s_barrier")
    for f in dma_img(nxt, (3,)): f()

KF, VF, QF, O, S0, S1, P = 80, 88, 104, 128, 32, 48, 64
def qreg(j, i): return v(QF + 4 * i, 4) if j == 0 else a(QA + 8 * (j - 1) + 4 * i, 4)

def attention(it):
    last = it == 1
    stamp("B gemm done")
    scale_cvt(KF, AK, (124, 0), 8)
    exec_set(sHI)
    A(f"v_mov_b32 {v(KF+6)}, 0x3f803f80\n v_mov_b32 {v(KF+7)}, 0x00003f80")
    exec_set("-1")
    A(f"s_lshl_b32 {sT1}, {sR}, 12")
    A(f"s_add_u32 {sT1}, {sT1}, {sKV}")
    A(f"s_add_u32 {sT1}, {sT1}, {WS_KV + it * (4 << 20)}")
    A(f"buffer_store_dwordx4 {v(KF,4)}, {vL16}, {WS}, {sT1} offen sc1")
    A(f"buffer_store_dwordx4 {v(KF+4,4)}, {vL16}, {WS}, {sT1} offen offset:1024 sc1")
    for i in range(8): A(f"v_pk_mul_f32 {v(AV+2*i,2)}, {v(AV+2*i,2)}, {v(104+2*i,2)}")
    for i in range(8): A(f"v_cvt_pk_bf16_f32 {v(VF+i)}, {v(AV+2*i)}, {v(AV+2*i+1)}")
    exec_set(sONE28)
    for i in range(8): A(f"v_mov_b32 {v(VF+i)}, v123")
    exec_set("-1")
    A(f"buffer_store_dwordx4 {v(VF,4)}, {vL16}, {WS}, {sT1} offen offset:2048 sc1")
    A(f"buffer_store_dwordx4 {v(VF+4,4)}, {vL16}, {WS}, {sT1} offen offset:3072 sc1")
    stamp("kv stored")
    if it == 1: A("s_barrier")
    g = Gemm(ksteps_act(), [(AQ, L_Q, True, "0")])
    ops = []
    P_ = lambda txt: ops.append(lambda: A(txt))
    P_(f"s_lshl_b32 {sT1}, {sW}, 11\n v_add_u32 v112, {sT1}, {vLS}")
    for j in range(1, 4):
        P_(f"s_add_u32 {sT1}, {sW}, {j}\n s_and_b32 {sT1}, {sT1}, 3")
        P_(f"s_lshl_b32 {sT2}, {sT1}, 11\n v_add_u32 {v(112+j)}, {sT2}, {vLS}")
        P_(f"s_mul_i32 {sT2}, {sT1}, 12288\n v_add_u32 {v(116+j)}, {sT2}, {vL16}")
    P_(f"s_mul_i32 {sT2}, {sW}, 12288\n v_add_u32 v116, {sT2}, {vL16}")
    P_(f"s_lshl_b32 {sT2}, {sW}, 2\n s_add_u32 {sT2}, {sT2}, {L_VOTE}")
    P_(f"v_mov_b32 v120, {sT2}\n v_mov_b32 v121, {L_VOTE}")
    P_(f"s_add_u32 {sT3}, {sKV}, {WS_KV + it * (4 << 20)}\n v_add_u32 v123, {sT3}, {vL16}")
    fill = spread(ops, [(s, 0) for s in range(0, 16)], 1)
    add(fill, (16, 0), lambda: rank1(AQ, CSB + 4, True))
    add(fill, (int(OPT.get("arr", 14)), 0), arrive_col)
    g.run(fill)
    if "fine" in OPT: stamp("  q gemm")
    poll_issue(sCOLC)
    A(f"v_mul_f32 v122, {fbits(28 ** -0.5 * LOG2E)}, {vRSTD}")
    scale_cvt(QF, AQ, (122, 0), 8)
    exec_set(sHI)
    A(f"v_mov_b32 {v(QF+6)}, 0\n v_mov_b32 {v(QF+7)}, 0")
    exec_set("-1")
    mfma(v(S0, 16), v(KF, 4), v(QF, 4), "0")
    mfma(v(S0, 16), v(KF + 4, 4), v(QF + 4, 4), v(S0, 16))
    A(f"s_mov_b32 {sPASS}, 0")
    A(f"v_max3_f32 {vMX}, {v(S0)}, {v(S0+1)}, {v(S0+2)}")
    for i in range(3, 15, 2): A(f"v_max3_f32 {vMX}, {vMX}, {v(S0+i)}, {v(S0+i+1)}")
    A(f"v_max_f32 {vMX}, {vMX}, {v(S0+15)}")
    A(f"v_mov_b32 v72, {vMX}")
    A(f"v_permlane32_swap_b32 v72, {vMX}")
    A(f"v_max_f32 {vMX}, {vMX}, v72")
    A.settle()
    Lre = lab("attn")
    A.label(Lre)
    A(f"v_cvt_pk_bf16_f32 v72, -{vMX}, 0")
    A(f"v_lshlrev_b32 v73, 16, v72")
    A(f"v_sub_f32_e64 v73, -{vMX}, v73")
    A(f"v_cvt_pk_bf16_f32 v72, -{vMX}, v73")
    A(f"v_and_b32 v74, 0xffff0000, v72")
    A(f"v_sub_f32 v73, v73, v74")
    exec_set(sHI)
    A(f"v_mov_b32 {v(QF+6)}, v72")
    A(f"v_cvt_pk_bf16_f32 {v(QF+7)}, v73, 0")
    exec_set("-1")
    A(f"ds_write_b128 v112, {v(QF,4)} offset:{L_QX - L_SC}")
    A(f"ds_write_b128 v112, {v(QF+4,4)} offset:{L_QX - L_SC + 1024}")
    A("s_waitcnt lgkmcnt(0)")
    A("s_barrier")
    for j in range(1, 4):
        A(f"ds_read_b128 {qreg(j,0)}, {v(112+j)} offset:{L_QX - L_SC}")
        A(f"ds_read_b128 {qreg(j,1)}, {v(112+j)} offset:{L_QX - L_SC + 1024}")
    A(f"s_add_u32 {sT2}, {sR}, 1\n s_and_b32 {sT2}, {sT2}, 15\n s_lshl_b32 {sT2}, {sT2}, 12")
    mfma(v(S0, 16), v(KF, 4), v(QF, 4), "0")
    mfma(v(S0, 16), v(KF + 4, 4), v(QF + 4, 4), v(S0, 16))
    stamp("q ready")
    wait_col(True)
    stamp("kv ready")
    def kreg(kt, i): return v(KF + 4 * i, 4) if kt == 0 else a(RING + 16 * ((kt - 1) % 8) + 4 * i, 4)
    def vreg(kt, i): return v(VF + 4 * i, 4) if kt == 0 else a(RING + 16 * ((kt - 1) % 8) + 8 + 4 * i, 4)
    loads = []; sal = []
    for kt in range(1, 16):
        for i in range(4):
            def f(kt=kt, i=i):
                if i == 0:
                    while sal: A(sal.pop(0))
                A(f"buffer_load_dwordx4 {a(RING+16*((kt-1)%8)+4*i,4)}, v123, {WS}, {sT2} offen offset:{1024*i} sc1")
                if i == 3: sal.extend([f"s_add_u32 {sT2}, {sT2}, 4096", f"s_and_b32 {sT2}, {sT2}, 0xffff"])
            loads.append(f)
    dm = []
    PRE = int(OPT.get("prel", 4))
    for f in loads[:PRE]: f()
    li = [PRE]; di = [0]
    def next_load(n):
        if li[0] < len(loads):
            kt = li[0] // 4 + 1
            if kt < 9 or n > 4 * (kt - 8) + 5:
                loads[li[0]](); li[0] += 1; return True
        return False
    def next_dma():
        if di[0] < len(dm): dm[di[0]](); di[0] += 1
    Sb = (S0, S1)
    def slot(n): return (n + 1) & 3 if n >= 60 else n & 3
    def redw(j, i): A(f"ds_write_b128 {v(116+j)}, {v(O+16*j+4*i,4)} offset:{L_RED + 4096*(j-1) + 1024*i}")
    def S_(n, i):
        kt, j = n >> 2, slot(n)
        mfma(v(Sb[n & 1], 16), kreg(kt, i), qreg(j, i), "0" if i == 0 else v(Sb[n & 1], 16))
    def PV(n, i):
        kt, j = n >> 2, slot(n)
        mfma(v(O + 16 * j, 16), vreg(kt, i), v(P + 4 * i, 4), "0" if (kt == 0 and i == 0) else v(O + 16 * j, 16))
    for n in range(64):
        s = Sb[n & 1]
        e = lambda i: A(f"v_exp_f32 {v(s+i)}, {v(s+i)}")
        c = lambda i: A(f"v_cvt_pk_bf16_f32 {v(P+i)}, {v(s+2*i)}, {v(s+2*i+1)}")
        if n + 1 < 64: S_(n + 1, 0)
        if "loopst" in OPT and n % 4 == 0 and n: stamp("  step %d" % n)
        next_load(n)
        if n >= 62: redw(slot(n - 2), 2); redw(slot(n - 2), 3)
        e(0); e(1); e(2); c(0); e(3)
        if n > 0: PV(n - 1, 1)
        if n < 12: next_load(n)
        elif n >= 16: next_dma()
        c(1); e(4); e(5); e(6); c(2); e(7)
        if n + 1 < 64: S_(n + 1, 1)
        if not A.wait_regs(vreg(n >> 2, 0), vreg(n >> 2, 1)) and sal: A(sal.pop(0))
        c(3); e(8); e(9); e(10); c(4); e(11)
        PV(n, 0)
        if not (n + 2 < 64 and A.wait_regs(kreg((n + 2) >> 2, 0), kreg((n + 2) >> 2, 1))) and sal: A(sal.pop(0))
        if n >= 61: redw(slot(n - 1), 0); redw(slot(n - 1), 1)
        c(5); e(12); e(13); e(14); e(15); c(6); c(7)
    redw(3, 2); redw(3, 3)
    PV(63, 1)
    assert li[0] == len(loads) and di[0] == len(dm)
    stamp("attn loop done")
    A("s_waitcnt lgkmcnt(0)")
    A("s_barrier")
    for i in (3, 0, 1, 2):
        for j in range(3): A(f"ds_read_b128 {v(192+16*j+4*i,4)}, v116 offset:{L_RED + 4096*j + 1024*i}")
    for i in (3, 0, 1, 2):
        for hf in range(2):
            r = 4 * i + 2 * hf
            A(f"v_pk_add_f32 {v(192+r,2)}, {v(192+r,2)}, {v(208+r,2)}")
            A(f"v_pk_add_f32 {v(O+r,2)}, {v(O+r,2)}, {v(224+r,2)}")
        for hf in range(2):
            r = 4 * i + 2 * hf
            A(f"v_pk_add_f32 {v(O+r,2)}, {v(O+r,2)}, {v(192+r,2)}")
    normalize_publish(O, 4 * it + 2, None, None, T=200, F=192)
    A(f"v_pk_mul_f32 v[72:73], {v(O,2)}, 0")
    for i in range(1, 8): A(f"v_pk_fma_f32 v[72:73], {v(O+2*i,2)}, 0, v[72:73]")
    A(f"v_add_f32 v72, v72, v73")
    A(f"v_add_f32 v72, v72, v201")
    A(f"s_mov_b32 {sT1}, {fbits(2.0**60)}")
    A(f"v_cmp_nle_f32 {sM}, v72, {sT1}")
    A(f"s_mov_b32 {sT1}, {fbits(2.0**-60)}")
    A(f"v_cmp_nge_f32 {sST}, v72, {sT1}")
    A(f"s_or_b64 {sM}, {sM}, {sST}")
    A(f"s_or_b32 {sT1}, s98, s99")
    A(f"v_mov_b32 v72, {sT1}")
    A("ds_write_b32 v120, v72")
    A("s_waitcnt lgkmcnt(0)")
    A("s_barrier")
    A("ds_read_b128 v[72:75], v121")
    A("v_or_b32 v72, v72, v73")
    A("v_or3_b32 v72, v72, v74, v75")
    A(f"v_readfirstlane_b32 {sT1}, v72")
    A(f"s_andn2_b32 {sT1}, {sT1}, {sPASS}")
    A(f"s_cmp_lg_u32 {sT1}, 0")
    Lslow = lab("slow")
    A(f"s_cbranch_scc1 {Lslow}")
    slow.append((Lslow, Lre, it))
    stamp("o voted")
    arrive_row()
    if not last:
        for f in dma_img(0, (0, 1)): f()

slow = []
def slow_path(L, Lre, it):
    A.hist = []; A.vm = []; A.lg = []; A.sm = []
    A.label(L)
    A("s_waitcnt vmcnt(0) lgkmcnt(0)")
    A(f"s_mov_b32 {sPASS}, -1")
    A(f"s_add_u32 {sT3}, {sKV}, {WS_KV + it * (4 << 20)}")
    A(f"s_mov_b32 {sT2}, 16")
    for j in range(4): A(f"v_mov_b32 {v(72+j)}, 0xff800000")
    Ll = lab("mx")
    A.label(Ll)
    A(f"buffer_load_dwordx4 {a(RING,4)}, {vL16}, {WS}, {sT3} offen sc1")
    A(f"buffer_load_dwordx4 {a(RING+4,4)}, {vL16}, {WS}, {sT3} offen offset:1024 sc1")
    for j in range(4):
        mfma(v(S0, 16), a(RING, 4), qreg(j, 0), "0")
        mfma(v(S0, 16), a(RING + 4, 4), qreg(j, 1), v(S0, 16))
        for i in range(0, 16, 2): A(f"v_max3_f32 {v(72+j)}, {v(72+j)}, {v(S0+i)}, {v(S0+i+1)}")
    A(f"s_add_u32 {sT3}, {sT3}, 4096")
    A(f"s_sub_u32 {sT2}, {sT2}, 1")
    A(f"s_cmp_lg_u32 {sT2}, 0")
    A.settle()
    A(f"s_cbranch_scc1 {Ll}")
    A("s_barrier")
    for j in range(4):
        A(f"s_add_u32 {sT1}, {sW}, {j}\n s_and_b32 {sT1}, {sT1}, 3\n s_lshl_b32 {sT1}, {sT1}, 10\n s_add_u32 {sT1}, {sT1}, {L_RED + 256*j}")
        A(f"v_lshl_add_u32 v71, {vLANE}, 2, {sT1}")
        A(f"ds_write_b32 v71, {v(72+j)}")
    A(f"s_lshl_b32 {sT1}, {sW}, 10\n s_add_u32 {sT1}, {sT1}, {L_RED}")
    A(f"v_lshl_add_u32 v71, {vLANE}, 2, {sT1}")
    A("s_waitcnt lgkmcnt(0)")
    A("s_barrier")
    for j in range(4): A(f"ds_read_b32 {v(72+j)}, v71 offset:{256*j}")
    A("v_max3_f32 v72, v72, v73, v74")
    A("v_max_f32 v72, v72, v75")
    A("v_mov_b32 v73, v72")
    A("v_permlane32_swap_b32 v73, v72")
    A("v_max_f32 v72, v72, v73")
    A(f"v_add_f32 {vMX}, {vMX}, v72")
    A(f"s_add_u32 {sT3}, {sKV}, {WS_KV + it * (4 << 20)}")
    A("s_waitcnt lgkmcnt(0)")
    A("s_barrier")
    A.settle()
    A(f"s_branch {Lre}")

def epilogue():
    if STAMPS:
        stamp("end")
        A(f"s_lshl_b32 {sT1}, s2, 2\n s_add_u32 {sT1}, {sT1}, {sW}\n s_lshl_b32 {sT1}, {sT1}, 8\n s_add_u32 {sT1}, {sT1}, {WS_DBG}")
        A(f"v_lshlrev_b32 v72, 2, {vLANE}")
        A(f"buffer_store_dword v125, v72, {WS}, {sT1} offen")
        if DBG_SEL is not None:
            A("s_mov_b64 exec, 1\n v_not_b32 v125, v125")
            A(f"s_mov_b64 exec, {(1 << len(DBG_SEL)) - 1}")
            A("v_add_u32 v72, 4, v72")
            A("global_atomic_umax v72, v125, s[20:21]")
            A("s_mov_b64 exec, -1")
    A("s_waitcnt vmcnt(0)")
    A.label("L_end")
    A("s_endpgm")
    for args in slow: slow_path(*args)
    A.label("L_code_end")
    A.raw(f""".section .rodata,"a"
.p2align 6
.amdhsa_kernel {NAME}_kernel
  .amdhsa_next_free_vgpr 464
  .amdhsa_next_free_sgpr 102
  .amdhsa_accum_offset 256
  .amdhsa_group_segment_fixed_size 0
  .amdhsa_kernarg_size 80
  .amdhsa_user_sgpr_count 2
  .amdhsa_user_sgpr_kernarg_segment_ptr 1
  .amdhsa_system_sgpr_workgroup_id_x 1
  .amdhsa_float_denorm_mode_32 3
.end_amdhsa_kernel""")

prologue()
p1()
for it in range(2):
    a_rest(it)
    outproj(4 * it + 0, False)
    if it == 0:
        for f in colsum_finish_ops(CSB, (0, 1, 2)): f()
    qkv_act(4 * it + 1, CSB, False)
    attention(it)
    outproj(4 * it + 2, it == 1)
    if it == 0:
        qkv_act(3, CSA, True)
epilogue()

def place_page_stubs(text):
    import subprocess, re
    lines = text.split("\n")
    tmp = [l for l in lines]
    n0 = tmp.index("L_page_base:")
    probe = tmp[:n0] + ["L_page_%d:" % k for k in range(8)] + tmp[n0:]
    open("_probe.s", "w").write("\n".join(probe))
    subprocess.run(["clang", "-x", "assembler", "-target", "amdgcn-amd-amdhsa", "-mcpu=gfx950", "-c", "_probe.s", "-o", "_probe.o"], check=True)
    dis = subprocess.run(["llvm-objdump", "-d", "--mcpu=gfx950", "_probe.o"], capture_output=True, text=True).stdout
    seen, addrs = False, []
    for l in dis.split("\n"):
        if "<L_page_base>:" in l or re.search(r"<L_page_\d>:", l): seen = True
        m = re.search(r"// ([0-9A-F]{12}):", l)
        if seen and m: addrs.append(int(m.group(1), 16))
    base = addrs[0]
    assert base % 4096 == 0
    out = tmp[:n0 + 1]
    k, ai, shift = 0, 0, 0
    stop = False
    for l in tmp[n0 + 1:]:
        t = l.strip()
        isins = l.startswith("    ") and t and not t.startswith(";") and not t.startswith(".")
        if t == "L_end:": stop = True
        if isins:
            ad = addrs[ai] - base + shift; ai += 1
            if not stop and ad >= 4096 * (k + 1):
                out.append("L_page_%d:" % k); out.append("    s_cbranch_vccnz @%d" % (k + 4))
                k += 1; shift += 4
        out.append(l)
    out = [re.sub(r"@(\d+)", lambda m: "L_page_ret0" if int(m.group(1)) < 8 else ("L_page_%s" % m.group(1)) if int(m.group(1)) < k else "L_page_ret1", l) if "vccnz @" in l else l for l in out]
    return "\n".join(out), k

out = OUTF[0] if OUTF else f"cdna_kernels/{NAME}.s"
text = A.text()
if "nowarm" not in OPT:
    text, npages = place_page_stubs(text)
open(out, "w").write(text)
if STAMPS: open(out + ".stamps", "w").write("\n".join(stamp_names))
print(f"wrote {out}: {A.nins} instructions, {A.nnop} nop states")
```

```python
import sys, struct, math
sys.path.insert(0, "work")
from asmgen import Asm

NAME = "interleave_layers__linear_kernel_hedgehog__mha_block__prompt"
STAMPS = "--stamps" in sys.argv
OUTF = [a for a in sys.argv[1:] if not a.startswith("--")]
OPT = {a.split("=")[0][2:]: (a.split("=") + ["1"])[1] for a in sys.argv[1:] if a.startswith("--")}

def fbits(x): return "0x%08x" % struct.unpack("<I", struct.pack("<f", x))[0]
LOG2E = math.log2(math.e)

WS_CTR = 0
WS_ACT = 1 << 20
WS_KV = WS_ACT + 7 * (2 << 20)
WS_KVP = WS_KV + 2 * (4 << 20)
WS_IMG = WS_KVP + 2 * (1 << 20)
WS_DBG = WS_IMG + (4 << 20)
WS_END = WS_DBG + (1 << 20)
L_K, L_V, L_Q, L_WO, L_SC = 0, 28672, 57344, 86016, 114688
L_PHI = L_SC
L_KVI = L_SC + 28672
L_CS = L_SC + 32768
L_RS = L_SC + 34816
L_QX = L_SC + 36864
L_MX = L_SC + 45056
L_RED = L_K
L_VOTE = L_SC + 47104
LDS_BYTES = 163840
HIB = 57344
X, WA, WPHI, WOA, WB, WOB, OUT, WS, CODE = ("s[%d:%d]" % (i, i + 3) for i in range(24, 60, 4))
sR, sH, sW = "s60", "s61", "s62"
sBUD = "s63"
sROWC, sCOLC = "s[64:65]", "s[66:67]"
sACT, sPUB, sKV, sKVP = "s68", "s69", "s70", "s71"
sG = ["s%d" % i for i in range(72, 80)]
sHI, sLO, sONE28, sEVEN = "s[80:81]", "s[82:83]", "s[84:85]", "s[86:87]"
sONE, sT0, sT1, sT2, sT3 = "s88", "s89", "s90", "s91", "s92"
sC10, sC01 = "s93", "s94"
sPASS = "s95"
sST = "s[96:97]"
sM = "s[98:99]"
sIMG, sW7, sPOLL = "s3", "s100", "s101"
sINCR, sINCC, sMR, sMC = "s56", "s57", "s58", "s59"
sQW = "s19"
vLANE, vL16 = "v0", "v1"
vLH = "v2"
vTR = "v3"
vN, vNH = "v3", "v4"
vGX, vGM, vWD, vXO = "v10", "v11", "v12", "v14"
vGO = "v5"
vPHW, vPHA, vPHB, vKVW, vLS = "v8", "v9", "v13", "v103", "v102"
vMX = "v15"
Y, AK, AV, AQ = 16, 32, 48, 64
ACT = 128
vRSTD, vMB0 = "v124", 126
vSTAMP = "a250"
RING = 0
WR = 128
CSA, CSB = 160, 166
WP = 172
QA = 180

def v(i, n=1): return "v%d" % i if n == 1 else "v[%d:%d]" % (i, i + n - 1)
def a(i, n=1): return "a%d" % i if n == 1 else "a[%d:%d]" % (i, i + n - 1)

A = Asm()
nstamp = [0]
stamp_names = []
DBG_SEL = [int(x) for x in OPT["dbg"].split(",")] if "dbg" in OPT else None
allst = [0]
def stamp(name):
    if not STAMPS: return
    allst[0] += 1
    if DBG_SEL is not None and allst[0] - 1 not in DBG_SEL: return
    if 1 < allst[0] <= int(OPT.get("from", 0)): return
    if nstamp[0] >= 63 and name != "end": return
    i = nstamp[0]; nstamp[0] += 1
    stamp_names.append(name)
    A(f"{'s_memtime' if 'cyc' in OPT else 's_memrealtime'} {sST}")
    A("s_waitcnt lgkmcnt(0)")
    A(f"v_writelane_b32 v125, s96, {i}")

uid = [0]
def lab(p):
    uid[0] += 1
    return f"L_{p}_{uid[0]}"

def mfma(d, x, y, c, k16=True):
    A(f"v_mfma_f32_32x32x16_bf16 {d}, {x}, {y}, {c}")

def exec_set(m): A(f"s_mov_b64 exec, {m}")

def poll_issue(ctr):
    A(f"s_mov_b32 {sPOLL}, 0")
    A(f"s_atomic_add {sPOLL}, {ctr}, 0 glc")

def ctr_test(target, mask, val=None):
    A(f"s_add_u32 {sT0}, {val or sPOLL}, {hex((0x80 - target) * 0x01010101)}")
    A(f"s_and_b32 {sT0}, {sT0}, {mask}")
    A(f"s_cmp_eq_u32 {sT0}, {mask}")

def spin(ctr, target, mask):
    L, Lo = lab("poll"), lab("go")
    A("s_waitcnt lgkmcnt(0)")
    ctr_test(target, mask)
    A(f"s_cbranch_scc1 {Lo}")
    A.label(L)
    poll_issue(ctr)
    A(f"s_sub_u32 {sBUD}, {sBUD}, 1")
    A(f"s_cbranch_scc1 {Lo}_to")
    A("s_waitcnt lgkmcnt(0)")
    ctr_test(target, mask)
    A(f"s_cbranch_scc0 {L}")
    A(f"s_branch {Lo}")
    A.label(Lo + "_to")
    A(f"s_mov_b32 {sBUD}, 0")
    A("s_waitcnt lgkmcnt(0)")
    A.label(Lo)

ALL = "0x80808080"
def stage1(ctr, target, mask):
    if "stage" not in OPT:
        spin(ctr, target, ALL); return
    spin(ctr, target, mask)
    L = lab("all")
    ctr_test(target, ALL)
    A(f"s_cbranch_scc1 {L}")
    poll_issue(ctr)
    A.label(L)

def stage2(ctr, target):
    if "stage" not in OPT: return
    spin(ctr, target, ALL)

NS = int(OPT.get("ns", 1))
def act_order():
    first = [(Q, k) for Q in range(NS) for k in range(7)]
    return first + [(Q, 6) for Q in range(NS, 4)] + [(Q, k) for Q in range(NS, 4) for k in range(6)]
def ksteps_act():
    out = []
    for Q, k in act_order():
        out.append((ACT + 32 * Q + (26 if k == 6 else 4 * k), 7 * Q + k))
    return out
def ksteps_nat():
    return [(ACT + 4 * s, None, 4 * s, 4 * s + 1) for s in range(28)]

def tr_read(dst, ks, tile_off):
    hi = tile_off >= HIB
    off = tile_off - (HIB if hi else 0)
    if ks[1] is None:
        base = vNH if hi else vN
        A(f"ds_read_b64_tr_b16 {a(dst,2)}, {base} offset:{off + ks[2]*256}")
        A(f"ds_read_b64_tr_b16 {a(dst+2,2)}, {base} offset:{off + ks[3]*256}")
    else:
        A(f"ds_read_b128 {a(dst,4)}, {vLH if hi else vL16} offset:{off + ks[1]*1024}")

class Gemm:
    def __init__(self, ks, tiles):
        self.ks, self.tiles = ks, tiles
        self.nt = len(tiles)
        self.depth = min(8 // self.nt, 15 // (2 * self.nt) + 1, 4 if self.nt > 1 else 6)
        self.issued = 0
    def slot(self, s, t): return WR + 4 * ((s % (8 // self.nt)) * self.nt + t)
    def prefetch(self):
        while self.issued < self.depth - 1:
            self.issue()
    def issue(self):
        s = self.issued
        if s < len(self.ks):
            for t, (acc, off, tr, c0) in enumerate(self.tiles):
                tr_read(self.slot(s, t), self.ks[s], off)
        self.issued += 1
    def run(self, fill=None, tail=0):
        fill = fill or {}
        self.prefetch()
        n = len(self.ks)
        order = [(s, t) for s in range(n - tail) for t in range(self.nt)]
        order += [(s, t) for t in range(self.nt) for s in range(n - tail, n)]
        for s, t in order:
            k = self.ks[s]
            acc, off, tr, c0 = self.tiles[t]
            wf, af = a(self.slot(s, t), 4), v(k[0], 4)
            if t == 0 and self.nt > 1 and s < n - tail: A.wait_regs(af, *[a(self.slot(s, u), 4) for u in range(self.nt)])
            c = c0 if s == 0 else v(acc, 16)
            if tr: mfma(v(acc, 16), wf, af, c)
            else: mfma(v(acc, 16), af, wf, c)
            if t == 0: self.issue()
            f = fill.get((s, t))
            if f: f()

def rank1(acc, cs, tr):
    if tr: A(f"v_mfma_f32_32x32x8_bf16 {v(acc,16)}, {a(cs,2)}, {v(vMB0,2)}, {v(acc,16)}")
    else: A(f"v_mfma_f32_32x32x8_bf16 {v(acc,16)}, {v(vMB0,2)}, {a(cs,2)}, {v(acc,16)}")

def gather_setup(buf):
    A(f"s_add_u32 {sG[0]}, {sACT}, {WS_ACT + buf * (2 << 20)}")
    for i in range(1, 8): A(f"s_xor_b32 {sG[i]}, {sG[0]}, {4096 * i}")

def gather(stats):
    out = []
    for Q, k in act_order():
        R = ACT + 32 * Q
        if k == 6 and stats:
            t = [f"buffer_load_dwordx4 {v(R+24,4)}, {vGM}, {WS}, {sG[2*Q]} offen offset:1536 sc1",
                 f"buffer_load_dwordx4 {v(R+28,4)}, {vGM}, {WS}, {sG[2*Q]} offen offset:3584 sc1"]
        elif k == 6:
            t = [f"buffer_load_dwordx2 {v(R+26,2)}, {vGO}, {WS}, {sG[2*Q]} offen offset:1536 sc1",
                 f"buffer_load_dwordx2 {v(R+28,2)}, {vGO}, {WS}, {sG[2*Q]} offen offset:3584 sc1"]
        elif k < 4:
            t = [f"buffer_load_dwordx4 {v(R+4*k,4)}, {vL16}, {WS}, {sG[2*Q+(k>>1)]} offen offset:{2048*(k&1)} sc1"]
        else:
            t = [f"buffer_load_dwordx4 {v(R+16+4*(k-4),4)}, {vGX}, {WS}, {sG[2*Q+k-4]} offen offset:1024 sc1"]
        out.append([lambda x=x: A(x) for x in t])
    return out

def paced(loads, fill, ahead, dist):
    for n_, ch in enumerate(loads[:ahead]):
        if n_ == 7 * NS: wait_row2()
        for f in ch: f()
    fill = dict(fill or {})
    nxt = ahead
    for s in range(len(loads)):
        chunk = []
        while nxt < len(loads) and nxt <= s + dist and len(chunk) < 2:
            if nxt == 7 * NS: chunk.append(wait_row2)
            chunk += loads[nxt]; nxt += 1
        if chunk:
            old = fill.get((s, 0))
            fill[(s, 0)] = (lambda ch=chunk, old=old: ([f() for f in ch], old() if old else None))
    assert nxt == len(loads)
    return fill

def dma_img(st, tiles):
    out = []
    if "nodma" in OPT and rowc[0] >= 32: return out
    for t in tiles:
        for i in range(7):
            def f(t=t, i=i):
                if i in (0, 4):
                    A(f"s_add_u32 m0, {sW7}, {t * 28672 + i * 1024}")
                    A(f"s_add_u32 {sT1}, {sIMG}, {st * 16 * 114688 + t * 28672 + i * 1024}")
                A(f"buffer_load_dwordx4 {vL16}, {WS}, {sT1} offen offset:{1024 * (i % 4)} sc1 lds")
            out.append(f)
    return out

def dma_direct_q():
    out = []
    for i in range(7):
        def f(i=i):
            A(f"s_add_u32 m0, {sW7}, {L_Q + i * 1024}")
            A(f"s_mul_i32 {sT1}, {sW}, {7 * 16 * 2688}")
            A(f"s_add_u32 {sT1}, {sT1}, {i * 16 * 2688}")
            A(f"buffer_load_dwordx4 {vWD}, {WA}, {sT1} offen lds")
        out.append(f)
    return out

def both_halves_sum(x, t):
    A(f"v_mov_b32 {t}, {x}")
    A(f"v_permlane32_swap_b32 {t}, {x}")
    A(f"v_add_f32 {x}, {x}, {t}")

def stats_finish_ops(s, q, t):
    ops = []
    P = lambda txt: ops.append(lambda: A(txt))
    P(f"v_mov_b32 {t}, {s}")
    P(f"v_permlane32_swap_b32 {t}, {s}")
    P(f"v_add_f32 {s}, {s}, {t}")
    P(f"v_mov_b32 {t}, {q}")
    P(f"v_permlane32_swap_b32 {t}, {q}")
    P(f"v_add_f32 {q}, {q}, {t}")
    P(f"v_mul_f32 {s}, {fbits(-1.0/448)}, {s}")
    P(f"v_mul_f32 {q}, {fbits(1.0/448)}, {q}")
    P(f"v_fma_f32 {q}, -{s}, {s}, {q}")
    P(f"v_max_f32 {q}, 0, {q}")
    P(f"v_add_f32 {q}, {fbits(1e-5)}, {q}")
    P(f"v_rsq_f32 {vRSTD}, {q}")
    P(f"v_cndmask_b32 {s}, {s}, 0, {sHI}")
    P(f"v_cvt_pk_bf16_f32 {v(vMB0+1)}, {s}, 0")
    P(f"v_lshlrev_b32 {t}, 16, {v(vMB0+1)}")
    P(f"v_sub_f32 {t}, {s}, {t}")
    P(f"v_cvt_pk_bf16_f32 {v(vMB0)}, {s}, {t}")
    return ops

def stats_gather_ops(s, q):
    ops = []
    P = lambda txt: ops.append(lambda: A(txt))
    P(f"v_add_f32 {s}, {v(ACT+24)}, {v(ACT+30)}")
    P(f"v_add_f32 {q}, {v(ACT+25)}, {v(ACT+31)}")
    for Q in range(1, 4):
        R = ACT + 32 * Q
        P(f"v_add_f32 {s}, {s}, {v(R+24)}")
        P(f"v_add_f32 {q}, {q}, {v(R+25)}")
        P(f"v_add_f32 {s}, {s}, {v(R+30)}")
        P(f"v_add_f32 {q}, {q}, {v(R+31)}")
    return ops

def deferred(fn):
    pend = []
    real = A.emit
    A.emit = lambda text: pend.append(text)
    fn()
    A.emit = real
    return [lambda t=t: A(t) for t in pend]

def interleave(main, extra, every, start=0):
    extra = list(extra)
    for i, f in enumerate(main):
        f()
        if extra and i >= start and (i - start) % every == 0: extra.pop(0)()
    for f in extra: f()

def kscale_ops(dst, sc):
    ops = [lambda i=i: A(f"v_mul_f32 {v(AK+i)}, {v(AK+i)}, {sc}") for i in range(16)]
    out = []
    for i in range(8):
        out += ops[2 * i:2 * i + 2] + [lambda i=i: A(f"v_cvt_pk_bf16_f32 {v(dst+i)}, {v(AK+2*i)}, {v(AK+2*i+1)}")]
    return out

def add(fill, key, fn):
    old = fill.get(key)
    fill[key] = fn if old is None else (lambda: (old(), fn()))

def spread(ops, slots, per):
    fill = {}
    i = 0
    for sl in slots:
        chunk = ops[i:i + per]; i += per
        if chunk: fill[sl] = (lambda ch=chunk: [f() for f in ch])
    assert i >= len(ops), (i, len(ops))
    return fill

def scale_cvt(dst, acc, sc, n=8):
    reg, sel = sc
    for i in range(n):
        A(f"v_pk_mul_f32 {v(acc+2*i,2)}, {v(acc+2*i,2)}, {v(reg,2)} op_sel:[0,{sel}] op_sel_hi:[1,{sel}]")
    for i in range(n):
        A(f"v_cvt_pk_bf16_f32 {v(dst+i)}, {v(acc+2*i)}, {v(acc+2*i+1)}")

def colsum_items(tiles, accs, nat):
    ones = 80
    def setup():
        for i in range(4): A(f"v_mov_b32 {v(ones+i)}, 0x3f803f80")
        A(f"v_add_u32 v84, {sW7}, {vN if nat else vL16}")
        A(f"v_add_u32 v85, {HIB}, v84")
        A(f"v_and_b32 v86, 31, {vLANE}")
        A(f"s_mul_i32 {sT1}, {sW}, 384")
        A(f"s_add_u32 {sT1}, {sT1}, {L_CS}")
        A(f"v_lshl_add_u32 v86, v86, 2, {sT1}")
    seq = [(i, t) for i in range(7) for t in tiles]
    offs = (L_K, L_V, L_Q)
    def rd(n):
        if n >= len(seq): return
        i, t = seq[n]
        base, off = ("v85", offs[t] - HIB) if offs[t] >= HIB else ("v84", offs[t])
        R = RING + 4 * (n % 8)
        if nat:
            A(f"ds_read_b64_tr_b16 {a(R,2)}, {base} offset:{off + i*1024}")
            A(f"ds_read_b64_tr_b16 {a(R+2,2)}, {base} offset:{off + i*1024 + 256}")
        else:
            A(f"ds_read_b128 {a(R,4)}, {base} offset:{off + i*1024}")
    def mm(n):
        i, t = seq[n]
        mfma(v(accs[t], 16), v(ones, 4), a(RING + 4 * (n % 8), 4), "0" if i == 0 else v(accs[t], 16))
    wr = [lambda t=t: A(f"ds_write_b32 v86, {v(accs[t])} offset:{128*t}") for t in tiles]
    return setup, rd, mm, len(seq), wr

def colsum_mfma(tiles, accs, nat):
    setup, rd, mm, n, wr = colsum_items(tiles, accs, nat)
    setup()
    for i in range(5): rd(i)
    for i in range(n):
        mm(i); rd(i + 5)
    return wr

def colsum_finish_ops(cs, tiles):
    ops = []
    P = lambda txt: ops.append(lambda: A(txt))
    P(f"v_and_b32 v84, 31, {vLANE}")
    P(f"v_lshlrev_b32 v84, 2, v84")
    P(f"v_add_u32 v84, {L_CS}, v84")
    for t in tiles:
        for w in range(4): P(f"ds_read_b32 {v(88+4*t+w)}, v84 offset:{384*w+128*t}")
    for t in tiles:
        r = 88 + 4 * t
        P(f"v_add_f32 {v(r)}, {v(r)}, {v(r+1)}")
        P(f"v_add_f32 {v(r+2)}, {v(r+2)}, {v(r+3)}")
        P(f"v_add_f32 {v(r)}, {v(r)}, {v(r+2)}")
        P(f"v_cvt_pk_bf16_f32 {v(r+1)}, {v(r)}, {v(r)}")
        P(f"v_and_b32 {v(r+2)}, 0xffff0000, {v(r+1)}")
        P(f"v_sub_f32 {v(r+2)}, {v(r)}, {v(r+2)}")
        P(f"v_cvt_pk_bf16_f32 {v(r+2)}, {v(r+2)}, 0")
        P(f"v_accvgpr_write_b32 {a(cs+2*t)}, {v(r+1)}")
        P(f"v_accvgpr_write_b32 {a(cs+2*t+1)}, {v(r+2)}")
    return ops

def phi(P, E, dp, dm, T, after=None, mid=None):
    mx, nm, t0, t1 = v(T), v(T + 1), v(T + 2), v(T + 3)
    A(f"v_max3_f32 {mx}, {v(P)}, {v(P+1)}, {v(P+2)}")
    A(f"v_max3_f32 {nm}, -{v(P)}, -{v(P+1)}, -{v(P+2)}")
    for i in range(3, 13, 2):
        A(f"v_max3_f32 {mx}, {mx}, {v(P+i)}, {v(P+i+1)}")
        A(f"v_max3_f32 {nm}, {nm}, -{v(P+i)}, -{v(P+i+1)}")
    A(f"v_max_f32 {mx}, {mx}, {v(P+13)}")
    A(f"v_max_f32_e64 {nm}, {nm}, -{v(P+13)}")
    A(f"v_permlane32_swap_b32 {mx}, {nm}")
    A(f"v_max_f32 {nm}, {mx}, {nm}")
    A(f"v_mov_b32 {mx}, {nm}")
    A(f"v_permlane32_swap_b32 {mx}, {nm}")
    for i in range(7):
        A(f"v_pk_add_f32 {v(E+2*i,2)}, {v(P+2*i,2)}, {v(T,2)} op_sel:[0,0] op_sel_hi:[1,0] neg_lo:[0,1] neg_hi:[0,1]")
        A(f"v_pk_add_f32 {v(P+2*i,2)}, {v(P+2*i,2)}, {v(T,2)} op_sel:[0,1] op_sel_hi:[1,1] neg_lo:[1,1] neg_hi:[1,1]")
    for i in range(14):
        A(f"v_exp_f32 {v(E+i)}, {v(E+i)}")
        A(f"v_exp_f32 {v(P+i)}, {v(P+i)}")
    if mid: mid()
    A(f"v_pk_add_f32 {v(T,2)}, {v(E,2)}, {v(E+2,2)}")
    A(f"v_pk_add_f32 {v(T+2,2)}, {v(P,2)}, {v(P+2,2)}")
    for i in range(2, 7):
        A(f"v_pk_add_f32 {v(T,2)}, {v(T,2)}, {v(E+2*i,2)}")
        A(f"v_pk_add_f32 {v(T+2,2)}, {v(T+2,2)}, {v(P+2*i,2)}")
    A(f"v_add_f32 {mx}, {mx}, {nm}")
    A(f"v_add_f32 {nm}, {t0}, {t1}")
    A(f"v_mov_b32 {v(dp+7)}, 0")
    A(f"v_permlane32_swap_b32 {mx}, {nm}")
    A(f"v_add_f32 {nm}, {mx}, {nm}")
    A(f"v_rcp_f32 {nm}, {nm}")
    A(f"v_mov_b32 {v(dm+7)}, 0")
    A(f"v_mov_b32 {mx}, {nm}")
    A(f"v_permlane32_swap_b32 {mx}, {nm}")
    scale_cvt(dp, E, (T, 0), 7)
    if after: after(0)
    scale_cvt(dm, P, (T, 1), 7)
    if after: after(1)

def publish_act(F, buf):
    A(f"s_add_u32 {sT1}, {sPUB}, {WS_ACT + buf * (2 << 20)}")
    A(f"buffer_store_dwordx4 {v(F,4)}, {vL16}, {WS}, {sT1} offen sc1")
    A(f"buffer_store_dwordx4 {v(F+4,4)}, {vL16}, {WS}, {sT1} offen offset:1024 sc1")

def den_ops(D, buf, eps, T):
    ops = []
    P = lambda txt: ops.append(lambda: A(txt))
    P(f"v_mov_b32 {v(T)}, {v(D+12)}")
    P(f"v_mov_b32 {v(T+1)}, {v(D+12)}")
    P(f"s_add_u32 {sT1}, {sPUB}, {WS_ACT + buf * (2 << 20)}")
    P(f"s_sub_u32 {sT2}, {sT1}, 4096")
    P(f"v_permlane32_swap_b32 {v(T)}, {v(T+1)}")
    if eps: P(f"v_add_f32 {v(T+1)}, {fbits(eps)}, {v(T+1)}")
    P(f"v_rcp_f32 {v(T)}, {v(T+1)}")
    return ops

def scale_publish(D, T, F):
    for i in range(4): A(f"v_pk_mul_f32 {v(D+2*i,2)}, {v(D+2*i,2)}, {v(T,2)} op_sel:[0,0] op_sel_hi:[1,0]")
    for i in range(4): A(f"v_cvt_pk_bf16_f32 {v(F+i)}, {v(D+2*i)}, {v(D+2*i+1)}")
    A(f"buffer_store_dwordx4 {v(F,4)}, {vL16}, {WS}, {sT1} offen sc1")
    for i in range(4, 8): A(f"v_pk_mul_f32 {v(D+2*i,2)}, {v(D+2*i,2)}, {v(T,2)} op_sel:[0,0] op_sel_hi:[1,0]")
    for i in range(4, 8): A(f"v_cvt_pk_bf16_f32 {v(F+i)}, {v(D+2*i)}, {v(D+2*i+1)}")
    exec_set(sLO)
    A(f"buffer_store_dwordx4 {v(F+4,4)}, {vL16}, {WS}, {sT1} offen offset:1024 sc1")
    exec_set(sHI)
    A(f"buffer_store_dwordx2 {v(F+4,2)}, {vGO}, {WS}, {sT2} offen offset:1536 sc1")
    exec_set("-1")

def normalize_publish(D, buf, eps, pre, T, F):
    for f in den_ops(D, buf, eps, T): f()
    scale_publish(D, T, F)

rowc, colc = [0], [0]
def arrive_row(post=()):
    A("s_waitcnt vmcnt(0)")
    A.wait_regs(sPOLL)
    A(f"s_mov_b32 {sPOLL}, {sINCR}")
    A(f"s_atomic_add {sPOLL}, {sROWC}, 0 glc")
    rowc[0] += 4
    for f in post: f()
def arrive_col(pf=None):
    A("s_waitcnt vmcnt(0)")
    A(f"s_atomic_add {sINCC}, {sCOLC}, 0")
    if pf and "pfc" in OPT:
        so, n = pf
        A(f"v_lshlrev_b32 v100, 7, {vLANE}")
        A(f"s_mov_b64 exec, {sLO if n == 32 else hex((1 << n) - 1)}")
        A(f"buffer_load_dword v101, v100, {WS}, {so} offen sc1")
        A("s_mov_b64 exec, -1")
    colc[0] += 4
def wait_row1():
    if "pf" in OPT:
        buf = rowc[0] // 4 - 1
        A(f"s_add_u32 {sT1}, {sPUB}, {WS_ACT + buf * (2 << 20)}")
        A(f"v_lshlrev_b32 v100, 7, {vLANE}")
        A("s_mov_b64 exec, 0xffff")
        A(f"buffer_load_dword v101, v100, {WS}, {sT1} offen sc1")
        A("s_mov_b64 exec, -1")
    A(f"s_add_u32 {sPOLL}, {sPOLL}, {sINCR}")
    stage1(sROWC, rowc[0], sMR)
def wait_row2(): stage2(sROWC, rowc[0])
def wait_col1(): stage1(sCOLC, colc[0], sMC)
def wait_col2(): stage2(sCOLC, colc[0])

def prologue():
    A.raw(f"""; @launch grid=(256,1,1) block=(256,1,1) lds={LDS_BYTES}
.amdgcn_target "amdgcn-amd-amdhsa--gfx950"
.text
.globl {NAME}_kernel
.p2align 8
.type {NAME}_kernel,@function
{NAME}_kernel:""")
    A("s_cmp_ge_u32 s2, 256")
    A("s_cbranch_scc1 L_end")
    A("s_load_dwordx16 s[4:19], s[0:1], 0")
    A("s_load_dwordx4 s[20:23], s[0:1], 64")
    A("s_getpc_b64 s[56:57]")
    A("s_and_b32 s56, s56, 0xffffff00")
    A("s_and_b32 s57, s57, 0xffff")
    A(f"s_mov_b32 s58, L_code_end-{NAME}_kernel")
    A("s_mov_b32 s59, 0x20000")
    A("v_lshrrev_b32 v1, 6, v0")
    A(f"v_readfirstlane_b32 {sW}, v1")
    A("v_and_b32 v0, 63, v0")
    A(f"s_lshr_b32 s89, s2, 3\n s_lshl_b32 s89, s89, 2\n s_add_u32 s89, s89, {sW}\n s_mul_i32 s89, s89, 640")
    A("v_lshlrev_b32 v2, 7, v0")
    A("s_mov_b64 exec, 31")
    A(f"buffer_load_dword v250, v2, {CODE}, s89 offen")
    A("s_mov_b64 exec, -1")
    if STAMPS: A("v_mov_b32 v125, 0")
    stamp("start")
    if OPT.get("map", "2") == "0":
        A("s_and_b32 s89, s2, 7")
        A("s_lshl_b32 s89, s89, 1")
        A("s_bfe_u32 s90, s2, 0x10003")
        A(f"s_add_u32 {sR}, s89, s90")
        A(f"s_lshr_b32 {sH}, s2, 4")
    elif OPT.get("map", "2") == "2":
        A("s_bfe_u32 s89, s2, 0x20001\n s_lshl_b32 s89, s89, 2\n s_bfe_u32 s90, s2, 0x20003")
        A(f"s_add_u32 {sR}, s89, s90")
        A("s_and_b32 s89, s2, 1\n s_lshl_b32 s89, s89, 3\n s_lshr_b32 s90, s2, 5")
        A(f"s_add_u32 {sH}, s89, s90")
    elif OPT["map"] == "3":
        A("s_bfe_u32 s89, s2, 0x10002\n s_lshl_b32 s89, s89, 3\n s_bfe_u32 s90, s2, 0x30003")
        A(f"s_add_u32 {sR}, s89, s90")
        A("s_and_b32 s89, s2, 3\n s_lshl_b32 s89, s89, 2\n s_lshr_b32 s90, s2, 6")
        A(f"s_add_u32 {sH}, s89, s90")
    A(f"s_mov_b32 {sBUD}, 0x40000")
    A(f"s_mov_b32 {sONE}, 1")
    A(f"s_mov_b32 {sC10}, 0x00003f80")
    A(f"s_mov_b32 {sC01}, 0x3f800000")
    A("s_mov_b32 s80, 0\n s_mov_b32 s81, -1\n s_mov_b32 s82, -1\n s_mov_b32 s83, 0")
    A("s_mov_b32 s84, 0xf0000000\n s_mov_b32 s85, 0xf0000000")
    A(f"s_bitcmp1_b32 {sH}, 0")
    A(f"s_cselect_b64 {sEVEN}, 0, {sHI}")
    A(f"s_lshl_b32 s89, {sR}, 2\n s_add_u32 s89, s89, {sW}")
    A(f"s_lshl_b32 s90, {sH}, 2\n s_add_u32 s90, s90, {sW}")
    A(f"s_lshl_b32 {sACT}, s89, 15")
    A(f"s_lshl_b32 s91, {sH}, 11\n s_add_u32 {sPUB}, {sACT}, s91")
    if OPT.get("key", "hi") == "hi": A(f"s_lshr_b32 s91, {sH}, 2")
    else: A(f"s_and_b32 s91, {sH}, 3")
    A(f"s_lshl_b32 s92, s91, 13\n s_or_b32 {sACT}, {sACT}, s92")
    A(f"s_xor_b32 s95, {sW}, s91")
    A(f"s_lshl_b32 {sKV}, s90, 16")
    A(f"s_lshl_b32 {sKVP}, s90, 14")
    A(f"s_mul_i32 {sW7}, {sW}, 7168")
    A(f"s_mul_i32 {sIMG}, {sH}, 114688\n s_mul_i32 s92, s95, 7168\n s_add_u32 {sIMG}, {sIMG}, s92\n s_add_u32 {sIMG}, {sIMG}, {WS_IMG}")
    A(f"v_lshlrev_b32 {vL16}, 4, {vLANE}")
    A(f"v_lshrrev_b32 v83, 3, {vLANE}")
    A(f"v_and_b32 v84, 7, {vLANE}")
    A(f"v_lshrrev_b32 v85, 1, v83")
    A(f"v_xor_b32 v84, v84, v85")
    A(f"v_mul_u32_u24 v83, 896, v83")
    A(f"v_lshl_add_u32 v88, v84, 4, v83")
    A(f"v_xor_b32 v89, 64, v88")
    A(f"s_mul_i32 s92, {sH}, 56")
    A(f"v_lshrrev_b32 v83, 2, {vLANE}")
    A(f"v_and_b32 v84, 3, {vLANE}")
    A(f"v_lshl_add_u32 v84, v84, 4, s92")
    A(f"v_mul_u32_u24 {vWD}, 2688, v83")
    A(f"v_add_u32 {vWD}, {vWD}, v84")
    A(f"v_mul_u32_u24 v87, 896, v83")
    A(f"v_add_u32 v87, v87, v84")
    A(f"s_mul_i32 s72, s89, 28672")
    A(f"s_mul_i32 s73, {sW}, 26624\n s_add_u32 s73, s73, {L_Q}")
    A(f"s_mul_i32 s74, {sH}, 6\n s_lshr_b32 s74, s74, 4")
    A("s_waitcnt lgkmcnt(0)")
    stamp("kernargs")
    def srd(n, p, size):
        A(f"s_mov_b32 s{n}, s{p}\n s_and_b32 s{n+1}, s{p+1}, 0xffff\n s_mov_b32 s{n+2}, {size}\n s_mov_b32 s{n+3}, 0x20000")
    srd(24, 4, 1835008); srd(52, 22, WS_END)
    A(f"s_or_b32 s91, s2, {sW}")
    A("s_cmp_lg_u32 s91, 0")
    A("s_cbranch_scc1 L_noinit")
    vm_save = list(A.vm)
    A(f"v_lshlrev_b32 v84, 7, {vLANE}")
    A("v_mov_b32 v85, 0")
    A(f"buffer_store_dword v85, v84, {WS}, 0 offen sc1")
    A("v_add_u32 v84, 8192, v84")
    A(f"buffer_store_dword v85, v84, {WS}, 0 offen sc1")
    A.settle()
    A.label("L_noinit")
    A.vm = vm_save
    pend = []
    real_A = A.emit
    def defer(fn):
        A.emit = lambda text: pend.append(text)
        fn()
        A.emit = real_A
    def drain(n):
        for _ in range(n):
            if pend: real_A(pend.pop(0))
    defer(lambda: lane_consts(srd))
    defer(coop_prepare)
    def xdma(rg, soff):
        A(f"buffer_load_dwordx4 v{88 + (rg >> 1)}, {X}, {soff} offen lds")
    srd(28, 6, 1204224)
    for c in range(6):
        A("s_lshl_b32 s75, s74, 7\n s_add_u32 s75, s75, s72\n s_lshl_b32 s76, s74, 12\n s_add_u32 s76, s76, s73")
        for rg in range(4):
            A(f"s_add_u32 m0, s76, {1024 * rg}")
            if rg: A(f"s_add_u32 s75, s75, 7168")
            xdma(rg, "s75")
        A("s_add_u32 s74, s74, 1\n s_cmp_eq_u32 s74, 6\n s_cselect_b32 s74, 0, s74")
    for rg in range(2):
        A(f"s_add_u32 m0, s73, {24576 + 1024 * rg}")
        A(f"s_add_u32 s75, s72, {768 + 7168 * rg}")
        xdma(rg, "s75")
    global XMARK, WDMA
    XMARK = len(A.vm)
    A(f"s_mul_i32 s74, {sR}, 7\n s_lshr_b32 s74, s74, 4")
    A(f"s_and_b32 s77, {sR}, 1")
    WDMA = []
    for t in range(2):
        for i in range(7):
            def f(t=t, i=i):
                if i == 0:
                    A(f"s_xor_b32 s78, s77, {t}")
                    A(f"s_mul_i32 s76, s78, 28672\n s_add_u32 s76, s76, {sW7}")
                    A(f"s_mul_i32 s78, s78, 896\n s_mul_i32 s79, {sW}, {7 * 16 * 2688}\n s_add_u32 s78, s78, s79\n s_add_u32 s78, s78, 896")
                A("s_lshl_b32 s75, s74, 10\n s_add_u32 m0, s75, s76")
                A(f"s_mul_i32 s75, s74, {16 * 2688}\n s_add_u32 s75, s75, s78")
                A(f"buffer_load_dwordx4 {vWD}, {WA}, s75 offen lds")
                A("s_add_u32 s74, s74, 1\n s_cmp_eq_u32 s74, 7\n s_cselect_b32 s74, 0, s74")
            WDMA.append(f)
    NW0 = int(OPT.get("nw0", 6))
    for _ in range(NW0): WDMA.pop(0)()
    drain(10 ** 6)
    if "nowarm" not in OPT:
        A("v_mov_b32 v123, 0\n v_mov_b32 v87, 0")
        A("s_mov_b64 vcc, 0")
        A("s_branch L_page_base")
        A.raw(".p2align 12")
        A.label("L_page_base")
    stamp("loads issued")

def page_walk(first, ret):
    if "nowarm" in OPT: return
    A.settle()
    A("s_mov_b64 vcc, -1")
    for w in range(3):
        A(f"s_cmp_eq_u32 {sW}, {w}")
        A(f"s_cbranch_scc1 L_page_{first + w}")
    A(f"s_branch L_page_{first + 3}")
    A.label(ret)
    A("s_mov_b64 vcc, 0")

def lane_consts(srd):
    NS = int(OPT.get("ns", 1))
    A(f"s_lshr_b32 s91, {sH}, 2\n s_lshl_b32 s91, s91, 3\n s_lshl_b32 {sINCR}, 1, s91")
    if NS == 1: A(f"s_lshl_b32 {sMR}, {sINCR}, 7")
    else: A(f"s_and_b32 s91, s91, 16\n s_lshl_b32 {sMR}, 0x8080, s91")
    A(f"s_lshr_b32 s91, {sR}, 2\n s_lshl_b32 s91, s91, 3\n s_lshl_b32 {sINCC}, 1, s91\n s_lshl_b32 {sMC}, {sINCC}, 7")
    srd(32, 8, 25088); srd(36, 10, 401408); srd(40, 14, 1204224); srd(44, 16, 401408); srd(48, 18, 1835008)
    A(f"s_lshl_b32 s91, s89, 7\n s_add_u32 s64, s22, s91\n s_addc_u32 s65, s23, 0")
    A(f"s_lshl_b32 s91, s90, 7\n s_add_u32 s91, s91, 8192\n s_add_u32 s66, s22, s91\n s_addc_u32 s67, s23, 0")
    A(f"v_and_b32 v80, 31, {vLANE}")
    A(f"v_lshrrev_b32 v81, 5, {vLANE}")
    A(f"v_lshrrev_b32 v83, 3, v80")
    A(f"v_and_b32 v84, 3, v80")
    A(f"v_lshl_add_u32 v83, v83, 2, v84")
    A(f"v_bfe_u32 v84, v80, 2, 1")
    A(f"v_mad_u32_u24 v84, v84, 14, v83")
    A(f"s_lshl_b32 s91, {sW}, 11\n s_add_u32 s91, s91, {L_QX}")
    A(f"v_lshl_add_u32 v84, v84, 1, s91")
    A(f"v_mul_u32_u24 v85, 224, v81")
    A(f"v_add_u32 v100, v84, v85")
    A(f"v_cmp_lt_u32 s[16:17], 13, v83")
    A(f"s_lshl_b32 s91, s89, 5")
    A(f"v_add_u32 v82, s91, v80")
    A(f"v_mul_u32_u24 v82, 896, v82")
    A(f"v_lshl_add_u32 {vXO}, v81, 3, v82")
    A(f"v_add_u32 {vXO}, s92, {vXO}")
    A(f"v_and_b32 v83, 15, {vLANE}")
    A(f"v_lshrrev_b32 v84, 2, v83")
    A(f"v_lshlrev_b32 v84, 6, v84")
    A(f"v_and_b32 v83, 3, v83")
    A(f"v_lshl_add_u32 v84, v83, 3, v84")
    A(f"v_bfe_u32 v83, {vLANE}, 4, 1")
    A(f"v_lshl_add_u32 v84, v83, 5, v84")
    A(f"v_lshl_add_u32 {vN}, v81, 9, v84")
    A(f"v_add_u32 {vNH}, {HIB}, {vN}")
    A(f"v_add_u32 {vLH}, {HIB}, {vL16}")
    A(f"v_lshlrev_b32 v83, 3, v80")
    A(f"v_lshl_add_u32 {vGO}, v81, 12, v83")
    A(f"v_lshlrev_b32 v83, 4, v80")
    A(f"v_lshl_add_u32 {vGX}, v81, 11, v83")
    A(f"v_lshl_add_u32 {vGM}, v81, 12, v83")
    A(f"v_add_u32 {vLS}, {L_SC}, {vL16}")
    A(f"s_lshl_b32 s91, {sW}, 5")
    A(f"v_add_u32 v83, s91, v80")
    A(f"v_mul_u32_u24 v83, 200, v83")
    A(f"v_lshl_add_u32 v83, v81, 3, v83")
    A(f"v_add_u32 {vPHW}, {L_PHI}, v83")
    A(f"v_and_b32 v82, 15, {vLANE}")
    A(f"v_lshrrev_b32 v83, 2, v82")
    A(f"v_lshrrev_b32 v84, 4, {vLANE}")
    A(f"v_lshl_add_u32 v83, v84, 3, v83")
    A(f"v_mul_u32_u24 v83, 200, v83")
    A(f"v_and_b32 v85, 3, v82")
    A(f"v_lshl_add_u32 v83, v85, 3, v83")
    A(f"v_add_u32 {vPHB}, {L_PHI}, v83")
    A(f"v_add_u32 {vPHA}, s91, {vPHB}")
    A(f"v_and_b32 v83, 1, v84")
    A(f"v_lshlrev_b32 v83, 9, v83")
    A(f"v_lshrrev_b32 v84, 1, v84")
    A(f"v_lshl_add_u32 v83, v84, 3, v83")
    A(f"v_lshl_add_u32 v83, v82, 4, v83")
    A(f"s_lshl_b32 s91, {sW}, 10\n s_add_u32 s91, s91, {L_KVI}")
    A(f"v_add_u32 {vKVW}, s91, v83")
    A(f"v_bfe_u32 v82, v80, 1, 2")
    A(f"v_lshrrev_b32 v83, 4, v80")
    A(f"v_lshl_add_u32 v82, v83, 2, v82")
    A(f"v_xor_b32 v82, v82, v81")
    A(f"v_lshlrev_b32 v84, 7, v80")
    A(f"v_add_u32 v84, s73, v84")
    A(f"v_mul_u32_u24 v83, 26624, v83")
    A(f"v_sub_u32 v83, 24576, v83")
    A(f"v_xor_b32 v6, v82, v81")
    for g_ in range(4):
        A(f"v_lshl_add_u32 v85, v81, 3, s92")
        A(f"v_add_u32 v85, {16 * g_}, v85")
        A(f"v_lshrrev_b32 v7, 7, v85")
        A(f"v_bfe_u32 v98, v85, 4, 3")
        A(f"v_xor_b32 v98, v98, v6")
        A(f"v_lshl_add_u32 v98, v98, 4, v84")
        A(f"v_and_b32 v85, 8, v85")
        A(f"v_add_u32 v98, v98, v85")
        A(f"v_lshl_add_u32 {v(104 + g_)}, v7, 12, v98")
        A(f"v_add_u32 v98, v98, v83")
        A(f"v_cmp_eq_u32 {sM}, 6, v7")
        A(f"v_cndmask_b32 {v(108 + g_)}, 0, v98, {sM}")
        A(f"v_cmp_gt_u32 {sM}, 6, v7")
        A(f"v_cndmask_b32 {v(104 + g_)}, 0, {v(104 + g_)}, {sM}")
    for u in range(4):
        A(f"v_xor_b32 v85, {2 * u}, v82")
        A(f"v_lshl_add_u32 v{90 + u}, v85, 4, v84")
        A(f"v_add_u32 v{94 + u}, v{90 + u}, v83")

def wphi_dma():
    A(f"s_lshl_b32 {sT1}, {sW}, 11\n s_add_u32 m0, {sT1}, {L_QX}")
    A(f"s_mul_i32 {sT1}, {sH}, 1568")
    A(f"buffer_load_dwordx4 {vL16}, {WPHI}, {sT1} offen lds")
    A(f"buffer_load_dwordx4 {vL16}, {WPHI}, {sT1} offen offset:1024 lds")

def wphi_ops():
    ops = []
    P = lambda txt: ops.append(lambda: A(txt))
    for u in range(2):
        for e in range(8):
            d0 = 16 * u + 8 * (e >> 2) + (e & 3)
            P(f"ds_read_u16 {v(104+8*u+e)}, v100 offset:{56*d0}")
    for i in range(8):
        P(f"v_lshl_or_b32 {v(104+2*i)}, {v(105+2*i)}, 16, {v(104+2*i)}")
        P(f"v_cndmask_b32 {v(104+2*i)}, {v(104+2*i)}, 0, s[16:17]")
        if i >= 6: P(f"v_cndmask_b32 {v(104+2*i)}, {v(104+2*i)}, 0, {sHI}")
        P(f"v_accvgpr_write_b32 {a(WP+i)}, {v(104+2*i)}")
    return ops

COOP_REGS = [64, 68, 72, 76, 240, 244]
def coop_prepare():
    A(f"s_add_u32 s10, {sR}, 16\n s_sub_u32 s11, {sR}, 5")
    A("v_mov_b32 v99, 0x40000000")
    A(f"v_lshrrev_b32 v6, 5, {vLANE}")
    A(f"v_bfe_u32 v7, {vLANE}, 4, 1")
    A(f"v_bfe_u32 v82, {vLANE}, 2, 2")
    A(f"v_and_b32 v83, 3, {vLANE}")
    A(f"s_mul_i32 {sT1}, {sH}, 56")
    A(f"v_lshl_add_u32 v83, v83, 4, {sT1}")
    for kk, (n, lim, stride) in enumerate(((sR, None, 2688), ("s10", 21, 2688), ("s11", 7, 896))):
        if kk < 2:
            A(f"s_mul_i32 {sT2}, {n}, 37\n s_lshr_b32 {sT2}, {sT2}, 8")
            A(f"s_mul_i32 {sT1}, {sT2}, 7\n s_sub_u32 s15, {n}, {sT1}")
            A(f"s_add_u32 {sT3}, {sT2}, 1\n s_cmp_eq_u32 {sT2}, 2\n s_cselect_b32 {sT3}, 0, {sT3}\n s_mul_i32 s{4 + kk}, {sT3}, 896")
            A(f"s_mul_i32 {sT2}, {sT2}, {28672 - 7168}\n s_lshl_b32 {sT1}, {n}, 10\n s_add_u32 {sT1}, {sT1}, {sT2}")
            A(f"s_add_u32 s{7 + kk}, {sT1}, {sIMG}")
        else:
            A(f"s_and_b32 s15, {n}, 7")
            A(f"s_lshl_b32 {sT1}, s15, 10\n s_add_u32 {sT1}, {sT1}, {3 * 28672}\n s_add_u32 s9, {sT1}, {sIMG}")
        A(f"s_mul_i32 {sT1}, s15, 7\n s_mov_b32 {sT2}, 1\n s_mov_b32 {sT3}, 2")
        A(f"s_mul_i32 s18, s15, 14\n s_sub_u32 s18, s18, 52")
        A(f"s_cmp_ge_u32 s15, 4\n s_cselect_b32 {sT1}, s18, {sT1}\n s_cselect_b32 {sT2}, 7, {sT2}")
        A(f"s_cmp_ge_u32 s15, 6\n s_cselect_b32 {sT1}, 5, {sT1}\n s_cselect_b32 {sT2}, 14, {sT2}\n s_cselect_b32 {sT3}, 7, {sT3}")
        A(f"s_mul_i32 s18, s95, 28\n s_add_u32 {sT1}, {sT1}, s18")
        A(f"v_mul_u32_u24 v84, {sT2}, v6")
        A(f"v_mad_u32_u24 v84, v7, {sT3}, v84")
        A(f"v_add_u32 v84, {sT1}, v84")
        A(f"v_lshl_add_u32 v84, v84, 2, v82")
        A(f"v_mul_u32_u24 v84, {stride}, v84")
        A(f"v_add_u32 {v(248 + kk)}, v84, v83")
        if lim:
            A(f"s_cmp_lt_u32 {n}, {lim}\n s_cselect_b64 {sM}, -1, 0\n s_cselect_b32 s{7 + kk}, s{7 + kk}, 0")
            if kk == 1: A("s_cselect_b32 s5, s5, 0")
            A(f"v_cndmask_b32 {v(248 + kk)}, v99, {v(248 + kk)}, {sM}")
            A(f"v_cndmask_b32 {v(251 + 2 * kk)}, v99, {vL16}, {sM}")
    A("s_mov_b32 s6, 0")
    for k in range(3): A(f"s_add_u32 s{12 + k}, s{7 + k}, {16 * 114688}")
    A(f"s_mul_i32 s15, {sW}, 6144\n s_add_u32 s15, s15, {L_WO}")
    A(f"v_add_u32 v252, s15, {vN}")

def coop_ops():
    lo, rd, st = [], [], []
    for st_set, (w_, wo_) in enumerate(((WA, WOA), (WB, WOB))):
        for k, (srd_, vs) in enumerate(((w_, vL16), (w_, "v253"), (wo_, "v255"))):
            n = 3 * st_set + k
            reg = COOP_REGS[n]
            lo.append(lambda srd_=srd_, k=k, n=n: A(f"s_add_u32 m0, s15, {1024 * n}\n buffer_load_dwordx4 {v(248 + k)}, {srd_}, s{4 + k} offen lds"))
            rd.append(lambda reg=reg, n=n: A(f"ds_read_b64_tr_b16 {v(reg,2)}, v252 offset:{1024 * n}\n ds_read_b64_tr_b16 {v(reg+2,2)}, v252 offset:{1024 * n + 256}"))
            so = f"s{(12 if st_set else 7) + k}"
            st.append(lambda reg=reg, vs=vs, so=so: A(f"buffer_store_dwordx4 {v(reg,4)}, {vs}, {WS}, {so} offen sc1"))
    return lo, rd, st

def p1():
    nyoung = len(A.vm) - XMARK
    A(f"s_waitcnt vmcnt({nyoung})")
    A(f"s_or_b32 {sT1}, s2, {sW}")
    A(f"s_cmp_lg_u32 {sT1}, 0")
    A("s_cbranch_scc1 L_noflag")
    A(f"s_atomic_add {sONE}, s[20:21], 0")
    A.label("L_noflag")
    stamp("x landed")
    def rd(c):
        for u in range(4):
            if c < 6: A(f"ds_read_b128 {v(ACT+16*c+4*u,4)}, v{90+u} offset:{4096*c}")
            else: A(f"ds_read_b128 {v(ACT+16*c+4*u,4)}, v{94+u}")
    def dots(c, between=None):
        for i in range(16 * c, 16 * c + 16):
            r = ACT + i
            A(f"v_dot2_f32_bf16 {v(32+(i&1))}, {v(r)}, {v(r)}, {'0' if i < 2 else v(32+(i&1))}")
            A(f"v_dot2_f32_bf16 {v(34+(i&1))}, {v(r)}, {sT0}, {'0' if i < 2 else v(34+(i&1))}")
            if between and i % 8 == 7 and between: between.pop(0)()
    A(f"s_mov_b32 {sT0}, 0x3f803f80")
    rd(0)
    for g_ in range(4): A(f"ds_read_b64 {v(112+2*g_,2)}, {v(104+g_)}")
    rd(1); rd(2)
    A.wait_regs(v(ACT, 16), v(112, 8))
    for rg in range(2, 4):
        A(f"s_add_u32 m0, s73, {1024 * (rg - 2)}")
        A(f"s_add_u32 {sT1}, s72, {768 + 7168 * rg}")
        A(f"buffer_load_dwordx4 v89, {X}, {sT1} offen lds")
    xl = len(A.vm)
    for c in range(6):
        dots(c, WDMA)
        if c + 3 < 6: rd(c + 3)
    while WDMA: WDMA.pop(0)()
    A(f"s_waitcnt vmcnt({len(A.vm) - xl})")
    rd(6)
    for g_ in range(4): A(f"ds_read_b64 {v(64+2*g_,2)}, {v(108+g_)}")
    dots(6)
    A("v_add_f32 v120, v34, v35")
    A("v_add_f32 v121, v32, v33")
    for f in stats_finish_ops("v120", "v121", "v122"): f()
    for i in range(8):
        if i % 2 == 0: A(f"v_cmp_ne_u32 {sM}, 0, {v(108+i//2)}")
        A(f"v_cndmask_b32 {v(112+i)}, {v(112+i)}, {v(64+i)}, {sM}")
        A(f"v_lshlrev_b32 {v(Y+2*i)}, 16, {v(112+i)}")
        A(f"v_and_b32 {v(Y+2*i+1)}, 0xffff0000, {v(112+i)}")
    page_walk(0, "L_page_ret0")
    A("s_waitcnt vmcnt(0)")
    A("s_barrier")
    stamp("W landed")
    lo, crd, st = coop_ops()
    wphi_dma()
    for f in lo: f()
    A("v_mov_b32 v87, 0")
    A(f"global_load_dword v123, v87, s[20:21] sc1")
    wr = colsum_mfma((0, 1), (AK, AV), True)
    for f in wr: f()
    stamp("colsum")
    g = Gemm(ksteps_nat(), [(AK, L_K, True, "0"), (AV, L_V, True, "0")])
    dq = dma_direct_q()
    ops = [lambda: A("s_waitcnt lgkmcnt(0)\n s_barrier")] + colsum_finish_ops(CSA, (0, 1))
    fill = spread(ops, [(s, 1) for s in range(1, 9)], 4)
    DQ = int(OPT.get("dq", 3))
    for n, f in enumerate(dq): add(fill, (1 + DQ * n, 0), f)
    nq = lambda s_: sum(1 for n in range(7) if 1 + DQ * n <= s_)
    ops = [lambda: A(f"s_waitcnt vmcnt({nq(9) + 7})")] + wphi_ops()
    for k_, f in spread(ops, [(s, 1) for s in range(9, 26)], 3).items(): add(fill, k_, f)
    add(fill, (20, 0), lambda: A(f"s_waitcnt vmcnt({nq(20)})"))
    for n, f in enumerate(crd): add(fill, (20 + n // 2, 0), f)
    for n, f in enumerate(st): add(fill, (23 + n // 2, 0), f)
    fill[(27, 0)] = lambda: rank1(AK, CSA, True)
    g.run(fill, tail=2)
    rank1(AV, CSA + 2, True)
    stamp("p1 gemm")
    L = lab("init")
    A(f"v_readfirstlane_b32 {sT0}, v123")
    A(f"s_cmp_lg_u32 {sT0}, 0")
    A(f"s_cbranch_scc1 {L}_go")
    vm_save = list(A.vm)
    A("v_mov_b32 v80, 0")
    A.label(L)
    A(f"global_load_dword v123, v80, s[20:21] sc1")
    A(f"s_sub_u32 {sBUD}, {sBUD}, 1")
    A(f"s_cbranch_scc1 {L}_to")
    A(f"v_readfirstlane_b32 {sT0}, v123")
    A(f"s_cmp_eq_u32 {sT0}, 0")
    A(f"s_cbranch_scc1 {L}")
    A(f"s_branch {L}_go")
    A.label(L + "_to")
    A(f"s_mov_b32 {sBUD}, 0")
    A("s_waitcnt vmcnt(0)")
    A.label(L + "_go")
    A.vm = vm_save

def qkv_act(buf, cs, v_tr):
    g = Gemm(ksteps_act(), [(AK, L_K, True, "0"), (AV, L_V, v_tr, "0")])
    gather_setup(buf)
    g.prefetch()
    wait_row1()
    stamp("y ready")
    loads = gather(True)
    ops = stats_gather_ops("v120", "v121") + stats_finish_ops("v120", "v121", "v122")
    ops.append(lambda: rank1(AK, cs, True))
    ops.append(lambda: rank1(AV, cs + 2, v_tr))
    if not v_tr:
        ops.append(lambda: A(f"v_and_b32 v122, 31, {vLANE}"))
        ops.append(lambda: A(f"s_lshl_b32 {sT1}, {sW}, 7\n s_add_u32 {sT1}, {sT1}, {L_RS}"))
        ops.append(lambda: A(f"v_lshl_add_u32 v122, v122, 2, {sT1}"))
        ops.append(lambda: A(f"ds_write_b32 v122, {vRSTD}"))
        ops.append(lambda: A(f"v_lshrrev_b32 v122, 5, {vLANE}"))
        ops.append(lambda: A(f"v_lshl_add_u32 v122, v122, 4, {sT1}"))
        for gi in range(4):
            ops.append(lambda gi=gi: A(f"ds_read_b128 {v(104+4*gi,4)}, v122 offset:{32*gi}"))
        ops.append(lambda: A(f"v_and_b32 v123, 31, {vLANE}"))
        ops.append(lambda: A(f"v_cmp_eq_u32 {sM}, 28, v123"))
        ops.append(lambda: A(f"v_mov_b32 v123, 0x3f803f80"))
        ops.append(lambda: A(f"v_cndmask_b32 v123, 0, v123, {sM}"))
    fill = spread(ops, [(s, t) for s in range(6 * NS + 4, 24) for t in range(2)], 2 if NS == 1 else 3)
    if "fine" in OPT: fill[(0, 1)] = lambda: stamp("  first")
    if v_tr: add(fill, (23, 1), lambda: A(f"v_mul_f32 v122, {fbits(LOG2E)}, {vRSTD}"))
    ks = kscale_ops(80, "v122" if v_tr else vRSTD)
    add(fill, (25, 1), lambda: A("s_nop 7"))
    add(fill, (26, 1), lambda: [f() for f in ks[:6]])
    add(fill, (27, 1), lambda: [f() for f in ks[6:]])
    g.run(paced(loads, fill, int(OPT.get("ahead", 8)), int(OPT.get("dist", 10))), tail=4)

def a_rest(it):
    nat = it == 0
    stamp("A gemm done")
    if nat:
        A(f"v_mul_f32 v122, {fbits(LOG2E)}, {vRSTD}")
        scale_cvt(80, AK, (122, 0), 8)
    mfma(v(AQ, 16), a(WP, 4), v(80, 4), "0")
    for i in range(6): A(f"v_mul_f32 {v(AV+i)}, {v(AV+i)}, {vRSTD}")
    mfma(v(AQ, 16), a(WP + 4, 4), v(84, 4), v(AQ, 16))
    for i in range(6, 16): A(f"v_mul_f32 {v(AV+i)}, {v(AV+i)}, {vRSTD}")
    for i in range(8): A(f"v_cvt_pk_bf16_f32 {v(104+i)}, {v(AV+2*i)}, {v(AV+2*i+1)}")
    exec_set(sHI)
    A("v_mov_b32 v110, 0x00003f80\n v_mov_b32 v111, 0")
    exec_set("-1")
    for gi in range(4): A(f"ds_write_b64 {vPHW}, {v(104+2*gi,2)} offset:{128+16*gi}")
    if "fine" in OPT: stamp("  v written")
    phi(AQ, 88, 104, 112, 120, lambda sg: [A(f"ds_write_b64 {vPHW}, {v(104+8*sg+2*gi,2)} offset:{64*sg+16*gi}") for gi in range(4)])
    A(f"s_lshl_b32 {sT1}, {sR}, 10")
    A(f"s_add_u32 {sT1}, {sT1}, {sKVP}")
    A(f"s_add_u32 {sT1}, {sT1}, {WS_KVP + it * (1 << 20)}")
    A("s_waitcnt vmcnt(0) lgkmcnt(0)" if nat else "s_waitcnt lgkmcnt(0)")
    if "fine" in OPT: stamp("  phi written")
    A("s_barrier")
    if "fine" in OPT: stamp("  barrier")
    def rd(tb):
        R = RING + 12 * tb
        for q in range(2): A(f"ds_read_b64_tr_b16 {a(R+2*q,2)}, {vPHA} offset:{(tb*32+4*q)*200}")
        for dt in range(2):
            for q in range(2): A(f"ds_read_b64_tr_b16 {a(R+4+4*dt+2*q,2)}, {vPHB} offset:{(tb*32+4*q)*200+128+32*dt}")
    rd(0); rd(1)
    for tb in range(4):
        R = RING + 12 * tb
        for dt in range(2):
            A(f"v_mfma_f32_16x16x32_bf16 {v(36+4*dt,4)}, {a(R,4)}, {a(R+4+4*dt,4)}, {'0' if tb == 0 else v(36+4*dt,4)}")
            if dt == 0 and tb + 2 < 4: rd(tb + 2)
    g = Gemm(ksteps_nat() if nat else ksteps_act(), [(AQ, L_Q, True, "0")])
    for i in range(4): A(f"v_cvt_pk_bf16_f32 {v(44+i)}, {v(36+2*i)}, {v(37+2*i)}")
    A(f"buffer_store_dwordx4 {v(44,4)}, {vL16}, {WS}, {sT1} offen sc1")
    stamp("kvp stored")
    ARR = int(OPT.get("arr", 14))
    if nat:
        for f in colsum_mfma((2,), (None, None, AV), True): f()
        ops = [lambda: A("s_waitcnt lgkmcnt(0)\n s_barrier")] + colsum_finish_ops(CSA, (2,))
        fill = spread(ops, [(s, 0) for s in range(12, 28)], 2)
        add(fill, (ARR - 8, 0), arrive_col)
    else:
        fill = {(ARR, 0): arrive_col}
        if True:
            for n, f in enumerate(dma_img(0, (3,))): add(fill, (ARR + 2 * n, 0), f)
    g.run(fill)
    if "fine" in OPT: stamp("  q gemm")
    rank1(AQ, CSA + 4, True)
    poll_issue(sCOLC)
    A(f"v_mul_f32 v122, {fbits(LOG2E)}, {vRSTD}")
    A(f"s_lshr_b32 {sT1}, {sR}, 2" if OPT.get("key2", "lo") == "hi" else f"s_and_b32 {sT1}, {sR}, 3")
    A(f"s_lshl_b32 {sT1}, {sT1}, 12\n s_add_u32 {sT1}, {sT1}, {sKVP}")
    A(f"s_add_u32 {sG[0]}, {sT1}, {WS_KVP + it * (1 << 20)}")
    for i in range(1, 4): A(f"s_xor_b32 {sG[i]}, {sG[0]}, {4096*i}")
    scale_cvt(80, AQ, (122, 0), 8)
    mfma(v(AQ, 16), a(WP, 4), v(80, 4), "0")
    mfma(v(AQ, 16), a(WP + 4, 4), v(84, 4), v(AQ, 16))
    ph = deferred(lambda: phi(AQ, 88, 104, 112, 120))
    NPH = int(OPT.get("nph", 64))
    for f in ph[:NPH]: f()
    stamp("phi_q part")
    wait_col1()
    stamp("kvp ready")
    ld = [lambda r=r: A(f"buffer_load_dwordx4 {v(ACT+4*r,4)}, {vL16}, {WS}, {sG[r>>2]} offen offset:{1024*(r&3)} sc1") for r in range(16)]
    for f in ld[:4]: f()
    NP2 = int(OPT.get("np2", 0))
    for f in ph[NPH:NPH + NP2]: f()
    wait_col2()
    interleave(ph[NPH + NP2:], ld[4:], int(OPT.get("phev", 4)))
    dm = dma_img(0, (3,)) if nat else []
    for r in range(16):
        for i in range(4):
            A(f"v_dot2_f32_bf16 {v(80+2*i)}, {v(ACT+4*r+i)}, {sC10}, {'0' if r == 0 else v(80+2*i)}")
            A(f"v_dot2_f32_bf16 {v(81+2*i)}, {v(ACT+4*r+i)}, {sC01}, {'0' if r == 0 else v(81+2*i)}")
        if r >= 8 and dm: dm.pop(0)()
        if "fine" in OPT and r in (0, 15): stamp("  kvp %d" % r)
    for i in range(4): A(f"v_cvt_pk_bf16_f32 {v(88+i)}, {v(80+2*i)}, {v(81+2*i)}")
    for dt in range(2): A(f"ds_write_b64 {vKVW}, {v(88+2*dt,2)} offset:{256*dt}")
    A("s_waitcnt lgkmcnt(0)")
    A("s_barrier")
    if "fine" in OPT: stamp("  kv barrier")
    for u in range(4): A(f"ds_read_b128 {a(WR+4*u,4)}, {vLS} offset:{L_KVI - L_SC + 1024*u}")
    for u in range(4): mfma(v(AK, 16), a(WR + 4 * u, 4), v(104 + 4 * u, 4), "0" if u == 0 else v(AK, 16))
    normalize_publish(AK, 4 * it + 0, 1e-6, None, T=120, F=88)
    stamp("o stored")
    arrive_row(dma_img(1, (0,)))
    if nat: A("s_barrier")
    for f in dma_img(1, (1, 2) if nat else (1,)): f()
    if nat: page_walk(4, "L_page_ret1")

def outproj(buf, last):
    g = Gemm(ksteps_act(), [(Y, L_WO, True, v(Y, 16))])
    if last and OPT.get("fin", "lds") != "plain":
        A(f"s_mul_i32 {sT1}, {sW}, 2048\n s_add_u32 {sT1}, {sT1}, {L_QX}")
        A(f"v_and_b32 v106, 31, {vLANE}\n v_lshrrev_b32 v107, 5, {vLANE}")
        A(f"v_mul_u32_u24 v104, 56, v106\n v_lshl_add_u32 v104, v107, 3, v104\n v_add_u32 v104, {sT1}, v104")
        A(f"v_lshl_add_u32 v105, {vLANE}, 3, {sT1}")
        A(f"s_lshl_b32 {sT1}, {sR}, 2\n s_add_u32 {sT1}, {sT1}, {sW}\n s_mul_i32 {sT1}, {sT1}, 28672\n s_mul_i32 {sT2}, {sH}, 56\n s_add_u32 {sT1}, {sT1}, {sT2}")
        for q in range(4):
            A(f"v_add_u32 v106, {64*q}, {vLANE}")
            A(f"v_mul_u32_u24 v107, 9363, v106\n v_lshrrev_b32 v107, 16, v107")
            A(f"v_mul_u32_u24 v107, 840, v107\n v_lshl_add_u32 v107, v106, 3, v107")
            A(f"v_add_u32 {v(108+q)}, {sT1}, v107")
        exec_set(sHI)
        A("v_mov_b32 v111, 0x40000000")
        exec_set("-1")
    if last and "otouch" in OPT:
        A(f"v_lshrrev_b32 v112, 5, {vLANE}\n v_mul_u32_u24 v112, 44, v112\n v_add_u32 v112, v112, {vXO}")
        A(f"buffer_load_dword v113, v112, {OUT}, 0 offen")
    if buf == 0:
        setup, rd, mm, n, wr = colsum_items((0, 1, 2), (AK, AV, AQ), False)
        setup()
    gather_setup(buf)
    g.prefetch()
    wait_row1()
    stamp("o ready")
    fl = {(0, 0): lambda: stamp("  first"), (27, 0): lambda: stamp("  last")} if "fine" in OPT else {}
    if buf == 0:
        fl[(0, 0)] = lambda: (A("s_barrier"), [rd(i) for i in range(3)])
        for i in range(n): fl[(1 + i, 0)] = lambda i=i: (mm(i), rd(i + 3))
        fl[(25, 0)] = lambda: [f() for f in wr]
        fl[(27, 0)] = lambda: A("s_waitcnt lgkmcnt(0)")
    g.run(paced(gather(False), fl, int(OPT.get("ahead2", 10)), int(OPT.get("dist2", 12))))
    F = 88
    if last:
        fl_ = OPT.get('ost', '').replace('+', ' ')
        for i in range(8): A(f"v_cvt_pk_bf16_f32 {v(F+i)}, {v(Y+2*i)}, {v(Y+2*i+1)}")
        if OPT.get("fin", "lds") == "plain":
            for gi in range(3): A(f"buffer_store_dwordx2 {v(F+2*gi,2)}, {vXO}, {OUT}, 0 offen offset:{16*gi} {fl_}")
            exec_set(sLO)
            A(f"buffer_store_dwordx2 {v(F+6,2)}, {vXO}, {OUT}, 0 offen offset:48 {fl_}")
            exec_set("-1")
        else:
            for gi in range(3): A(f"ds_write_b64 v104, {v(F+2*gi,2)} offset:{16*gi}")
            exec_set(sLO)
            A(f"ds_write_b64 v104, {v(F+6,2)} offset:48")
            exec_set("-1")
            for q in range(4): A(f"ds_read_b64 {v(96+2*q,2)}, v105 offset:{512*q}")
            for q in range(4): A(f"buffer_store_dwordx2 {v(96+2*q,2)}, {v(108+q)}, {OUT}, 0 offen {fl_}")
        return
    A(f"s_add_u32 {sT1}, {sPUB}, {WS_ACT + (buf + 1) * (2 << 20)}")
    for i in range(4): A(f"v_cvt_pk_bf16_f32 {v(F+i)}, {v(Y+2*i)}, {v(Y+2*i+1)}")
    A(f"buffer_store_dwordx4 {v(F,4)}, {vL16}, {WS}, {sT1} offen sc1")
    A(f"v_pk_add_f32 v[104:105], {v(Y,2)}, {v(Y+2,2)}")
    A(f"v_pk_mul_f32 v[106:107], {v(Y,2)}, {v(Y,2)}")
    A(f"v_pk_fma_f32 v[106:107], {v(Y+2,2)}, {v(Y+2,2)}, v[106:107]")
    for i in range(2, 8):
        if i == 6: exec_set(sLO)
        A(f"v_pk_add_f32 v[104:105], v[104:105], {v(Y+2*i,2)}")
        A(f"v_pk_fma_f32 v[106:107], {v(Y+2*i,2)}, {v(Y+2*i,2)}, v[106:107]")
    exec_set("-1")
    A("v_add_f32 v104, v104, v105")
    A("v_add_f32 v106, v106, v107")
    for i in range(4, 8): A(f"v_cvt_pk_bf16_f32 {v(F+i)}, {v(Y+2*i)}, {v(Y+2*i+1)}")
    A("v_permlane32_swap_b32 v105, v104")
    A("v_permlane32_swap_b32 v107, v106")
    exec_set(sHI)
    A(f"v_add_f32 {v(F+6)}, v104, v105")
    A(f"v_add_f32 {v(F+7)}, v106, v107")
    exec_set(sEVEN)
    A(f"v_swap_b32 {v(F+4)}, {v(F+6)}")
    A(f"v_swap_b32 {v(F+5)}, {v(F+7)}")
    exec_set("-1")
    A(f"buffer_store_dwordx4 {v(F+4,4)}, {vL16}, {WS}, {sT1} offen offset:1024 sc1")
    stamp("y stored")
    nxt = 1 - (buf >> 1) % 2
    arrive_row([] if buf == 0 else dma_img(nxt, (2,)))
    A("s_barrier")
    if nxt == 1:
        for f in dma_img(nxt, (3,)): f()

KF, VF, QF, O, S0, S1, P = 80, 88, 104, 128, 32, 48, 64
def qreg(j, i): return v(QF + 4 * i, 4) if j == 0 else a(QA + 8 * (j - 1) + 4 * i, 4)

def attention(it):
    last = it == 1
    stamp("B gemm done")
    exec_set(sHI)
    A(f"v_mov_b32 {v(KF+6)}, 0x3f803f80\n v_mov_b32 {v(KF+7)}, 0x00003f80")
    exec_set("-1")
    A(f"s_lshl_b32 {sT1}, {sR}, 12")
    A(f"s_add_u32 {sT1}, {sT1}, {sKV}")
    A(f"s_add_u32 {sT1}, {sT1}, {WS_KV + it * (4 << 20)}")
    A(f"s_mov_b32 {sG[1]}, {sT1}")
    A(f"buffer_store_dwordx4 {v(KF,4)}, {vL16}, {WS}, {sT1} offen sc1")
    A(f"buffer_store_dwordx4 {v(KF+4,4)}, {vL16}, {WS}, {sT1} offen offset:1024 sc1")
    for i in range(8): A(f"v_pk_mul_f32 {v(AV+2*i,2)}, {v(AV+2*i,2)}, {v(104+2*i,2)}")
    for i in range(8): A(f"v_cvt_pk_bf16_f32 {v(VF+i)}, {v(AV+2*i)}, {v(AV+2*i+1)}")
    exec_set(sONE28)
    for i in range(8): A(f"v_mov_b32 {v(VF+i)}, v123")
    exec_set("-1")
    A(f"buffer_store_dwordx4 {v(VF,4)}, {vL16}, {WS}, {sT1} offen offset:2048 sc1")
    A(f"buffer_store_dwordx4 {v(VF+4,4)}, {vL16}, {WS}, {sT1} offen offset:3072 sc1")
    stamp("kv stored")
    if it == 1: A("s_barrier")
    g = Gemm(ksteps_act(), [(AQ, L_Q, True, "0")])
    ops = []
    P_ = lambda txt: ops.append(lambda: A(txt))
    P_(f"s_lshl_b32 {sT1}, {sW}, 11\n v_add_u32 v112, {sT1}, {vLS}")
    for j in range(1, 4):
        P_(f"s_add_u32 {sT1}, {sW}, {j}\n s_and_b32 {sT1}, {sT1}, 3")
        P_(f"s_lshl_b32 {sT2}, {sT1}, 11\n v_add_u32 {v(112+j)}, {sT2}, {vLS}")
        P_(f"s_mul_i32 {sT2}, {sT1}, 12288\n v_add_u32 {v(116+j)}, {sT2}, {vL16}")
    P_(f"s_mul_i32 {sT2}, {sW}, 12288\n v_add_u32 v116, {sT2}, {vL16}")
    P_(f"s_lshl_b32 {sT2}, {sW}, 2\n s_add_u32 {sT2}, {sT2}, {L_VOTE}")
    P_(f"v_mov_b32 v120, {sT2}\n v_mov_b32 v121, {L_VOTE}")
    P_(f"s_add_u32 {sT3}, {sKV}, {WS_KV + it * (4 << 20)}\n v_add_u32 v123, {sT3}, {vL16}")
    fill = spread(ops, [(s, 0) for s in range(0, 16)], 1)
    add(fill, (16, 0), lambda: rank1(AQ, CSB + 4, True))
    add(fill, (int(OPT.get("arrb", 13)), 0), lambda: arrive_col((sG[1], 32)))
    g.run(fill)
    if "fine" in OPT: stamp("  q gemm")
    poll_issue(sCOLC)
    A(f"v_mul_f32 v122, {fbits(28 ** -0.5 * LOG2E)}, {vRSTD}")
    scale_cvt(QF, AQ, (122, 0), 8)
    exec_set(sHI)
    A(f"v_mov_b32 {v(QF+6)}, 0\n v_mov_b32 {v(QF+7)}, 0")
    exec_set("-1")
    mfma(v(S0, 16), v(KF, 4), v(QF, 4), "0")
    mfma(v(S0, 16), v(KF + 4, 4), v(QF + 4, 4), v(S0, 16))
    A(f"s_mov_b32 {sPASS}, 0")
    A(f"v_max3_f32 {vMX}, {v(S0)}, {v(S0+1)}, {v(S0+2)}")
    for i in range(3, 15, 2): A(f"v_max3_f32 {vMX}, {vMX}, {v(S0+i)}, {v(S0+i+1)}")
    A(f"v_max_f32 {vMX}, {vMX}, {v(S0+15)}")
    A(f"v_mov_b32 v72, {vMX}")
    A(f"v_permlane32_swap_b32 v72, {vMX}")
    A(f"v_max_f32 {vMX}, {vMX}, v72")
    if "fine" in OPT: stamp("  max")
    A.settle()
    Lre = lab("attn")
    A.label(Lre)
    A(f"v_cvt_pk_bf16_f32 v72, -{vMX}, 0")
    A(f"v_lshlrev_b32 v73, 16, v72")
    A(f"v_sub_f32_e64 v73, -{vMX}, v73")
    A(f"v_cvt_pk_bf16_f32 v72, -{vMX}, v73")
    A(f"v_and_b32 v74, 0xffff0000, v72")
    A(f"v_sub_f32 v73, v73, v74")
    exec_set(sHI)
    A(f"v_mov_b32 {v(QF+6)}, v72")
    A(f"v_cvt_pk_bf16_f32 {v(QF+7)}, v73, 0")
    exec_set("-1")
    def kreg(kt, i): return v(KF + 4 * i, 4) if kt == 0 else a(RING + 16 * ((kt - 1) % 8) + 4 * i, 4)
    def vreg(kt, i): return v(VF + 4 * i, 4) if kt == 0 else a(RING + 16 * ((kt - 1) % 8) + 8 + 4 * i, 4)
    loads = []; sal = []
    for kt in range(1, 16):
        for i in range(4):
            def f(kt=kt, i=i):
                if i == 0:
                    while sal: A(sal.pop(0))
                A(f"buffer_load_dwordx4 {a(RING+16*((kt-1)%8)+4*i,4)}, v123, {WS}, {sT2} offen offset:{1024*i} sc1")
                if i == 3 and kt < 15: sal.append(f"s_xor_b32 {sT2}, {sG[0]}, {4096 * (kt + 1)}")
            loads.append(f)
    A(f"ds_write_b128 v112, {v(QF,4)} offset:{L_QX - L_SC}")
    A(f"ds_write_b128 v112, {v(QF+4,4)} offset:{L_QX - L_SC + 1024}")
    A(f"s_lshl_b32 {sG[0]}, {sR}, 12\n s_xor_b32 {sT2}, {sG[0]}, 4096")
    EARLY = "late" not in OPT
    PRE = int(OPT.get("prel", 4))
    if EARLY:
        spin(sCOLC, colc[0], sMC)
        for f in loads[:PRE]: f()
    else: A("s_waitcnt lgkmcnt(0)")
    if "fine" in OPT: stamp("  stage1")
    A("s_barrier")
    for j in range(1, 4):
        A(f"ds_read_b128 {qreg(j,0)}, {v(112+j)} offset:{L_QX - L_SC}")
        A(f"ds_read_b128 {qreg(j,1)}, {v(112+j)} offset:{L_QX - L_SC + 1024}")
    mfma(v(S0, 16), v(KF, 4), v(QF, 4), "0")
    mfma(v(S0, 16), v(KF + 4, 4), v(QF + 4, 4), v(S0, 16))
    stamp("q ready")
    if not EARLY: spin(sCOLC, colc[0], ALL)
    stamp("kv ready")
    dm = []
    if not EARLY:
        for f in loads[:PRE]: f()
    li = [PRE]; di = [0]
    ST2 = int(OPT.get("st2", 8))
    Lsp = lab("rest")
    def st2_check():
        A(f"s_cmp_eq_u32 {sT0}, {ALL}")
        A(f"s_cbranch_scc0 {Lsp}")
        A.label(Lsp + "_ok")
        outl.append((Lsp, colc[0]))
    st2 = {(ST2 - 4, 2): f"s_mov_b32 {sPOLL}, 0", (ST2 - 4, 3): f"s_atomic_add {sPOLL}, {sCOLC}, 0 glc",
           (ST2 - 2, 3): "s_waitcnt lgkmcnt(0)",
           (ST2 - 1, 0): f"s_add_u32 {sT0}, {sPOLL}, {hex((0x80 - colc[0]) * 0x01010101)}",
           (ST2 - 1, 1): f"s_and_b32 {sT0}, {sT0}, {ALL}", (ST2 - 1, 2): st2_check} if EARLY else {}
    def extra(n, k):
        x = st2.get((n, k))
        if x is None: return
        A(x) if isinstance(x, str) else x()
    GRP = int(OPT.get("grp", 4))
    lastn = [-9]
    def next_load(n):
        if li[0] < len(loads) and (GRP == 1 or n - lastn[0] >= GRP // 2):
            kt = li[0] // 4 + 1
            if li[0] == 12 and EARLY and n < ST2: return False
            if kt < 9 or n > 4 * (kt - 8) + 5:
                for _ in range(GRP):
                    loads[li[0]](); li[0] += 1
                lastn[0] = n
                return True
        return False
    def next_dma():
        if di[0] < len(dm): dm[di[0]](); di[0] += 1
    Sb = (S0, S1)
    def slot(n): return (n + 1) & 3 if n >= 60 else n & 3
    def redw(j, i): A(f"ds_write_b128 {v(116+j)}, {v(O+16*j+4*i,4)} offset:{L_RED + 4096*(j-1) + 1024*i}")
    def S_(n, i):
        kt, j = n >> 2, slot(n)
        mfma(v(Sb[n & 1], 16), kreg(kt, i), qreg(j, i), "0" if i == 0 else v(Sb[n & 1], 16))
    def PV(n, i):
        kt, j = n >> 2, slot(n)
        mfma(v(O + 16 * j, 16), vreg(kt, i), v(P + 4 * i, 4), "0" if (kt == 0 and i == 0) else v(O + 16 * j, 16))
    for n in range(64):
        s = Sb[n & 1]
        e = lambda i: A(f"v_exp_f32 {v(s+i)}, {v(s+i)}")
        c = lambda i: A(f"v_cvt_pk_bf16_f32 {v(P+i)}, {v(s+2*i)}, {v(s+2*i+1)}")
        if n + 1 < 64: S_(n + 1, 0)
        if "loopst" in OPT and n % 4 == 0 and n: stamp("  step %d" % n)
        next_load(n); extra(n, 0)
        if n >= 62: redw(slot(n - 2), 2); redw(slot(n - 2), 3)
        e(0); e(1); e(2); c(0); e(3)
        if n > 0: PV(n - 1, 1)
        if n < 20: next_load(n)
        extra(n, 1)
        c(1); e(4); e(5); e(6); c(2); e(7)
        if n + 1 < 64: S_(n + 1, 1)
        if not A.wait_regs(vreg(n >> 2, 0), vreg(n >> 2, 1)) and sal: A(sal.pop(0))
        extra(n, 2)
        c(3); e(8); e(9); e(10); c(4); e(11)
        PV(n, 0)
        if not (n + 2 < 64 and A.wait_regs(kreg((n + 2) >> 2, 0), kreg((n + 2) >> 2, 1))) and sal: A(sal.pop(0))
        extra(n, 3)
        if n >= 61: redw(slot(n - 1), 0); redw(slot(n - 1), 1)
        c(5); e(12); e(13); e(14); e(15); c(6); c(7)
    redw(3, 2); redw(3, 3)
    PV(63, 1)
    assert li[0] == len(loads) and di[0] == len(dm)
    stamp("attn loop done")
    A("s_waitcnt lgkmcnt(0)")
    A("s_barrier")
    for i in (3, 0, 1, 2):
        for j in range(3): A(f"ds_read_b128 {v(192+16*j+4*i,4)}, v116 offset:{L_RED + 4096*j + 1024*i}")
    def red(i):
        for hf in range(2):
            r = 4 * i + 2 * hf
            A(f"v_pk_add_f32 {v(192+r,2)}, {v(192+r,2)}, {v(208+r,2)}")
            A(f"v_pk_add_f32 {v(O+r,2)}, {v(O+r,2)}, {v(224+r,2)}")
        for hf in range(2):
            r = 4 * i + 2 * hf
            A(f"v_pk_add_f32 {v(O+r,2)}, {v(O+r,2)}, {v(192+r,2)}")
    red(3)
    interleave(deferred(lambda: [red(i) for i in range(3)]), den_ops(O, 4 * it + 2, None, 74), 2)
    if "fine" in OPT: stamp("  reduced")
    scale_publish(O, 74, 192)
    if "fine" in OPT: stamp("  o stored")
    A(f"v_pk_mul_f32 v[72:73], {v(O,2)}, 0")
    for i in range(1, 8): A(f"v_pk_fma_f32 v[72:73], {v(O+2*i,2)}, 0, v[72:73]")
    A(f"v_add_f32 v72, v72, v73")
    A(f"v_add_f32 v72, v72, v75")
    A(f"s_mov_b32 {sT1}, {fbits(2.0**60)}")
    A(f"v_cmp_nle_f32 {sM}, v72, {sT1}")
    A(f"s_mov_b32 {sT1}, {fbits(2.0**-60)}")
    A(f"v_cmp_nge_f32 {sST}, v72, {sT1}")
    A(f"s_or_b64 {sM}, {sM}, {sST}")
    A(f"s_or_b32 {sT1}, s98, s99")
    A(f"v_mov_b32 v72, {sT1}")
    A("ds_write_b32 v120, v72")
    A("s_waitcnt lgkmcnt(0)")
    A("s_barrier")
    A("ds_read_b128 v[72:75], v121")
    A("v_or_b32 v72, v72, v73")
    A("v_or3_b32 v72, v72, v74, v75")
    A(f"v_readfirstlane_b32 {sT1}, v72")
    A(f"s_andn2_b32 {sT1}, {sT1}, {sPASS}")
    A(f"s_cmp_lg_u32 {sT1}, 0")
    Lslow = lab("slow")
    A(f"s_cbranch_scc1 {Lslow}")
    slow.append((Lslow, Lre, it))
    stamp("o voted")
    arrive_row()
    if not last:
        for f in dma_img(0, (0, 1)): f()

slow = []
outl = []
def rest_spin(L, target):
    A.hist = []; A.vm = []; A.lg = []; A.sm = []
    A.label(L)
    poll_issue(sCOLC)
    spin(sCOLC, target, ALL)
    A(f"s_branch {L}_ok")

def slow_path(L, Lre, it):
    A.hist = []; A.vm = []; A.lg = []; A.sm = []
    A.label(L)
    A("s_waitcnt vmcnt(0) lgkmcnt(0)")
    A(f"s_mov_b32 {sPASS}, -1")
    A(f"s_add_u32 {sT3}, {sKV}, {WS_KV + it * (4 << 20)}")
    A(f"s_mov_b32 {sT2}, 16")
    for j in range(4): A(f"v_mov_b32 {v(72+j)}, 0xff800000")
    Ll = lab("mx")
    A.label(Ll)
    A(f"buffer_load_dwordx4 {a(RING,4)}, {vL16}, {WS}, {sT3} offen sc1")
    A(f"buffer_load_dwordx4 {a(RING+4,4)}, {vL16}, {WS}, {sT3} offen offset:1024 sc1")
    for j in range(4):
        mfma(v(S0, 16), a(RING, 4), qreg(j, 0), "0")
        mfma(v(S0, 16), a(RING + 4, 4), qreg(j, 1), v(S0, 16))
        for i in range(0, 16, 2): A(f"v_max3_f32 {v(72+j)}, {v(72+j)}, {v(S0+i)}, {v(S0+i+1)}")
    A(f"s_add_u32 {sT3}, {sT3}, 4096")
    A(f"s_sub_u32 {sT2}, {sT2}, 1")
    A(f"s_cmp_lg_u32 {sT2}, 0")
    A.settle()
    A(f"s_cbranch_scc1 {Ll}")
    A("s_barrier")
    for j in range(4):
        A(f"s_add_u32 {sT1}, {sW}, {j}\n s_and_b32 {sT1}, {sT1}, 3\n s_lshl_b32 {sT1}, {sT1}, 10\n s_add_u32 {sT1}, {sT1}, {L_RED + 256*j}")
        A(f"v_lshl_add_u32 v71, {vLANE}, 2, {sT1}")
        A(f"ds_write_b32 v71, {v(72+j)}")
    A(f"s_lshl_b32 {sT1}, {sW}, 10\n s_add_u32 {sT1}, {sT1}, {L_RED}")
    A(f"v_lshl_add_u32 v71, {vLANE}, 2, {sT1}")
    A("s_waitcnt lgkmcnt(0)")
    A("s_barrier")
    for j in range(4): A(f"ds_read_b32 {v(72+j)}, v71 offset:{256*j}")
    A("v_max3_f32 v72, v72, v73, v74")
    A("v_max_f32 v72, v72, v75")
    A("v_mov_b32 v73, v72")
    A("v_permlane32_swap_b32 v73, v72")
    A("v_max_f32 v72, v72, v73")
    A(f"v_add_f32 {vMX}, {vMX}, v72")
    A(f"s_add_u32 {sT3}, {sKV}, {WS_KV + it * (4 << 20)}")
    A("s_waitcnt lgkmcnt(0)")
    A("s_barrier")
    A.settle()
    A(f"s_branch {Lre}")

def epilogue():
    if STAMPS:
        stamp("stored")
        A("s_waitcnt vmcnt(0)")
        stamp("end")
        A(f"s_lshl_b32 {sT1}, s2, 2\n s_add_u32 {sT1}, {sT1}, {sW}\n s_lshl_b32 {sT1}, {sT1}, 8\n s_add_u32 {sT1}, {sT1}, {WS_DBG}")
        A(f"v_lshlrev_b32 v72, 2, {vLANE}")
        A(f"buffer_store_dword v125, v72, {WS}, {sT1} offen")
        if DBG_SEL is not None:
            A("s_mov_b64 exec, 1\n v_not_b32 v125, v125")
            A(f"s_mov_b64 exec, {(1 << len(DBG_SEL)) - 1}")
            A("v_add_u32 v72, 4, v72")
            A("global_atomic_umax v72, v125, s[20:21]")
            A("s_mov_b64 exec, -1")
    A("s_waitcnt vmcnt(0)")
    A.label("L_end")
    A("s_endpgm")
    for args in slow: slow_path(*args)
    for args in outl: rest_spin(*args)
    A.label("L_code_end")
    A.raw(f""".section .rodata,"a"
.p2align 6
.amdhsa_kernel {NAME}_kernel
  .amdhsa_next_free_vgpr 464
  .amdhsa_next_free_sgpr 102
  .amdhsa_accum_offset 256
  .amdhsa_group_segment_fixed_size 0
  .amdhsa_kernarg_size 80
  .amdhsa_user_sgpr_count 2
  .amdhsa_user_sgpr_kernarg_segment_ptr 1
  .amdhsa_system_sgpr_workgroup_id_x 1
  .amdhsa_float_denorm_mode_32 3
.end_amdhsa_kernel""")

prologue()
p1()
for it in range(2):
    a_rest(it)
    outproj(4 * it + 0, False)
    if it == 0:
        for f in colsum_finish_ops(CSB, (0, 1, 2)): f()
    qkv_act(4 * it + 1, CSB, False)
    attention(it)
    outproj(4 * it + 2, it == 1)
    if it == 0:
        qkv_act(3, CSA, True)
epilogue()

def place_page_stubs(text):
    import subprocess, re
    lines = text.split("\n")
    tmp = [l for l in lines]
    n0 = tmp.index("L_page_base:")
    probe = tmp[:n0] + ["L_page_%d:" % k for k in range(8)] + tmp[n0:]
    open("_probe.s", "w").write("\n".join(probe))
    subprocess.run(["clang", "-x", "assembler", "-target", "amdgcn-amd-amdhsa", "-mcpu=gfx950", "-c", "_probe.s", "-o", "_probe.o"], check=True)
    dis = subprocess.run(["llvm-objdump", "-d", "--mcpu=gfx950", "_probe.o"], capture_output=True, text=True).stdout
    seen, addrs = False, []
    for l in dis.split("\n"):
        if "<L_page_base>:" in l or re.search(r"<L_page_\d>:", l): seen = True
        m = re.search(r"// ([0-9A-F]{12}):", l)
        if seen and m: addrs.append(int(m.group(1), 16))
    base = addrs[0]
    assert base % 4096 == 0
    out = tmp[:n0 + 1]
    k, ai, shift = 0, 0, 0
    stop = False
    for l in tmp[n0 + 1:]:
        t = l.strip()
        isins = l.startswith("    ") and t and not t.startswith(";") and not t.startswith(".")
        if t == "L_end:": stop = True
        if isins:
            ad = addrs[ai] - base + shift; ai += 1
            if not stop and ad >= 4096 * (k + 1):
                out.append("L_page_%d:" % k); out.append("    s_cbranch_vccnz @%d" % (k + 4))
                k += 1; shift += 4
        out.append(l)
    out = [re.sub(r"@(\d+)", lambda m: "L_page_ret0" if int(m.group(1)) < 8 else ("L_page_%s" % m.group(1)) if int(m.group(1)) < k else "L_page_ret1", l) if "vccnz @" in l else l for l in out]
    return "\n".join(out), k

out = OUTF[0] if OUTF else f"cdna_kernels/{NAME}.s"
text = A.text()
if "nowarm" not in OPT:
    text, npages = place_page_stubs(text)
open(out, "w").write(text)
if STAMPS: open(out + ".stamps", "w").write("\n".join(stamp_names))
print(f"wrote {out}: {A.nins} instructions, {A.nnop} nop states")
```
